```python
import torch

def _softmax(x, axis=-1):
    return torch.softmax(x, dim=axis)
def _gelu(x):
    return torch.nn.functional.gelu(x, approximate="tanh")
def _silu(x):
    return torch.nn.functional.silu(x)
def _sigmoid(x):
    return torch.sigmoid(x)
def _layernorm(x, axis=-1, eps=1e-5):
    m = x.mean(dim=axis, keepdim=True)
    v = x.var(dim=axis, keepdim=True, unbiased=False)
    return (x - m) / torch.sqrt(v + eps)
def _scatter_add(tgt, idx, src, axis=0):
    return tgt.clone().index_add_(axis, idx, src)
def _segment_sum(src, seg, n):
    out = torch.zeros((n,) + src.shape[1:], dtype=src.dtype)
    return out.index_add_(0, seg, src)
def _pad(x, pw):
    flat = tuple(v for pair in reversed(pw) for v in pair)
    return torch.nn.functional.pad(x, flat)

kernel_name = 'sequential_preLN__sliding_local_dilated__dense_activation_gelu__prompt'

def setup_inputs():

    _w = (lambda a: (lambda t: t.to(torch.bfloat16) if t.is_floating_point() else t)(torch.as_tensor(a)))
    def _A_setup():
        B, S, D = 1, 2048, 448
        return {
            "x": _w((lambda *s: torch.randn(*s, dtype=torch.bfloat16) * 0.05)(B, S, D)),
            "wqkv": _w((lambda *s: torch.randn(*s, dtype=torch.bfloat16) * 0.05)(D, 3 * D)),
            "wo": _w((lambda *s: torch.randn(*s, dtype=torch.bfloat16) * 0.05)(D, D)),
        }
    _A_in = _A_setup()

    def _B_setup():
        B, S, D, F = 1, 2048, 448, 1792
        return {
            "x": _w((lambda *s: torch.randn(*s, dtype=torch.bfloat16) * 0.05)(B, S, D)),
            "w1": _w((lambda *s: torch.randn(*s, dtype=torch.bfloat16) * 0.8)(D, F) * (D ** -0.5)),
            "b1": _w((lambda *s: torch.randn(*s, dtype=torch.bfloat16) * 0.8)(F) * 0.01),
            "w2": _w((lambda *s: torch.randn(*s, dtype=torch.bfloat16) * 0.8)(F, D) * (F ** -0.5)),
            "b2": _w((lambda *s: torch.randn(*s, dtype=torch.bfloat16) * 0.8)(D) * 0.01),
        }
    _B_in = _B_setup()

    return {
        "A_x": _A_in["x"],
        "A_wqkv": _A_in["wqkv"],
        "A_wo": _A_in["wo"],
        "B_x": _B_in["x"],
        "B_w1": _B_in["w1"],
        "B_b1": _B_in["b1"],
        "B_w2": _B_in["w2"],
        "B_b2": _B_in["b2"],
    }

def reference(A_x, A_wqkv, A_wo, B_x, B_w1, B_b1, B_w2, B_b2):
    def _A_ref(x, wqkv, wo):
        B, S, D = x.shape
        H = 16; Dh = D // H
        W, dil = 8, 2
        qkv = (lambda x, *d: x.permute(*d))((x @ wqkv).reshape(B, S, 3, H, Dh), 2, 0, 3, 1, 4)
        q, k, v = qkv[0], qkv[1], qkv[2]
        scale = Dh ** -0.5
        pos = torch.arange(S)
        off = torch.arange(W) * dil
        idx = pos[:, None] - off[None, :]
        mask = idx >= 0
        idx_c = torch.where(mask, idx, 0).reshape(-1)
        kg = k[:, :, idx_c, :].reshape(B, H, S, W, Dh)
        vg = v[:, :, idx_c, :].reshape(B, H, S, W, Dh)
        logits = torch.einsum("bhsd,bhswd->bhsw", q, kg) * scale
        logits = torch.where(mask[None, None, :, :], logits, -1e9)
        attn = _softmax(logits, axis=-1)
        o = torch.einsum("bhsw,bhswd->bhsd", attn, vg)
        return (lambda x, *d: x.permute(*d))(o, 0, 2, 1, 3).reshape(B, S, D) @ wo

    def _B_ref(x, w1, b1, w2, b2):
        h = torch.einsum("bsd,df->bsf", x, w1) + b1
        h = _gelu(h)
        return torch.einsum("bsf,fd->bsd", h, w2) + b2

    x = A_x
    h = x + _A_ref(_layernorm(x, axis=-1), A_wqkv, A_wo)
    h2 = h + _B_ref(_layernorm(h, axis=-1), B_w1, B_b1, B_w2, B_b2)
    return h2
```

```python
import re

REG_RE = re.compile(r'(?<![\w.])(-?\|?)([vas])(\d+|\[(\d+):(\d+)\])(?![\w])')


def regs_of(op):
    out = set()
    op = op.strip()
    if op in ('vcc',):
        return {('s', 'vcc')}
    if op in ('vcc_lo', 'vcc_hi'):
        return {('s', 'vcc')}
    if op in ('exec', 'exec_lo', 'exec_hi'):
        return {('s', 'exec')}
    if op == 'm0':
        return {('s', 'm0')}
    for m in REG_RE.finditer(op):
        k = m.group(2)
        if m.group(4) is not None:
            for i in range(int(m.group(4)), int(m.group(5)) + 1):
                out.add((k, i))
        else:
            out.add((k, int(m.group(3))))
    return out


TRANS = ('v_exp_f32', 'v_log_f32', 'v_rcp_f32', 'v_rsq_f32', 'v_sqrt_f32', 'v_sin_f32', 'v_cos_f32')
NODST_S = ('s_cmp', 's_waitcnt', 's_nop', 's_barrier', 's_branch', 's_cbranch', 's_endpgm', 's_sleep',
           's_setprio', 's_bitcmp', 's_setpc')


class Ins:
    __slots__ = ('text', 'mn', 'ops', 'dst', 'src', 'kind', 'passes', 'srcC', 'srcAB', 'dpp', 'tag', 'ws',
                 'stdata', 'sdwa')

    def __init__(self, text, tag=None):
        self.text = text
        self.tag = tag
        t = text.split(';')[0].strip()
        parts = t.split(None, 1)
        self.mn = mn = parts[0]
        rest = parts[1] if len(parts) > 1 else ''
        ops, depth, cur = [], 0, ''
        for ch in rest:
            if ch in '[(':
                depth += 1
            if ch in '])':
                depth -= 1
            if ch == ',' and depth == 0:
                ops.append(cur.strip())
                cur = ''
            else:
                cur += ch
        if cur.strip():
            ops.append(cur.strip())
        mods = ''
        if ops:
            sp = ops[-1].split(None, 1)
            ops[-1] = sp[0]
            mods = sp[1] if len(sp) > 1 else ''
        self.ops = ops
        self.dst, self.src = set(), set()
        self.passes = 0
        self.srcC, self.srcAB, self.stdata = set(), set(), set()
        self.dpp = ('_dpp' in mn) or ('row_' in mods) or ('quad_perm' in mods)
        self.sdwa = '_sdwa' in mn
        self.ws = 1
        R = [regs_of(o) for o in ops]
        allr = set().union(*R) if R else set()
        if mn.startswith('v_mfma'):
            self.kind = 'mfma'
            self.passes = 8 if '32x32x16' in mn else 4
            assert '32x32x16' in mn or '16x16x32' in mn
            self.dst = R[0]
            self.srcAB = R[1] | R[2]
            self.srcC = R[3]
            self.src = self.srcAB | self.srcC
        elif mn.startswith('ds_'):
            self.kind = 'ds'
            if mn.startswith('ds_write') or mn.startswith('ds_add'):
                self.src = allr
            else:
                self.dst = R[0]
                self.src = set().union(*R[1:])
        elif mn.startswith('buffer_') or mn.startswith('global_'):
            self.kind = 'vm'
            if mn in ('buffer_wbl2', 'buffer_inv'):
                pass
            elif ' lds' in (' ' + mods) or '_lds_' in mn:
                self.src = allr | {('s', 'm0')}
                self.kind = 'dma'
            elif '_load' in mn:
                self.dst = R[0]
                self.src = set().union(*R[1:])
            elif '_store' in mn:
                self.src = allr
                d = R[0] if mn.startswith('buffer_') else R[1]
                if 'x4' in mn or 'x3' in mn:
                    self.stdata = d
            elif '_atomic' in mn:
                self.src = allr
                if 'sc0' in mods:
                    self.dst = R[0]
            else:
                raise ValueError(text)
        elif mn.startswith('s_load') or mn.startswith('s_buffer_load') or mn in ('s_memtime', 's_memrealtime'):
            self.kind = 'smem'
            self.dst = R[0]
            self.src = set().union(*R[1:]) if len(R) > 1 else set()
        elif mn.startswith('s_'):
            self.kind = 'salu'
            if mn == 's_nop':
                self.ws = int(ops[0], 0) + 1
            if any(mn.startswith(p) for p in NODST_S):
                self.src = allr
            else:
                self.dst = R[0]
                self.src = set().union(*R[1:]) if len(R) > 1 else set()
                if 'saveexec' in mn:
                    self.dst = self.dst | {('s', 'exec')}
        elif mn.startswith('v_'):
            self.kind = 'valu'
            if mn.startswith('v_permlane') and 'swap' in mn:
                self.dst = allr
                self.src = allr
            else:
                self.dst = R[0]
                self.src = set().union(*R[1:]) if len(R) > 1 else set()
                if mn.startswith('v_fmac') or mn.startswith('v_dot2c') or mn.startswith('v_pk_fmac') or self.dpp \
                        or mn.startswith('v_writelane') or self.sdwa:
                    self.src = self.src | R[0]
                if '_co_' in mn:
                    self.dst = R[0] | R[1]
                    self.src = set().union(*R[2:])
        else:
            raise ValueError('unknown instr: ' + text)

    def is_trans(self):
        return any(self.mn.startswith(t) for t in TRANS)


def vonly(s):
    return {r for r in s if r[0] in 'va'}


def sonly(s):
    return {r for r in s if r[0] == 's'}


def need_states(p, c):
    n = 0
    pv = vonly(p.dst)
    if p.kind == 'valu':
        if c.kind == 'mfma' and pv & c.src:
            n = max(n, 2)
        if c.kind == 'valu':
            if p.is_trans() and not c.is_trans() and pv & c.src:
                n = max(n, 1)
            if (c.mn.startswith('v_permlane') or c.dpp) and pv & c.src:
                n = max(n, 2)
            if (c.mn.startswith('v_readlane') or c.mn.startswith('v_readfirstlane')) and pv & c.src:
                n = max(n, 1)
            if p.sdwa and pv & (c.src | c.dst):
                n = max(n, 1)
            if p.mn.startswith('v_dot') and pv & (c.src | c.dst) and c.mn != p.mn:
                n = max(n, 3)
        ps = sonly(p.dst)
        if ps:
            if c.kind == 'valu' and ps & c.src:
                n = max(n, 4 if (c.mn.startswith('v_readlane') or c.mn.startswith('v_writelane')) else 2)
            if c.kind in ('vm', 'dma') and ps & c.src:
                n = max(n, 5)
            if c.kind in ('salu', 'smem') and ps & c.src:
                n = max(n, 1)
    if p.kind == 'mfma':
        big = 12 if p.passes == 8 else 8
        if c.kind == 'mfma':
            if p.dst & c.srcAB:
                n = max(n, big)
            if p.dst & c.srcC:
                if not (c.srcC == p.dst and c.passes == p.passes):
                    n = max(n, big - 2)
            elif p.dst & c.dst:
                n = max(n, big - 2)
        elif c.kind in ('valu', 'vm', 'dma', 'ds'):
            if p.dst & (c.src | c.dst):
                n = max(n, big)
            if c.kind == 'valu' and vonly(p.srcC) & c.dst:
                n = max(n, 7 if p.passes == 8 else 3)
    if p.kind == 'salu' and ('s', 'm0') in p.dst and c.kind == 'dma':
        n = max(n, 1)
    if p.stdata and p.stdata & c.dst:
        n = max(n, 2)
    return n


class Asm:
    def __init__(self):
        self.out = []
        self.vmq = []
        self.lgq = []
        self.nnop = 0
        self.uid = 0

    def raw(self, s):
        self.out.append(s)

    def label(self, name):
        self.out.append(name + ':')

    def newlabel(self, base):
        self.uid += 1
        return '%s_%d' % (base, self.uid)

    def comment(self, s):
        self.out.append('    ; ' + s)

    def _emit(self, ins):
        dist = 0
        need = 0
        for p in reversed(self.out):
            if isinstance(p, str):
                continue
            if dist >= 12:
                break
            k = need_states(p, ins) - dist
            if k > need:
                need = k
            dist += p.ws
        while need > 0:
            k = min(need, 16)
            self.out.append(Ins('s_nop %d' % (k - 1)))
            self.nnop += 1
            need -= k
        self.out.append(ins)

    def _wait(self, vm=None, lg=None):
        parts = []
        if vm is not None:
            vm = min(vm, 63)
            if vm < len(self.vmq):
                parts.append('vmcnt(%d)' % vm)
                self.vmq = self.vmq[len(self.vmq) - vm:] if vm else []
        if lg is not None:
            if any(o.kind == 'smem' for o in self.lgq):
                lg = 0
            lg = min(lg, 15)
            if lg < len(self.lgq):
                parts.append('lgkmcnt(%d)' % lg)
                self.lgq = self.lgq[len(self.lgq) - lg:] if lg else []
        if parts:
            self._emit(Ins('s_waitcnt ' + ' '.join(parts)))

    def __call__(self, text, tag=None):
        for line in text.split('\n'):
            line = line.strip()
            if not line or line.startswith(';'):
                continue
            self.one(Ins(line, tag))

    def one(self, ins):
        if isinstance(ins, tuple):
            getattr(self, ins[0])(*ins[1:])
            return
        if isinstance(ins, str):
            ins = Ins(ins)
        assert ins.mn != 's_waitcnt', 'use wait helpers'
        touch = ins.src | ins.dst
        vm = lg = None
        for i, o in enumerate(self.vmq):
            if o.dst & touch:
                vm = len(self.vmq) - 1 - i
        for i, o in enumerate(self.lgq):
            if o.dst & touch:
                lg = len(self.lgq) - 1 - i
        self._wait(vm, lg)
        self._emit(ins)
        if ins.kind in ('vm', 'dma'):
            self.vmq.append(ins)
            assert len(self.vmq) <= 63, 'vmcnt overflow'
        elif ins.kind in ('ds', 'smem'):
            self.lgq.append(ins)

    def seq(self, lst):
        for x in lst:
            self.one(x)

    def wait_vm(self, tag=None):
        if tag is None:
            self._wait(vm=0)
            return
        n = None
        for i, o in enumerate(self.vmq):
            if o.tag == tag:
                n = len(self.vmq) - 1 - i
        if n is not None:
            self._wait(vm=n)

    def wait_lg(self, tag=None):
        if tag is None:
            self._wait(lg=0)
            return
        n = None
        for i, o in enumerate(self.lgq):
            if o.tag == tag:
                n = len(self.lgq) - 1 - i
        if n is not None:
            self._wait(lg=n)

    def force_wait(self, s):
        self._emit(Ins('s_waitcnt ' + s))
        if 'vmcnt(0)' in s:
            self.vmq = []
        if 'lgkmcnt(0)' in s:
            self.lgq = []

    def barrier(self):
        self._wait(lg=0)
        self._emit(Ins('s_barrier'))

    def fence(self):
        self._emit(Ins('s_nop 11'))

    def text(self):
        lines = []
        for o in self.out:
            lines.append(o if isinstance(o, str) else '    ' + o.text)
        return '\n'.join(lines) + '\n'

    def count(self):
        return sum(1 for o in self.out if not isinstance(o, str))


class Regs:
    def __init__(self, n, first=0):
        self.free = set(range(first, n))
        self.n = n
        self.hi = 0

    def alloc(self, cnt=1, align=None):
        if align is None:
            align = 1 if cnt == 1 else (2 if cnt < 4 else 4)
        for b in range(0, self.n - cnt + 1, align):
            if all((b + i) in self.free for i in range(cnt)):
                for i in range(cnt):
                    self.free.discard(b + i)
                self.hi = max(self.hi, b + cnt)
                return b
        raise RuntimeError('out of registers (%d)' % cnt)

    def release(self, b, cnt=1):
        for i in range(cnt):
            assert (b + i) not in self.free
            self.free.add(b + i)


def rng(k, b, n):
    return '%s%d' % (k, b) if n == 1 else '%s[%d:%d]' % (k, b, b + n - 1)


def V(b, n=1):
    return rng('v', b, n)


def A(b, n=1):
    return rng('a', b, n)


def S(b, n=1):
    return rng('s', b, n)


def weave(main, fill, start=0, end=None):
    if end is None:
        end = len(main)
    out = list(main[:start])
    n = end - start
    k = 0
    for i in range(n):
        out.append(main[start + i])
        tgt = ((i + 1) * len(fill)) // n
        while k < tgt:
            f = fill[k]
            if isinstance(f, list):
                out.extend(f)
            else:
                out.append(f)
            k += 1
    out.extend(main[end:])
    return out
```

```python
import math
from asmlib import *
from gen import *

MF16 = 'v_mfma_f32_16x16x32_bf16 %s, %s, %s, %s'
MF32 = 'v_mfma_f32_32x32x16_bf16 %s, %s, %s, %s'
A_EX = 224
PITCH = 272
L_HT = 4 * 64 * PITCH
NSTG = 5


def w1_dma(g, lo, hi):
    out = []
    for i in range(lo, hi):
        out.append(['s_add_u32 m0, %s, %d' % (S(s_m0W), L_W1 + i * 4096),
                    Ins('buffer_load_dwordx4 %s, %s, %s offen lds' % (V(g.vW1d), S(sW1, 4), S(s_oW)), 'w1'),
                    's_add_u32 %s, %s, %d' % (S(s_oW), S(s_oW), 16 * 3584)])
    return out


def w2_dma(g, k):
    sl = (k % NSTG) * 2048
    tag = 'w2_%d' % k
    return ['s_add_u32 m0, %s, %d' % (S(s_m0X), L_STG + sl),
            Ins('buffer_load_dwordx4 %s, %s, %s offen lds' % (V(g.vW2d[0]), S(sW2, 4), S(s_oX)), tag),
            's_add_u32 m0, %s, %d' % (S(s_m0X), L_STG + sl + 1024),
            Ins('buffer_load_dwordx4 %s, %s, %s offen lds' % (V(g.vW2d[1]), S(sW2, 4), S(s_oX)), tag),
            's_add_u32 %s, %s, %d' % (S(s_oX), S(s_oX), 64 * 896)]


def w2_reads(g, k):
    sl = (k % NSTG) * 2048
    out = [('wait_vm', 'w2_%d' % k)]
    for u in range(2):
        for sec in range(2):
            out.append(Ins('ds_read_b64_tr_b16 %s, %s offset:%d' %
                           (A(8 * k + 4 * u + 2 * sec, 2), V(g.aW2[u]), sl + sec * 1024), 'w2r_%d' % k))
    return out


def w2_steps(g, lo, hi):
    out = []
    for k in range(lo, hi):
        grp = w2_reads(g, k)
        if k >= 1 and k - 1 + NSTG < 28:
            grp += [('wait_lg', 'w2r_%d' % (k - 1))] + w2_dma(g, k - 1 + NSTG)
        out.append(grp)
    return out


def h1_window(g):
    a, R = g.a, g.R
    vL, vL16 = g.vL, g.vL16
    a('s_cmp_eq_u32 %s, 7' % S(s_p))
    a('s_cbranch_scc1 Lfin')
    t0, t1, t2 = R.alloc(), R.alloc(), R.alloc()
    g.vW1d = R.alloc()
    a('v_lshrrev_b32 %s, 4, %s' % (V(t0), V(vL)))
    a('v_lshlrev_b32 %s, 6, %s' % (V(t1), V(t0)))
    a('v_and_b32 %s, 0xf0, %s' % (V(t2), V(vL16)))
    a('v_xor_b32 %s, %s, %s' % (V(t1), V(t1), V(t2)))
    a('v_mul_u32_u24 %s, 3584, %s' % (V(t0), V(t0)))
    a('v_add_u32 %s, %s, %s' % (V(g.vW1d), V(t0), V(t1)))
    a('s_lshl_b32 %s, %s, 10' % (S(s_m0W), S(s_w)))
    a('s_mul_i32 %s, %s, %d' % (S(s_oW), S(s_w), 4 * 3584))
    a('s_lshl_b32 %s, %s, 8' % (S(s_t0), S(s_j)))
    a('s_add_u32 %s, %s, %s' % (S(s_oW), S(s_oW), S(s_t0)))
    aWO = [[R.alloc() for _ in range(4)] for _ in range(2)]
    a('v_lshrrev_b32 %s, 2, %s' % (V(t0), V(vL)))
    a('v_bfe_u32 %s, %s, 3, 2' % (V(t1), V(vL)))
    a('v_lshlrev_b32 %s, 5, %s' % (V(t1), V(t1)))
    a('v_and_b32 %s, 3, %s' % (V(t2), V(vL)))
    a('v_lshl_or_b32 %s, %s, 3, %s' % (V(t1), V(t2), V(t1)))
    a('v_lshl_add_u32 %s, %s, 7, %s' % (V(t0), V(t0), V(t1)))
    a('v_add_u32 %s, %d, %s' % (V(t0), L_WO, V(t0)))
    a('v_mov_b32 %s, 2048' % V(t1))
    a('v_cndmask_b32 %s, %s, %s, %s' % (V(t1), V(t1), V(g.vZero), S(s_Q3, 2)))
    for t in range(4):
        a('v_xor_b32 %s, %d, %s' % (V(aWO[0][t]), 32 * t, V(t0)))
        a('v_add_u32 %s, %s, %s' % (V(aWO[1][t]), V(aWO[0][t]), V(t1)))
    reads = []
    for h in range(16):
        for t in range(4):
            for sec in range(2):
                reads.append('ds_read_b64_tr_b16 %s, %s offset:%d' %
                             (A(16 * h + 4 * t + 2 * sec, 2), V(aWO[sec][t ^ (2 * (h & 1))]), h * 28 * 128))
    a.seq(weave(reads, w1_dma(g, 0, 25)))
    g.vW2d = [R.alloc(), R.alloc()]
    a('v_bfe_u32 %s, %s, 4, 1' % (V(t0), V(vL)))
    a('v_lshlrev_b32 %s, 6, %s' % (V(t0), V(t0)))
    a('v_and_b32 %s, 0x70, %s' % (V(t1), V(vL16)))
    a('v_xor_b32 %s, %s, %s' % (V(t0), V(t0), V(t1)))
    a('v_lshrrev_b32 %s, 3, %s' % (V(t1), V(vL)))
    a('v_mul_u32_u24 %s, 896, %s' % (V(t1), V(t1)))
    a('v_add_u32 %s, %s, %s' % (V(g.vW2d[0]), V(t0), V(t1)))
    a('v_add_u32 %s, %d, %s' % (V(g.vW2d[1]), 8 * 896, V(g.vW2d[0])))
    a('s_mul_i32 %s, %s, %d' % (S(s_m0X), S(s_w), STG_W))
    a('s_mul_i32 %s, %s, %d' % (S(s_oX), S(s_w), 16 * 896))
    a('s_lshl_b32 %s, %s, 7' % (S(s_t0), S(s_p)))
    a('s_add_u32 %s, %s, %s' % (S(s_oX), S(s_oX), S(s_t0)))
    g.aW2 = [R.alloc(), R.alloc()]
    a('v_bfe_u32 %s, %s, 2, 2' % (V(t0), V(vL)))
    a('v_lshrrev_b32 %s, 5, %s' % (V(t1), V(vL)))
    a('v_lshl_add_u32 %s, %s, 2, %s' % (V(t0), V(t1), V(t0)))
    a('v_lshlrev_b32 %s, 7, %s' % (V(t0), V(t0)))
    a('v_bfe_u32 %s, %s, 3, 1' % (V(t1), V(vL)))
    a('v_lshl_add_u32 %s, %s, 6, %s' % (V(t0), V(t1), V(t0)))
    a('v_bfe_u32 %s, %s, 4, 1' % (V(t1), V(vL)))
    a('v_lshl_add_u32 %s, %s, 5, %s' % (V(t0), V(t1), V(t0)))
    a('v_and_b32 %s, 3, %s' % (V(t1), V(vL)))
    a('v_lshl_add_u32 %s, %s, 3, %s' % (V(t0), V(t1), V(t0)))
    a('s_add_u32 %s, %s, %d' % (S(s_t0), S(s_m0X), L_STG))
    a('v_add_u32 %s, %s, %s' % (V(g.aW2[0]), S(s_t0), V(t0)))
    a('v_xor_b32 %s, 64, %s' % (V(g.aW2[1]), V(g.aW2[0])))
    a.barrier()
    for x in w1_dma(g, 25, 28):
        a.seq(x)
    for k in range(NSTG):
        a.seq(w2_dma(g, k))
    g.vB1 = R.alloc()
    g.vB2 = R.alloc(4)
    a('v_and_b32 %s, 31, %s' % (V(t0), V(vL)))
    a('v_lshlrev_b32 %s, 1, %s' % (V(t0), V(t0)))
    a('s_lshl_b32 %s, %s, 8' % (S(s_t0), S(s_j)))
    a('s_lshl_b32 %s, %s, 6' % (S(s_t1), S(s_w)))
    a('s_add_u32 %s, %s, %s' % (S(s_t0), S(s_t0), S(s_t1)))
    a('buffer_load_ushort %s, %s, %s, %s offen' % (V(g.vB1), V(t0), S(sB1, 4), S(s_t0)))
    a('v_and_b32 %s, 0x70, %s' % (V(t1), V(vL16)))
    a('s_lshl_b32 %s, %s, 7' % (S(s_t0), S(s_p)))
    a('buffer_load_dwordx4 %s, %s, %s, %s offen' % (V(g.vB2, 4), V(t1), S(sB2, 4), S(s_t0)))
    for sec in range(2):
        for t in range(4):
            R.release(aWO[sec][t])
    for r_ in (t0, t1, t2, g.vW1d):
        R.release(r_)


def p2(g):
    a, R = g.a, g.R
    vL, vL16 = g.vL, g.vL16
    acc = [R.alloc(4) for _ in range(4)]
    for t in range(4):
        for h in range(2):
            a('v_lshlrev_b32 %s, 16, %s' % (V(acc[t] + 2 * h), V(g.vXr + 2 * t + h)))
            a('v_and_b32 %s, 0xffff0000, %s' % (V(acc[t] + 2 * h + 1), V(g.vXr + 2 * t + h)))
    vHs, vSs = R.alloc(), R.alloc()
    t0, t1 = R.alloc(), R.alloc()
    a('v_and_b32 %s, 15, %s' % (V(t0), V(vL)))
    a('v_lshlrev_b32 %s, 3, %s' % (V(vSs), V(t0)))
    a('v_lshlrev_b32 %s, 4, %s' % (V(t0), V(t0)))
    a('v_lshrrev_b32 %s, 4, %s' % (V(t1), V(vL)))
    a('v_lshl_add_u32 %s, %s, 9, %s' % (V(vHs), V(t1), V(t0)))
    a('s_lshl_b32 %s, %s, 1' % (S(s_t0), S(s_rl)))
    a('s_lshr_b32 %s, %s, 1' % (S(s_t1), S(s_w)))
    a('s_add_u32 %s, %s, %s' % (S(s_t0), S(s_t0), S(s_t1)))
    a('s_and_b32 %s, %s, 1' % (S(s_t1), S(s_w)))
    a('s_mul_i32 %s, %s, %d' % (S(s_bX), S(s_t0), 28 * 1024))
    a('s_lshl_b32 %s, %s, 12' % (S(s_t2), S(s_p)))
    a('s_add_u32 %s, %s, %s' % (S(s_bX), S(s_bX), S(s_t2)))
    a('s_lshl_b32 %s, %s, 8' % (S(s_t2), S(s_t1)))
    a('s_add_u32 %s, %s, %s' % (S(s_bX), S(s_bX), S(s_t2)))
    a('s_add_u32 %s, %s, %d' % (S(s_bX), S(s_bX), WS_H))
    a('s_lshl_b32 %s, %s, 11' % (S(s_bH), S(s_t0)))
    a('s_lshl_b32 %s, %s, 8' % (S(s_t2), S(s_p)))
    a('s_add_u32 %s, %s, %s' % (S(s_bH), S(s_bH), S(s_t2)))
    a('s_lshl_b32 %s, %s, 7' % (S(s_t2), S(s_t1)))
    a('s_add_u32 %s, %s, %s' % (S(s_bH), S(s_bH), S(s_t2)))
    a('s_add_u32 %s, %s, %d' % (S(s_bH), S(s_bH), WS_ST))
    a('s_lshl_b32 %s, %s, 2' % (S(s_bW), S(s_rl)))
    a('s_add_u32 %s, %s, %s' % (S(s_bW), S(s_bW), S(s_w)))
    a('s_lshl_b32 %s, %s, 14' % (S(s_bW), S(s_bW)))
    a('s_mul_i32 %s, %s, %d' % (S(s_t0), S(s_rl), 8 * FS))
    a('s_add_u32 %s, %s, %d' % (S(s_t0), S(s_t0), FL1))
    g.stamp()
    g.poll(s_t0, 8, g.vFl)
    g.stamp()
    of = [R.alloc(4) for _ in range(16)]
    for h in range(16):
        if h and h % 4 == 0:
            a('s_add_u32 %s, %s, 4096' % (S(s_bW), S(s_bW)))
        a('buffer_load_dwordx4 %s, %s, %s, %s offen offset:%d sc1' %
          (V(of[h], 4), V(vL16), S(sWS, 4), S(s_bW), (h % 4) * 1024))
    for h in range(16):
        for t in range(4):
            a(MF16 % (V(acc[t], 4), A(16 * h + 4 * t, 4), V(of[h], 4), V(acc[t], 4)))
    Hf = g.vXr
    for t in range(4):
        for h in range(2):
            a('v_cvt_pk_bf16_f32 %s, %s, %s' % (V(Hf + 2 * t + h), V(acc[t] + 2 * h), V(acc[t] + 2 * h + 1)))
    ss, su = of[0], of[1]
    a(MF16 % (V(ss, 4), V(Hf, 4), V(Hf, 4), '0'))
    a(MF16 % (V(su, 4), V(g.vOnes, 4), V(Hf, 4), '0'))
    a(MF16 % (V(ss, 4), V(Hf + 4, 4), V(Hf + 4, 4), V(ss, 4)))
    a(MF16 % (V(su, 4), V(g.vOnes, 4), V(Hf + 4, 4), V(su, 4)))
    for f in range(2):
        a('buffer_store_dwordx4 %s, %s, %s, %s offen offset:%d sc1' %
          (V(Hf + 4 * f, 4), V(vHs), S(sWS, 4), S(s_bX), f * 2048))
    a('v_cndmask_b32 %s, %s, %s, %s' % (V(su + 1), V(ss), V(ss + 1), S(s_M1, 2)))
    a('v_cndmask_b32 %s, %s, %s, %s' % (V(su + 1), V(su + 1), V(ss + 2), S(s_M2, 2)))
    a('v_cndmask_b32 %s, %s, %s, %s' % (V(su + 1), V(su + 1), V(ss + 3), S(s_M3, 2)))
    a('s_mov_b32 exec_lo, 0x00f0000f')
    a('s_mov_b32 exec_hi, 0xf0000f00')
    a('buffer_store_dwordx2 %s, %s, %s, %s offen sc1' % (V(su, 2), V(vSs), S(sWS, 4), S(s_bH)))
    a('s_mov_b64 exec, -1')
    g.stamp()
    a('s_lshl_b32 %s, %s, 3' % (S(s_t0), S(s_rl)))
    a('s_add_u32 %s, %s, %s' % (S(s_t0), S(s_t0), S(s_p)))
    a('s_mul_i32 %s, %s, %d' % (S(s_t0), S(s_t0), FS))
    a('s_add_u32 %s, %s, %d' % (S(s_t0), S(s_t0), FL2))
    a.wait_vm()
    a.barrier()
    g.flag_store(s_t0)
    g.stamp()
    for x in of + acc:
        R.release(x, 4)
    for r_ in (vHs, vSs, t0, t1):
        R.release(r_)


def w1_addr(g):
    a, R = g.a, g.R
    vL = g.vL
    t0, t1 = R.alloc(), R.alloc()
    g.aW1 = [[R.alloc() for _ in range(4)] for _ in range(2)]
    a('v_bfe_u32 %s, %s, 2, 2' % (V(t0), V(vL)))
    a('v_mul_u32_u24 %s, 320, %s' % (V(t0), V(t0)))
    a('v_lshrrev_b32 %s, 5, %s' % (V(t1), V(vL)))
    a('v_lshl_add_u32 %s, %s, 10, %s' % (V(t0), V(t1), V(t0)))
    a('v_bfe_u32 %s, %s, 4, 1' % (V(t1), V(vL)))
    a('v_lshl_add_u32 %s, %s, 5, %s' % (V(t0), V(t1), V(t0)))
    a('v_and_b32 %s, 3, %s' % (V(t1), V(vL)))
    a('v_lshl_add_u32 %s, %s, 3, %s' % (V(t0), V(t1), V(t0)))
    for t in range(4):
        a('v_xor_b32 %s, %d, %s' % (V(g.aW1[0][t]), 64 * t, V(t0)))
        a('v_add_u32 %s, %d, %s' % (V(g.aW1[1][t]), 224 * 256, V(g.aW1[0][t])))
    R.release(t0)
    R.release(t1)


def w1_read(ks, dst, addr):
    row = 32 * (ks >> 1) + 8 * (ks & 1)
    hi = row >= 224
    off = (row - 224 * hi) * 256
    return ['ds_read_b64_tr_b16 %s, %s offset:%d' % (V(dst, 2), V(addr[hi]), off),
            'ds_read_b64_tr_b16 %s, %s offset:%d' % (V(dst + 2, 2), V(addr[hi]), off + 16 * 256)]


def h2_window(g):
    a, R = g.a, g.R
    w1_addr(g)
    am = [R.alloc(), R.alloc()]
    a('s_lshl_b32 %s, %s, 6' % (S(s_t0), S(s_w)))
    for k in range(2):
        a('v_xor_b32 %s, %s, %s' % (V(am[k]), S(s_t0), V(g.aW1[k][0])))
    cs = R.alloc(16)
    NB = 6
    fr = [R.alloc(4) for _ in range(NB)]
    main = []
    for ks in range(NB - 1):
        main += w1_read(ks, fr[ks], am)
    for ks in range(28):
        if ks + NB - 1 < 28:
            main += w1_read(ks + NB - 1, fr[(ks + NB - 1) % NB], am)
        main.append(MF32 % (V(cs, 16), V(g.vOnes, 4), V(fr[ks % NB], 4), '0' if ks == 0 else V(cs, 16)))
    n1 = g.o.get('w2a', 28)
    a.seq(weave(main, w2_steps(g, 0, n1)))
    g.w2done = n1
    ex = fr[0]
    t0 = fr[1]
    a('v_lshlrev_b32 %s, 16, %s' % (V(g.vB1), V(g.vB1)))
    a('v_cvt_pk_bf16_f32 %s, %s, %s' % (V(t0), V(cs), V(cs)))
    a('v_lshlrev_b32 %s, 16, %s' % (V(t0), V(t0)))
    a('v_sub_f32 %s, %s, %s' % (V(t0), V(cs), V(t0)))
    a('v_cvt_pk_bf16_f32 %s, %s, %s' % (V(ex), V(cs), V(t0)))
    a('v_cvt_pk_bf16_f32 %s, %s, %s' % (V(ex + 1), V(cs), V(g.vB1)))
    a('v_cvt_pk_bf16_f32 %s, %s, %s' % (V(ex + 2), V(g.vB1), V(g.vZero)))
    a('v_mov_b32 %s, 0' % V(ex + 3))
    for i in range(3):
        a('v_cndmask_b32 %s, %s, %s, %s' % (V(ex + i), V(ex + i), V(g.vZero), S(s_hi, 2)))
    a('s_lshl_b32 %s, %s, 10' % (S(s_t0), S(s_w)))
    a('s_add_u32 %s, %s, %d' % (S(s_t0), S(s_t0), L_EX))
    a('v_add_u32 %s, %s, %s' % (V(t0), S(s_t0), V(g.vL16)))
    a('ds_write_b128 %s, %s' % (V(t0), V(ex, 4)))
    a('v_add_u32 %s, %d, %s' % (V(t0), L_EX, V(g.vL16)))
    a.barrier()
    for t in range(4):
        a('ds_read_b128 %s, %s offset:%d' % (A(A_EX + 4 * t, 4), V(t0), t * 1024))
    a.wait_lg()
    for x in fr:
        R.release(x, 4)
    R.release(cs, 16)
    R.release(am[0]); R.release(am[1]); R.release(g.vB1)


def gelu_code(g, acc, cst, tmp, out):
    C1, C3, sd = cst
    code = []
    for b in range(0, 16, 4):
        x = acc + b
        t = tmp + (b & 4)
        for i in range(4):
            code.append('v_mul_f32 %s, %s, %s' % (V(t + i), V(x + i), V(x + i)))
        for i in range(4):
            code.append('v_fma_f32 %s, %s, %s, %s' % (V(t + i), V(t + i), V(C3), V(C1)))
        for i in range(4):
            code.append('v_mul_f32 %s, %s, %s' % (V(t + i), V(t + i), V(x + i)))
        for i in range(4):
            code.append('v_exp_f32 %s, %s' % (V(t + i), V(t + i)))
        for i in range(4):
            code.append('v_fma_f32 %s, %s, %s, %s' % (V(t + i), V(t + i), V(sd), V(sd)))
        for i in range(4):
            code.append('v_rcp_f32 %s, %s' % (V(t + i), V(t + i)))
        for i in range(4):
            code.append('v_mul_f32 %s, %s, %s' % (V(t + i), V(t + i), V(x + i)))
        for h in range(2):
            code.append('v_cvt_pk_bf16_f32 %s, %s, %s' % (V(out + b // 2 + h), V(t + 2 * h), V(t + 2 * h + 1)))
    return code


def p3(g):
    a, R = g.a, g.R
    vL, vL16 = g.vL, g.vL16
    vS0, vS3 = R.alloc(), R.alloc()
    t0 = R.alloc()
    a('v_lshlrev_b32 %s, 3, %s' % (V(vS0), V(vL)))
    a('v_mov_b32 %s, 0x40000000' % V(t0))
    a('v_cndmask_b32 %s, %s, %s, %s' % (V(vS3), V(vS0), V(t0), S(s_hi, 2)))
    a('s_and_b32 %s, %s, 2' % (S(s_t1), S(s_rl)))
    a('s_lshl_b32 %s, %s, 1' % (S(s_t2), S(s_t1)))
    a('s_add_u32 %s, %s, %s' % (S(s_t2), S(s_t2), S(s_w)))
    a('s_mul_i32 %s, %s, %d' % (S(s_bX), S(s_t2), 28 * 1024))
    a('s_add_u32 %s, %s, %d' % (S(s_bX), S(s_bX), WS_H))
    a('s_lshl_b32 %s, %s, 11' % (S(s_bH), S(s_t2)))
    a('s_add_u32 %s, %s, %d' % (S(s_bH), S(s_bH), WS_ST))
    a('s_mul_i32 %s, %s, %d' % (S(s_bW), S(s_t2), 112 * 1024))
    a('s_lshl_b32 %s, %s, 13' % (S(s_t3), S(s_j)))
    a('s_add_u32 %s, %s, %s' % (S(s_bW), S(s_bW), S(s_t3)))
    a('s_add_u32 %s, %s, %d' % (S(s_bW), S(s_bW), WS_H1))
    a('s_lshr_b32 %s, %s, 1' % (S(s_t0), S(s_w)))
    a('s_add_u32 %s, %s, %s' % (S(s_t0), S(s_t0), S(s_t1)))
    a('s_mul_i32 %s, %s, %d' % (S(s_t0), S(s_t0), 8 * FS))
    a('s_add_u32 %s, %s, %d' % (S(s_t0), S(s_t0), FL2))
    NB = 3
    wf = [[R.alloc(4) for _ in range(2)] for _ in range(NB)]

    def rd(ks, half):
        out = []
        for u in range(2):
            t = 2 * half + u
            out += w1_read(ks, wf[ks % NB][u], [g.aW1[0][t], g.aW1[1][t]])
        return out
    for ks in range(NB - 1):
        a.seq(rd(ks, 0))
    g.stamp()
    g.poll(s_t0, 7, g.vFl)
    g.stamp()
    st = R.alloc(8)
    for i in range(4):
        a('buffer_load_dwordx2 %s, %s, %s, %s offen offset:%d sc1' %
          (V(st + 2 * i, 2), V(vS3 if i == 3 else vS0), S(sWS, 4), S(s_bH), 512 * i))
    hf = [R.alloc(4) for _ in range(28)]
    for ks in range(28):
        if ks and ks % 4 == 0:
            a('s_add_u32 %s, %s, 4096' % (S(s_bX), S(s_bX)))
        a('buffer_load_dwordx4 %s, %s, %s, %s offen offset:%d sc1' %
          (V(hf[ks], 4), V(vL16), S(sWS, 4), S(s_bX), (ks % 4) * 1024))
    acc = [R.alloc(16) for _ in range(4)]
    bx = R.alloc(4)
    C1, C3, sd = R.alloc(), R.alloc(), R.alloc()
    sc = []
    e = sc.append
    e('v_pk_add_f32 %s, %s, %s' % (V(st, 2), V(st, 2), V(st + 2, 2)))
    e('v_pk_add_f32 %s, %s, %s' % (V(st + 4, 2), V(st + 4, 2), V(st + 6, 2)))
    e('v_pk_add_f32 %s, %s, %s' % (V(st, 2), V(st, 2), V(st + 4, 2)))
    e('v_mov_b32 %s, %s' % (V(st + 2), V(st)))
    e('v_mov_b32 %s, %s' % (V(st + 3), V(st + 1)))
    e('v_permlane32_swap_b32 %s, %s' % (V(st), V(st + 2)))
    e('v_permlane32_swap_b32 %s, %s' % (V(st + 1), V(st + 3)))
    e('v_pk_add_f32 %s, %s, %s' % (V(st, 2), V(st, 2), V(st + 2, 2)))
    e('v_mul_f32 %s, %s, %s' % (V(st), f32(-1.0 / 448), V(st)))
    e('v_mul_f32 %s, %s, %s' % (V(st + 1), f32(1.0 / 448), V(st + 1)))
    e('v_fma_f32 %s, -%s, %s, %s' % (V(st + 1), V(st), V(st), V(st + 1)))
    e('v_max_f32 %s, 0, %s' % (V(st + 1), V(st + 1)))
    e('v_add_f32 %s, %s, %s' % (V(st + 1), f32(1e-5), V(st + 1)))
    e('v_rsq_f32 %s, %s' % (V(st + 2), V(st + 1)))
    e('v_cvt_pk_bf16_f32 %s, %s, %s' % (V(bx), V(st), V(st)))
    e('v_mul_f32 %s, %s, %s' % (V(sd), V(st + 1), V(st + 2)))
    e('v_lshlrev_b32 %s, 16, %s' % (V(st + 3), V(bx)))
    e('v_sub_f32 %s, %s, %s' % (V(st + 3), V(st), V(st + 3)))
    e('v_cvt_pk_bf16_f32 %s, %s, %s' % (V(bx + 1), V(st + 3), V(sd)))
    e('v_and_b32 %s, 0xffff0000, %s' % (V(st + 3), V(bx + 1)))
    e('v_sub_f32 %s, %s, %s' % (V(st + 3), V(sd), V(st + 3)))
    e('v_cvt_pk_bf16_f32 %s, %s, %s' % (V(bx + 2), V(st + 3), V(g.vZero)))
    e('v_mov_b32 %s, 0' % V(bx + 3))
    kk = 2 * math.sqrt(2 / math.pi) * math.log2(math.e)
    e('v_mul_f32 %s, %s, %s' % (V(C1), f32(-kk), V(st + 2)))
    e('v_mul_f32 %s, %s, %s' % (V(C3), V(st + 2), V(st + 2)))
    e('v_mul_f32 %s, %s, %s' % (V(C3), V(C3), V(C1)))
    e('v_mul_f32 %s, %s, %s' % (V(C3), f32(0.044715), V(C3)))
    a.seq(sc)
    for t in range(4):
        a(MF32 % (V(acc[t], 16), A(A_EX + 4 * t, 4), V(bx, 4), '0'))

    def rd2(n):
        half, ks = divmod(n, 28)
        out = []
        for u in range(2):
            t = 2 * half + u
            out += w1_read(ks, wf[n % NB][u], [g.aW1[0][t], g.aW1[1][t]])
        return out

    def steps(lo, hi):
        main = []
        for n in range(lo, hi):
            half, ks = divmod(n, 28)
            r = rd2(n + NB - 1) if n + NB - 1 < 56 else []
            for u in range(2):
                main.append(MF32 % (V(acc[2 * half + u], 16), V(wf[n % NB][u], 4), V(hf[ks], 4),
                                    V(acc[2 * half + u], 16)))
                main += r[2 * u:2 * u + 2]
        return main
    a.seq(steps(0, 28))
    g.stamp()
    tmp = st

    def gelu_half(half):
        code = []
        for u in range(2):
            t = 2 * half + u
            code += gelu_code(g, acc[t], (C1, C3, sd), tmp, acc[t])
            for s in range(2):
                code.append(Ins('buffer_store_dwordx4 %s, %s, %s, %s offen offset:%d sc1' %
                                (V(acc[t] + 4 * s, 4), V(vL16), S(sWS, 4), S(s_bW), (2 * u + s) * 1024), 'pub'))
        code.append('s_add_u32 %s, %s, 4096' % (S(s_bW), S(s_bW)))
        return code
    m1 = steps(28, 56)
    a.seq(weave(m1, gelu_half(0), 6, len(m1) - 12))
    a('s_lshr_b32 %s, %s, 1' % (S(s_t0), S(s_rl)))
    a('s_lshl_b32 %s, %s, 5' % (S(s_t0), S(s_t0)))
    a('s_mul_i32 %s, %s, %d' % (S(s_bH), S(s_t0), FS))
    a('s_add_u32 %s, %s, %d' % (S(s_bH), S(s_bH), FL3))
    a('s_mul_i32 %s, %s, %d' % (S(s_t0), S(s_j), FS))
    a('s_add_u32 %s, %s, %s' % (S(s_bX), S(s_bH), S(s_t0)))
    g.stamp()
    g1 = gelu_half(1)
    cut = g.o.get('f0cut', 40)
    a.seq(g1[:cut])
    a.wait_vm()
    a.barrier()
    g.flag_store(s_bX)
    a.seq(g1[cut:])
    g.stamp()
    a('s_add_u32 %s, %s, %d' % (S(s_bX), S(s_bX), 16 * FS))
    for x in hf:
        R.release(x, 4)
    for x in acc:
        R.release(x, 16)
    for x in wf:
        R.release(x[0], 4); R.release(x[1], 4)
    R.release(st, 8); R.release(bx, 4)
    for r_ in (C1, C3, sd, vS0, vS3, t0):
        R.release(r_)
    for k in range(2):
        for t in range(4):
            R.release(g.aW1[k][t])
    a.wait_vm()
    a.barrier()
    g.flag_store(s_bX)
    g.stamp()


def p4(g):
    a, R = g.a, g.R
    vL, vL16 = g.vL, g.vL16
    if g.w2done < 28:
        for x in w2_steps(g, g.w2done, 28):
            a.seq(x)
    t0, t1 = R.alloc(), R.alloc()
    a('v_and_b32 %s, 15, %s' % (V(t0), V(vL)))
    a('v_mul_u32_u24 %s, 144, %s' % (V(t0), V(t0)))
    a('v_lshrrev_b32 %s, 4, %s' % (V(t1), V(vL)))
    a('v_lshl_add_u32 %s, %s, 3, %s' % (V(t0), V(t1), V(t0)))
    a('s_mul_i32 %s, %s, %d' % (S(s_t0), S(s_w), 16 * 144))
    a('s_add_u32 %s, %s, %d' % (S(s_t0), S(s_t0), L_HT))
    a('v_add_u32 %s, %s, %s' % (V(t0), S(s_t0), V(t0)))
    for t in range(4):
        a('ds_write_b64 %s, %s offset:%d' % (V(t0), V(g.vXr + 2 * t, 2), 32 * t))
    a('s_mul_i32 %s, %s, %d' % (S(s_bW), S(s_rl), 2 * 112 * 1024))
    a('s_lshl_b32 %s, %s, 10' % (S(s_t0), S(s_w)))
    a('s_add_u32 %s, %s, %s' % (S(s_bW), S(s_bW), S(s_t0)))
    a('s_add_u32 %s, %s, %d' % (S(s_bW), S(s_bW), WS_H1))
    acc = [[R.alloc(16) for _ in range(2)] for _ in range(2)]
    NF = 38
    fr = sorted(R.alloc(4) for _ in range(NF))
    order = [(half, mt, jj) for half in range(2) for mt in range(2) for jj in range(14)]

    def load(n):
        half, mt, jj = order[n]
        off = mt * 112 * 1024 + (8 * jj + 4 * half) * 1024
        return ['s_add_u32 %s, %s, %d' % (S(s_t0), S(s_bW), off),
                'buffer_load_dwordx4 %s, %s, %s, %s offen sc1' % (V(fr[n % NF], 4), V(vL16), S(sWS, 4), S(s_t0))]

    def mm(n):
        half, mt, jj = order[n]
        k = 2 * jj + half
        first = half == 0 and jj == 0
        return [MF32 % (V(acc[mt][u], 16), A(8 * k + 4 * u, 4), V(fr[n % NF], 4), '0' if first else V(acc[mt][u], 16))
                for u in range(2)]
    a.wait_lg()
    g.stamp()
    g.poll(s_bH, 14, g.vFl)
    g.stamp()
    for n in range(28):
        a.seq(load(n))
    for n in range(14):
        a.seq(mm(n))
    a('s_add_u32 %s, %s, %d' % (S(s_bH), S(s_bH), 16 * FS))
    a.fence()
    g.poll(s_bH, 14, g.vFl)
    g.stamp()
    main = []
    for n in range(14, 28):
        main += mm(n)
    a.seq(weave(main, [load(n) for n in range(28, 54)], 0, 26))
    a.seq(load(54)); a.seq(load(55))
    aP = R.alloc()
    a('v_and_b32 %s, 31, %s' % (V(t0), V(vL)))
    a('v_mul_u32_u24 %s, %d, %s' % (V(t0), PITCH, V(t0)))
    a('v_lshrrev_b32 %s, 5, %s' % (V(t1), V(vL)))
    a('v_lshl_add_u32 %s, %s, 4, %s' % (V(t0), V(t1), V(t0)))
    a('s_mul_i32 %s, %s, %d' % (S(s_t0), S(s_w), 64 * PITCH))
    a('v_add_u32 %s, %s, %s' % (V(aP), S(s_t0), V(t0)))

    def pw(mt):
        return ['ds_write_b128 %s, %s offset:%d' % (V(aP), V(acc[mt][u] + 4 * gq, 4), mt * 32 * PITCH + u * 128 + gq * 32)
                for u in range(2) for gq in range(4)]
    for n in range(28, 42):
        a.seq(mm(n))
    main = []
    for n in range(42, 56):
        main += mm(n)
    a.seq(weave(main, pw(0), 8, 24))
    g.stamp()
    a.seq(pw(1))
    aR, aH, vO = R.alloc(), R.alloc(), R.alloc()
    a('v_lshrrev_b32 %s, 3, v0' % V(t0))
    a('v_and_b32 %s, 7, v0' % V(t1))
    a('v_mul_u32_u24 %s, %d, %s' % (V(aR), PITCH, V(t0)))
    a('v_lshl_add_u32 %s, %s, 5, %s' % (V(aR), V(t1), V(aR)))
    a('v_mul_u32_u24 %s, 144, %s' % (V(aH), V(t0)))
    a('v_lshl_add_u32 %s, %s, 4, %s' % (V(aH), V(t1), V(aH)))
    a('v_add_u32 %s, %d, %s' % (V(aH), L_HT, V(aH)))
    a('v_mul_u32_u24 %s, 896, %s' % (V(vO), V(t0)))
    a('v_lshl_add_u32 %s, %s, 4, %s' % (V(vO), V(t1), V(vO)))
    a('s_mul_i32 %s, %s, %d' % (S(s_t0), S(s_r), 64 * 896))
    a('s_lshl_b32 %s, %s, 7' % (S(s_t1), S(s_p)))
    a('s_add_u32 %s, %s, %s' % (S(s_t0), S(s_t0), S(s_t1)))
    a('s_add_u32 %s, %s, %d' % (S(s_t1), S(s_t0), 32 * 896))
    bfl = R_contig(fr, 30, 2)
    for i in range(4):
        a('v_lshlrev_b32 %s, 16, %s' % (V(bfl + 2 * i), V(g.vB2 + i)))
        a('v_and_b32 %s, 0xffff0000, %s' % (V(bfl + 2 * i + 1), V(g.vB2 + i)))
    a.barrier()
    pr = [[[fr[2 + i * 9 + w * 2 + k] for k in range(2)] for w in range(4)] for i in range(2)]
    hr = [fr[2 + i * 9 + 8] for i in range(2)]
    for i in range(2):
        a('ds_read_b128 %s, %s offset:%d' % (V(hr[i], 4), V(aH), i * 32 * 144))
        for w in range(4):
            for k in range(2):
                a('ds_read_b128 %s, %s offset:%d' % (V(pr[i][w][k], 4), V(aR), w * 64 * PITCH + i * 32 * PITCH + k * 16))
    hx = [fr[20], fr[21]]
    for i in range(2):
        for k in range(2):
            for h in range(2):
                a('v_lshlrev_b32 %s, 16, %s' % (V(hx[k] + 2 * h), V(hr[i] + 2 * k + h)))
                a('v_and_b32 %s, 0xffff0000, %s' % (V(hx[k] + 2 * h + 1), V(hr[i] + 2 * k + h)))
            for h in range(2):
                a('v_pk_add_f32 %s, %s, %s' % (V(hx[k] + 2 * h, 2), V(hx[k] + 2 * h, 2), V(bfl + 4 * k + 2 * h, 2)))
        for w in range(4):
            for k in range(2):
                for h in range(2):
                    a('v_pk_add_f32 %s, %s, %s' %
                      (V(hx[k] + 2 * h, 2), V(hx[k] + 2 * h, 2), V(pr[i][w][k] + 2 * h, 2)))
        for k in range(2):
            for h in range(2):
                a('v_cvt_pk_bf16_f32 %s, %s, %s' % (V(hr[i] + 2 * k + h), V(hx[k] + 2 * h), V(hx[k] + 2 * h + 1)))
        a('buffer_store_dwordx4 %s, %s, %s, %s offen %s' %
          (V(hr[i], 4), V(vO), S(sOUT, 4), S(s_t1 if i else s_t0), ['', 'sc1', 'nt', 'sc1 nt'][g.o.get('ost', 0)]))
    g.stamp()


def R_contig(fr, i, n):
    for k in range(1, n):
        assert fr[i + k] == fr[i] + 4 * k
    return fr[i]


def rest(g):
    up = g.o.get('upto', 4)
    h1_window(g)
    p2(g)
    if up >= 3:
        h2_window(g)
        p3(g)
    if up >= 4:
        p4(g)
```

```python
import sys
import struct
from asmlib import *

KNAME = 'sequential_preLN__sliding_local_dilated__dense_activation_gelu__prompt_kernel'


def f32(x):
    return '0x%08x' % struct.unpack('<I', struct.pack('<f', x))[0]


WS_O = 0
WS_H = 256 * 1024
WS_ST = 480 * 1024
WS_FL = 496 * 1024
WS_H1 = 512 * 1024
WS_TS = 1536 * 1024
FS = 64
FL1 = WS_FL
FL2 = WS_FL + 4 * 1024
FL3 = WS_FL + 8 * 1024

SLOT = 34816
XOFF = 24576
L_WO = 3 * SLOT
L_ST = L_WO + 57344
LDS_BYTES = 163840
L_W1 = 0
L_STG = 114688
STG_W = 11 * 1024
L_EX = 159744

sX, sWQ, sWO, sW1, sW2, sB1, sB2, sOUT, sWS = 8, 12, 16, 20, 24, 28, 32, 36, 40
sPTR = 44
s_r, s_rl, s_p, s_w = 64, 65, 66, 67
s_tag = 68
s_mW0, s_mW1 = 70, 72
s_kc, s_oW, s_oX, s_oH = 74, 75, 76, 77
s_bX, s_bH, s_bW = 78, 79, 80
s_m0W, s_m0X, s_m0H = 81, 82, 83
s_M1, s_M2, s_M3, s_Q3 = 84, 86, 88, 90
s_t0, s_t1, s_t2, s_t3 = 92, 93, 94, 95
s_j = 96
s_cnt = 97
s_hi = 98
s_ts = 4


class Gen:
    def __init__(self, opt):
        self.o = opt
        self.a = Asm()
        self.R = Regs(256)
        self.nts = 0

    def srd(self, d, ptr, size):
        a = self.a
        a('s_mov_b32 %s, %s' % (S(d), S(ptr)))
        a('s_mov_b32 %s, %s' % (S(d + 1), S(ptr + 1)))
        a('s_mov_b32 %s, %d' % (S(d + 2), size))
        a('s_mov_b32 %s, 0x20000' % S(d + 3))

    def stamp(self):
        if not self.o.get('ts'):
            return
        a = self.a
        a.wait_lg()
        a('s_memrealtime %s' % S(s_ts, 2))
        a.wait_lg()
        a('v_writelane_b32 %s, %s, %d' % (V(self.vTS), S(s_ts), self.nts))
        self.nts += 1

    def dump_stamps(self):
        if not self.o.get('ts'):
            return
        a = self.a
        t = self.R.alloc()
        a('s_lshr_b32 %s, s2, 3' % S(s_t0))
        a('s_lshl_b32 %s, %s, 2' % (S(s_t0), S(s_t0)))
        a('s_add_u32 %s, %s, %s' % (S(s_t0), S(s_t0), S(s_w)))
        a('s_lshl_b32 %s, %s, 8' % (S(s_t0), S(s_t0)))
        a('s_add_u32 %s, %s, %d' % (S(s_t0), S(s_t0), WS_TS))
        a('v_lshrrev_b32 %s, 2, %s' % (V(t), V(self.vL16)))
        a('buffer_store_dword %s, %s, %s, %s offen' % (V(self.vTS), V(t), S(sWS, 4), S(s_t0)))
        self.R.release(t)

    def flag_store(self, soff):
        a = self.a
        L = a.newlabel('Lfs')
        a('s_cmp_lg_u32 %s, 0' % S(s_w))
        a('s_cbranch_scc1 %s' % L)
        a('s_mov_b64 exec, 1')
        n = len(a.vmq)
        a('buffer_store_dwordx2 %s, %s, %s, %s offen sc1' % (V(self.vTag, 2), V(self.vZero), S(sWS, 4), S(soff)))
        a('s_mov_b64 exec, -1')
        a.label(L)
        a.vmq = a.vmq[:n]
        self.flag_pending = True

    def poll(self, soff, nflags, vaddr):
        a = self.a
        L = a.newlabel('Lpoll')
        Ld = a.newlabel('Lpolld')
        t = self.R.alloc(2)
        a.force_wait('vmcnt(0)')
        a('s_mov_b32 %s, 0' % S(s_cnt))
        a('s_mov_b64 exec, %s' % hex((1 << nflags) - 1))
        a.label(L)
        a('buffer_load_dwordx2 %s, %s, %s, %s offen sc1' % (V(t, 2), V(vaddr), S(sWS, 4), S(soff)))
        a('s_add_u32 %s, %s, 1' % (S(s_cnt), S(s_cnt)))
        a('s_cmp_gt_u32 %s, 0x40000' % S(s_cnt))
        a('s_cbranch_scc1 %s' % Ld)
        a.force_wait('vmcnt(0)')
        a('v_cmp_ne_u64 vcc, %s, %s' % (S(s_tag, 2), V(t, 2)))
        a('s_nop 1')
        a('s_cbranch_vccnz %s' % L)
        a.label(Ld)
        a.force_wait('vmcnt(0)')
        a('s_mov_b64 exec, -1')
        self.R.release(t, 2)

    def prologue(self):
        a, R = self.a, self.R
        R.alloc()
        a('s_cmp_ge_u32 s2, 256')
        a('s_cbranch_scc1 Lend')
        a('s_load_dwordx16 %s, s[0:1], 0' % S(sPTR, 16))
        a('s_load_dwordx2 %s, s[0:1], 64' % S(60, 2))
        a('s_load_dwordx2 %s, s[0:1], 80' % S(62, 2))
        self.vL = vL = R.alloc()
        self.vL16 = vL16 = R.alloc()
        self.vZero = R.alloc()
        self.vTag = R.alloc(2)
        if self.o.get('ts'):
            self.vTS = R.alloc()
            a('v_mov_b32 %s, 0' % V(self.vTS))
        t0, t1, t2, t3 = [R.alloc() for _ in range(4)]
        a('v_lshrrev_b32 %s, 6, v0' % V(t0))
        a('v_and_b32 %s, 63, v0' % V(vL))
        a('v_readfirstlane_b32 %s, %s' % (S(s_w), V(t0)))
        a('v_lshlrev_b32 %s, 4, %s' % (V(vL16), V(vL)))
        a('v_mov_b32 %s, 0' % V(self.vZero))
        a('s_lshr_b32 %s, s2, 3' % S(s_t0))
        a('s_and_b32 %s, %s, 3' % (S(s_rl), S(s_t0)))
        a('s_lshr_b32 %s, %s, 2' % (S(s_p), S(s_t0)))
        a('s_and_b32 %s, s2, 7' % S(s_t1))
        a('s_lshl_b32 %s, %s, 2' % (S(s_r), S(s_t1)))
        a('s_add_u32 %s, %s, %s' % (S(s_r), S(s_r), S(s_rl)))
        self.vWd = [R.alloc(), R.alloc()]
        self.vXd = [R.alloc(), R.alloc()]
        self.vXh = R.alloc()
        a('v_lshrrev_b32 %s, 3, %s' % (V(t0), V(vL)))
        a('v_and_b32 %s, 7, %s' % (V(t1), V(vL)))
        a('v_lshrrev_b32 %s, 4, %s' % (V(t2), V(vL)))
        a('s_lshl_b32 %s, %s, 4' % (S(s_t0), S(s_w)))
        a('v_add_u32 %s, %s, %s' % (V(t3), S(s_t0), V(t0)))
        u0, u1 = R.alloc(), R.alloc()
        a('v_and_b32 %s, 1, %s' % (V(u0), V(t2)))
        a('v_lshlrev_b32 %s, 1, %s' % (V(u0), V(u0)))
        a('v_xor_b32 %s, %s, %s' % (V(u0), V(u0), V(t1)))
        a('v_lshlrev_b32 %s, 4, %s' % (V(u0), V(u0)))
        a('v_mul_u32_u24 %s, 2688, %s' % (V(u1), V(t3)))
        a('v_add_u32 %s, %s, %s' % (V(self.vWd[0]), V(u1), V(u0)))
        a('v_xor_b32 %s, 64, %s' % (V(u0), V(u0)))
        a('v_add_u32 %s, %d, %s' % (V(u1), 8 * 2688, V(u1)))
        a('v_add_u32 %s, %s, %s' % (V(self.vWd[1]), V(u1), V(u0)))
        a('v_xor_b32 %s, %s, %s' % (V(u0), V(t2), V(t1)))
        a('v_lshlrev_b32 %s, 4, %s' % (V(u0), V(u0)))
        a('v_mul_u32_u24 %s, 896, %s' % (V(u1), V(t3)))
        a('v_add_u32 %s, %s, %s' % (V(self.vXd[0]), V(u1), V(u0)))
        a('v_xor_b32 %s, 64, %s' % (V(u0), V(u0)))
        a('v_add_u32 %s, %d, %s' % (V(u1), 8 * 896, V(u1)))
        a('v_add_u32 %s, %s, %s' % (V(self.vXd[1]), V(u1), V(u0)))
        a('s_lshl_b32 %s, %s, 1' % (S(s_t0), S(s_w)))
        a('v_add_u32 %s, %s, %s' % (V(u0), S(s_t0), V(t2)))
        a('v_and_b32 %s, 7, %s' % (V(u0), V(u0)))
        a('v_xor_b32 %s, %s, %s' % (V(u0), V(u0), V(t1)))
        a('v_lshlrev_b32 %s, 4, %s' % (V(u0), V(u0)))
        a('s_lshl_b32 %s, %s, 2' % (S(s_t0), S(s_w)))
        a('v_add_u32 %s, %s, %s' % (V(u1), S(s_t0), V(t0)))
        a('v_mul_u32_u24 %s, 896, %s' % (V(u1), V(u1)))
        a('v_add_u32 %s, %s, %s' % (V(self.vXh), V(u1), V(u0)))
        for rg, sm in ((0, s_mW0), (1, s_mW1)):
            m = 0
            for lane in range(64):
                g = ((lane >> 4) & 1) | (rg << 1)
                if ((lane & 7) ^ (g << 1)) != 7:
                    m |= 1 << lane
            a('s_mov_b32 %s, 0x%x' % (S(sm), m & 0xffffffff))
            a('s_mov_b32 %s, 0x%x' % (S(sm + 1), m >> 32))
        a('s_mul_i32 %s, %s, %d' % (S(s_bX), S(s_r), 64 * 896))
        a('s_sub_u32 %s, %s, %d' % (S(s_bH), S(s_bX), 16 * 896))
        a('s_max_i32 %s, %s, 0' % (S(s_bH), S(s_bH)))
        a('s_mul_i32 %s, %s, 112' % (S(s_bW), S(s_p)))
        a('s_mul_i32 %s, %s, 6144' % (S(s_m0W), S(s_w)))
        a('s_lshl_b32 %s, %s, 11' % (S(s_m0X), S(s_w)))
        a('s_lshl_b32 %s, %s, 9' % (S(s_m0H), S(s_w)))
        a('s_lshl_b32 %s, %s, 1' % (S(s_kc), S(s_rl)))
        a('s_add_u32 %s, %s, %s' % (S(s_kc), S(s_kc), S(s_p)))
        a('s_cmp_ge_u32 %s, 7' % S(s_kc))
        a('s_cselect_b32 %s, 7, 0' % S(s_t0))
        a('s_sub_u32 %s, %s, %s' % (S(s_kc), S(s_kc), S(s_t0)))
        if not self.o.get('rot', 1):
            a('s_mov_b32 %s, 0' % S(s_kc))
        for r_ in (t0, t1, t2, t3, u0, u1):
            R.release(r_)
        a.wait_lg()
        self.srd(sX, sPTR + 0, 2048 * 896)
        self.srd(sWQ, sPTR + 2, 448 * 2688)
        self.stamp()

    def late_setup(self):
        a, R = self.a, self.R
        self.srd(sWO, sPTR + 4, 448 * 896)
        self.srd(sW1, sPTR + 8, 448 * 3584)
        self.srd(sB1, sPTR + 10, 1792 * 2)
        self.srd(sW2, sPTR + 12, 1792 * 896)
        self.srd(sB2, sPTR + 14, 448 * 2)
        self.srd(sOUT, 60, 2048 * 896)
        a('s_and_b32 %s, s2, 7' % S(s_t0))
        a('s_lshl_b32 %s, %s, 21' % (S(s_t0), S(s_t0)))
        a('s_add_u32 %s, s62, %s' % (S(sWS), S(s_t0)))
        a('s_addc_u32 %s, s63, 0' % S(sWS + 1))
        a('s_mov_b32 %s, %d' % (S(sWS + 2), 2 << 20))
        a('s_mov_b32 %s, 0x20000' % S(sWS + 3))
        a('s_lshr_b32 %s, %s, 1' % (S(s_t0), S(s_rl)))
        a('s_mul_i32 %s, %s, %d' % (S(s_t0), S(s_t0), 32 * FS))
        a('s_add_u32 %s, %s, %d' % (S(s_t0), S(s_t0), FL3 + 16 * FS))
        a('s_buffer_load_dwordx2 %s, %s, %s' % (S(s_tag, 2), S(sWS, 4), S(s_t0)))
        a('s_and_b32 %s, %s, 1' % (S(s_j), S(s_rl)))
        a('s_mul_i32 %s, %s, 7' % (S(s_j), S(s_j)))
        a('s_add_u32 %s, %s, %s' % (S(s_j), S(s_j), S(s_p)))
        for sm, k in ((s_M1, 1), (s_M2, 2), (s_M3, 3)):
            m = sum(1 << l for l in range(32) if (l & 3) == k)
            a('s_mov_b32 %s, 0x%x' % (S(sm), m))
            a('s_mov_b32 %s, 0x%x' % (S(sm + 1), m))
        a('s_mov_b32 %s, 0' % S(s_Q3))
        a('s_mov_b32 %s, 0xffff0000' % S(s_Q3 + 1))
        a('s_mov_b32 %s, 0' % S(s_hi))
        a('s_mov_b32 %s, -1' % S(s_hi + 1))
        self.vFl = R.alloc()
        a('v_mul_u32_u24 %s, %d, %s' % (V(self.vFl), FS, V(self.vL)))

    def tag_finish(self):
        a = self.a
        a('s_mul_i32 %s, %s, 0x9E3779B1' % (S(s_tag), S(s_tag)))
        a('s_add_u32 %s, %s, 0x7F4A7C15' % (S(s_tag), S(s_tag)))
        a('s_mul_i32 %s, %s, 0x85EBCA6B' % (S(s_tag + 1), S(s_tag + 1)))
        a('s_add_u32 %s, %s, 0x165667B1' % (S(s_tag + 1), S(s_tag + 1)))
        a('v_mov_b32 %s, %s' % (V(self.vTag), S(s_tag)))
        a('v_mov_b32 %s, %s' % (V(self.vTag + 1), S(s_tag + 1)))

    def p1_dma(self, i):
        sl = (i % 3) * SLOT
        tag = 'c%d' % i
        pre = ['s_mul_i32 %s, %s, %d' % (S(s_oW), S(s_kc), 64 * 2688),
               's_add_u32 %s, %s, %s' % (S(s_oW), S(s_oW), S(s_bW)),
               's_lshl_b32 %s, %s, 7' % (S(s_t3), S(s_kc)),
               's_add_u32 %s, %s, %s' % (S(s_oX), S(s_t3), S(s_bX)),
               's_add_u32 %s, %s, %s' % (S(s_oH), S(s_t3), S(s_bH)),
               's_add_u32 %s, %s, 1' % (S(s_kc), S(s_kc)),
               's_cmp_eq_u32 %s, 7' % S(s_kc),
               's_cselect_b32 %s, 0, %s' % (S(s_kc), S(s_kc))]
        gx = list(pre)
        for rg in range(2):
            gx.append('s_add_u32 m0, %s, %d' % (S(s_m0X), sl + XOFF + 2048 + rg * 1024))
            gx.append(Ins('buffer_load_dwordx4 %s, %s, %s offen lds' % (V(self.vXd[rg]), S(sX, 4), S(s_oX)), tag))
        gx.append('s_mov_b32 exec_hi, 0')
        gx.append('s_add_u32 m0, %s, %d' % (S(s_m0H), sl + XOFF))
        gx.append(Ins('buffer_load_dwordx4 %s, %s, %s offen lds' % (V(self.vXh), S(sX, 4), S(s_oH)), tag))
        gx.append('s_mov_b32 exec_hi, -1')
        groups = [gx]
        for rg, sm in ((0, s_mW0), (1, s_mW1)):
            g = ['s_mov_b64 exec, %s' % S(sm, 2)]
            for mat in range(3):
                g.append('s_add_u32 m0, %s, %d' % (S(s_m0W), sl + mat * 2048 + rg * 1024 - mat * 896))
                g.append(Ins('buffer_load_dwordx4 %s, %s, %s offen offset:%d lds' %
                             (V(self.vWd[rg]), S(sWQ, 4), S(s_oW), mat * 896), tag))
            g.append('s_mov_b64 exec, -1')
            groups.append(g)
        return groups

    def p1_setup(self):
        a, R = self.a, self.R
        vL = self.vL
        t0, t1, t2, t3, t4 = [R.alloc() for _ in range(5)]
        self.vOnes = vOnes = R.alloc(4)
        for i in range(4):
            a('v_mov_b32 %s, 0x3f803f80' % V(vOnes + i))
        a('v_min_u32 %s, 191, v0' % V(t0))
        a('v_bfe_u32 %s, %s, 1, 1' % (V(t1), V(t0)))
        a('v_bfe_u32 %s, %s, 3, 1' % (V(t2), V(t0)))
        a('v_lshl_or_b32 %s, %s, 1, %s' % (V(t1), V(t2), V(t1)))
        a('v_lshlrev_b32 %s, 5, %s' % (V(t1), V(t1)))
        a('v_xor_b32 %s, 112, %s' % (V(t1), V(t1)))
        a('v_lshl_add_u32 %s, %s, 7, %s' % (V(t0), V(t0), V(t1)))
        a('ds_write_b128 %s, %s' % (V(t0), V(vOnes, 4)))
        a('ds_write_b128 %s, %s offset:%d' % (V(t0), V(vOnes, 4), SLOT))
        a('v_add_u32 %s, %d, %s' % (V(t0), 2 * SLOT, V(t0)))
        a('ds_write_b128 %s, %s' % (V(t0), V(vOnes, 4)))
        self.aW = [[R.alloc() for _ in range(2)] for _ in range(3)]
        self.aX0 = [[R.alloc() for _ in range(2)] for _ in range(3)]
        self.aX1 = [[R.alloc() for _ in range(2)] for _ in range(3)]
        a('v_bfe_u32 %s, %s, 2, 2' % (V(t0), V(vL)))
        a('v_bfe_u32 %s, %s, 4, 1' % (V(t1), V(vL)))
        a('v_lshl_add_u32 %s, %s, 3, %s' % (V(t2), V(t1), V(t0)))
        a('v_lshlrev_b32 %s, 7, %s' % (V(t2), V(t2)))
        a('v_lshrrev_b32 %s, 5, %s' % (V(t3), V(vL)))
        a('v_mul_u32_u24 %s, 6144, %s' % (V(t3), V(t3)))
        a('v_add_u32 %s, %s, %s' % (V(t2), V(t2), V(t3)))
        a('v_bfe_u32 %s, %s, 3, 1' % (V(t0), V(vL)))
        a('v_lshl_or_b32 %s, %s, 1, %s' % (V(t0), V(t1), V(t0)))
        a('v_lshlrev_b32 %s, 5, %s' % (V(t0), V(t0)))
        a('s_and_b32 %s, %s, 1' % (S(s_t0), S(s_w)))
        a('s_mul_i32 %s, %s, 56' % (S(s_t0), S(s_t0)))
        a('v_and_b32 %s, 3, %s' % (V(t1), V(vL)))
        a('v_lshl_add_u32 %s, %s, 3, %s' % (V(t1), V(t1), S(s_t0)))
        a('v_xor_b32 %s, %s, %s' % (V(t3), V(t1), V(t0)))
        a('v_add_u32 %s, %s, %s' % (V(self.aW[0][0]), V(t2), V(t3)))
        a('v_add_u32 %s, 32, %s' % (V(t1), V(t1)))
        a('v_mov_b32 %s, 112' % V(t4))
        a('v_cndmask_b32 %s, %s, %s, %s' % (V(t1), V(t1), V(t4), S(s_M3, 2)))
        a('v_xor_b32 %s, %s, %s' % (V(t3), V(t1), V(t0)))
        a('v_add_u32 %s, %s, %s' % (V(self.aW[0][1]), V(t2), V(t3)))
        a('v_and_b32 %s, 15, %s' % (V(t0), V(vL)))
        a('v_lshrrev_b32 %s, 4, %s' % (V(t1), V(vL)))
        a('v_lshrrev_b32 %s, 1, %s' % (V(t2), V(t0)))
        a('v_xor_b32 %s, %s, %s' % (V(t1), V(t1), V(t2)))
        a('v_lshlrev_b32 %s, 4, %s' % (V(t1), V(t1)))
        a('v_lshl_add_u32 %s, %s, 7, %s' % (V(t1), V(t0), V(t1)))
        a('s_lshr_b32 %s, %s, 1' % (S(s_t0), S(s_w)))
        a('s_lshl_b32 %s, %s, 12' % (S(s_t0), S(s_t0)))
        a('s_add_u32 %s, %s, %d' % (S(s_t0), S(s_t0), XOFF))
        a('v_add_u32 %s, %s, %s' % (V(self.aX1[0][0]), S(s_t0), V(t1)))
        a('v_xor_b32 %s, 64, %s' % (V(self.aX1[0][1]), V(self.aX1[0][0])))
        a('v_cmp_eq_u32 vcc, 0, %s' % V(t0))
        for s in range(2):
            a('v_cndmask_b32 %s, %s, %s, vcc' % (V(self.aX0[0][s]), V(self.aX1[0][s]), V(t4)))
        for sl in (1, 2):
            for arr in (self.aW, self.aX0, self.aX1):
                for k in range(2):
                    a('v_add_u32 %s, %d, %s' % (V(arr[sl][k]), sl * SLOT, V(arr[0][k])))
        self.vBp1, self.vBp, self.vBc = R.alloc(4), R.alloc(4), R.alloc(4)
        a('v_lshrrev_b32 %s, 4, %s' % (V(t1), V(vL)))
        a('v_lshlrev_b32 %s, 2, %s' % (V(t1), V(t1)))
        a('v_sub_u32 %s, %s, %s' % (V(t1), V(t0), V(t1)))
        a('v_mov_b32 %s, %s' % (V(t4), f32(-1e30)))
        a('s_lshr_b32 %s, %s, 1' % (S(s_t0), S(s_w)))
        a('s_or_b32 %s, %s, %s' % (S(s_t0), S(s_t0), S(s_r)))
        a('s_cmp_eq_u32 %s, 0' % S(s_t0))
        a('s_cselect_b32 %s, %s, 0' % (S(s_t0), f32(-1e30)))
        for base, add in ((self.vBp, 16), (self.vBc, 0)):
            for r in range(4):
                a('v_add_u32 %s, %d, %s' % (V(t2), add - r, V(t1)))
                a('v_and_b32 %s, 0xfffffff1, %s' % (V(t2), V(t2)))
                a('v_cmp_eq_u32 vcc, 0, %s' % V(t2))
                a('v_cndmask_b32 %s, %s, %s, vcc' % (V(base + r), V(t4), V(self.vZero)))
        for r in range(4):
            a('v_min_f32 %s, %s, %s' % (V(self.vBp1 + r), S(s_t0), V(self.vBp + r)))
        for r_ in (t0, t1, t2, t3, t4):
            R.release(r_)

    def p1_reads(self, i, s, W, X):
        sl = i % 3
        out = []
        out.append('ds_read_b128 %s, %s' % (V(X[0], 4), V(self.aX0[sl][s])))
        out.append('ds_read_b128 %s, %s offset:2048' % (V(X[1], 4), V(self.aX1[sl][s])))
        out.append('ds_read_b128 %s, %s offset:4096' % (V(X[2], 4), V(self.aX1[sl][s])))
        for mat in range(3):
            for t in range(2):
                for sec in range(2):
                    out.append('ds_read_b64_tr_b16 %s, %s offset:%d' %
                               (V(W[mat][t] + 2 * sec, 2), V(self.aW[sl][t]), s * 12288 + mat * 2048 + sec * 512))
        return out

    def p1_mfma(self, first, W, X):
        def mm(d, x, y):
            return 'v_mfma_f32_16x16x32_bf16 %s, %s, %s, %s' % (V(d, 4), V(x, 4), V(y, 4), '0' if first else V(d, 4))
        out = []
        for j in range(3):
            out.append(mm(self.XX[j], X[j], X[j]))
        for t in range(2):
            for j in range(3):
                out.append(mm(self.Q[j][t], W[0][t], X[j]))
        for t in range(2):
            for j in range(3):
                out.append(mm(self.K[j][t], W[1][t], X[j]))
        for t in range(2):
            for j in range(3):
                out.append(mm(self.Vv[j][t], X[j], W[2][t]))
        return out

    def wo_dma(self):
        out = []
        for i in range(14):
            out.append(['s_add_u32 m0, %s, %d' % (S(s_m0W), L_WO + i * 1024),
                        Ins('buffer_load_dwordx4 %s, %s, %s offen lds' % (V(self.vWOd), S(sWO, 4), S(s_oW)), 'wo'),
                        's_add_u32 %s, %s, %d' % (S(s_oW), S(s_oW), 8 * 896)])
        return out

    def p1(self):
        a, R = self.a, self.R
        for g in self.p1_dma(0):
            a.seq(g)
        self.late_setup()
        for g in self.p1_dma(1):
            a.seq(g)
        self.p1_setup()
        self.extra_prefetch()
        self.Q = [[R.alloc(4) for _ in range(2)] for _ in range(3)]
        self.K = [[R.alloc(4) for _ in range(2)] for _ in range(3)]
        self.Vv = [[R.alloc(4) for _ in range(2)] for _ in range(3)]
        self.XX = [R.alloc(4) for _ in range(3)]
        W = [[[R.alloc(4) for _ in range(2)] for _ in range(3)] for _ in range(2)]
        X = [[R.alloc(4) for _ in range(3)] for _ in range(2)]
        self.vWOd = R.alloc()
        t0, t1 = R.alloc(), R.alloc()
        a('v_lshrrev_b32 %s, 4, %s' % (V(t0), V(self.vL)))
        a('v_lshlrev_b32 %s, 5, %s' % (V(t0), V(t0)))
        a('v_and_b32 %s, 0x70, %s' % (V(t1), V(self.vL16)))
        a('v_xor_b32 %s, %s, %s' % (V(t0), V(t0), V(t1)))
        a('v_lshrrev_b32 %s, 3, %s' % (V(t1), V(self.vL)))
        a('v_mul_u32_u24 %s, 896, %s' % (V(t1), V(t1)))
        a('v_add_u32 %s, %s, %s' % (V(self.vWOd), V(t0), V(t1)))
        R.release(t0)
        R.release(t1)
        wo = self.wo_dma()
        for i in range(7):
            a.wait_vm('c%d' % i)
            a.barrier()
            if i in (0, 6) or self.o.get('ts') == 2:
                self.stamp()
            a.seq(self.p1_reads(i, 0, W[0], X[0]))
            if i == 0:
                self.tag_finish()
            body = weave(self.p1_mfma(i == 0, W[0], X[0]), self.p1_reads(i, 1, W[1], X[1]), 0, 15)
            body += self.p1_mfma(False, W[1], X[1])
            if i + 2 < 7:
                fill = self.p1_dma(i + 2)
            elif i == 5:
                pre = ['s_mul_i32 %s, %s, %d' % (S(s_m0W), S(s_w), 14 * 1024),
                       's_min_u32 %s, %s, 6' % (S(s_t3), S(s_p)),
                       's_lshl_b32 %s, %s, 7' % (S(s_t3), S(s_t3)),
                       's_mul_i32 %s, %s, %d' % (S(s_oW), S(s_w), 14 * 8 * 896),
                       's_add_u32 %s, %s, %s' % (S(s_oW), S(s_oW), S(s_t3))]
                fill = [pre] + wo[:8]
            else:
                fill = []
            body = weave(body, fill, 4)
            a.seq(body)
        for s in range(2):
            for mat in range(3):
                for t in range(2):
                    R.release(W[s][mat][t], 4)
            for j in range(3):
                R.release(X[s][j], 4)
        for arr in (self.aW, self.aX0, self.aX1):
            for sl in range(3):
                for k in range(2):
                    R.release(arr[sl][k])
        for r_ in self.vWd + self.vXd + [self.vXh]:
            R.release(r_)
        self.stamp()
        self.p1_epilogue(wo[8:])

    def extra_prefetch(self):
        a, R = self.a, self.R
        self.vXr = R.alloc(8)
        t0, t1 = R.alloc(), R.alloc()
        a('v_and_b32 %s, 15, %s' % (V(t0), V(self.vL)))
        a('v_mul_u32_u24 %s, 896, %s' % (V(t0), V(t0)))
        a('v_lshrrev_b32 %s, 4, %s' % (V(t1), V(self.vL)))
        a('v_lshl_add_u32 %s, %s, 3, %s' % (V(t0), V(t1), V(t0)))
        a('s_min_u32 %s, %s, 6' % (S(s_t0), S(s_p)))
        a('s_lshl_b32 %s, %s, 7' % (S(s_t0), S(s_t0)))
        a('s_mul_i32 %s, %s, %d' % (S(s_t1), S(s_w), 16 * 896))
        a('s_add_u32 %s, %s, %s' % (S(s_t0), S(s_t0), S(s_t1)))
        a('s_add_u32 %s, %s, %s' % (S(s_t0), S(s_t0), S(s_bX)))
        for t in range(4):
            a('buffer_load_dwordx2 %s, %s, %s, %s offen offset:%d' %
              (V(self.vXr + 2 * t, 2), V(t0), S(sX, 4), S(s_t0), 32 * t), 'c1')
        if self.o.get('codepf', 1):
            a('s_getpc_b64 %s' % S(s_t2, 2))
            a('v_lshlrev_b32 %s, 7, v0' % V(t1))
            a('global_load_dword %s, %s, %s' % (V(t1), V(t1), S(s_t2, 2)), 'c1')
            self.pf_tmp = t1
        R.release(t0)
        if not self.o.get('codepf', 1):
            R.release(t1)

    def p1_epilogue(self, dmafill):
        a, R = self.a, self.R
        Q, K, Vv, XX = self.Q, self.K, self.Vv, self.XX
        if self.o.get('codepf', 1):
            R.release(self.pf_tmp)
        vL = self.vL
        code = []
        e = code.append
        aS_w, aS_t, aS_v = R.alloc(), R.alloc(), R.alloc()
        t0, t1 = R.alloc(), R.alloc()
        a('s_lshl_b32 %s, %s, 9' % (S(s_t0), S(s_w)))
        a('s_add_u32 %s, %s, %d' % (S(s_t0), S(s_t0), L_ST))
        a('v_and_b32 %s, 15, %s' % (V(t0), V(vL)))
        a('v_lshl_add_u32 %s, %s, 2, %s' % (V(aS_t), V(t0), S(s_t0)))
        a('v_and_b32 %s, 0x30, %s' % (V(t1), V(vL)))
        a('v_add_u32 %s, %s, %s' % (V(aS_v), S(s_t0), V(t1)))
        a('v_and_b32 %s, 3, %s' % (V(t0), V(vL)))
        a('v_lshl_add_u32 %s, %s, 2, %s' % (V(aS_w), V(t0), V(aS_v)))
        su = [R.alloc() for _ in range(3)]
        sq = [R.alloc() for _ in range(3)]
        for j in range(3):
            for dst, src in ((su[j], Vv[j][1]), (sq[j], XX[j])):
                e('v_cndmask_b32 %s, %s, %s, %s' % (V(dst), V(src), V(src + 1), S(s_M1, 2)))
                e('v_cndmask_b32 %s, %s, %s, %s' % (V(dst), V(dst), V(src + 2), S(s_M2, 2)))
                e('v_cndmask_b32 %s, %s, %s, %s' % (V(dst), V(dst), V(src + 3), S(s_M3, 2)))
        for row in range(3):
            for j in range(3):
                e('v_mov_b32_dpp %s, %s row_shr:%d row_mask:0x%x bank_mask:0xf' %
                  (V(sq[j]), V(sq[j]), 12 - 4 * row, 1 << row))
        inv = f32(1.0 / 448)
        for j in range(3):
            e('v_mul_f32 %s, %s, %s' % (V(su[j]), f32(-1.0 / 448), V(su[j])))
        for j in range(3):
            e('v_mul_f32 %s, %s, %s' % (V(sq[j]), inv, V(sq[j])))
        for j in range(3):
            e('v_fma_f32 %s, -%s, %s, %s' % (V(sq[j]), V(su[j]), V(su[j]), V(sq[j])))
        for j in range(3):
            e('v_max_f32 %s, 0, %s' % (V(sq[j]), V(sq[j])))
        for j in range(3):
            e('v_add_f32 %s, %s, %s' % (V(sq[j]), f32(1e-5), V(sq[j])))
        for j in range(3):
            e('v_rsq_f32 %s, %s' % (V(sq[j]), V(sq[j])))
        e('s_mov_b32 exec_lo, 0xf000f000')
        e('s_mov_b32 exec_hi, 0xf000f000')
        for j in range(3):
            e('ds_write2_b32 %s, %s, %s offset0:%d offset1:%d' % (V(aS_w), V(su[j]), V(sq[j]), j * 32, j * 32 + 16))
        e('s_mov_b64 exec, -1')
        e(('wait_lg',))
        sT = [R.alloc(2) for _ in range(3)]
        mV = [R.alloc(4) for _ in range(3)]
        rV = [R.alloc(4) for _ in range(3)]
        for j in (1, 2, 0):
            e('ds_read2_b32 %s, %s offset0:%d offset1:%d' % (V(sT[j], 2), V(aS_t), j * 32, j * 32 + 16))
        for j in range(3):
            e('ds_read_b128 %s, %s offset:%d' % (V(mV[j], 4), V(aS_v), j * 128))
            e('ds_read_b128 %s, %s offset:%d' % (V(rV[j], 4), V(aS_v), j * 128 + 64))
        cv = R.alloc(2)
        tm = R.alloc(2)
        for t in range(2):
            e('v_mov_b32 %s, %s' % (V(cv + t), V(Vv[0][t])))
            e('v_mov_b32 %s, %s' % (V(tm + t), V(Vv[0][t])))
        for t in range(2):
            e('v_permlane16_swap_b32 %s, %s' % (V(cv + t), V(tm + t)))
        for t in range(2):
            e('v_mov_b32 %s, %s' % (V(tm + t), V(cv + t)))
        for t in range(2):
            e('v_permlane32_swap_b32 %s, %s' % (V(cv + t), V(tm + t)))
        dp = 'row_newbcast:0 row_mask:0xf bank_mask:0xf'
        Qf = [None, R.alloc(4), R.alloc(4)]
        Kf = [R.alloc(4) for _ in range(3)]
        Vf = [R.alloc(6, 2) for _ in range(2)]
        for j in (1, 2):
            for t in range(2):
                for r in range(4):
                    e('v_fmac_f32_dpp %s, %s, %s %s' % (V(Q[j][t] + r), V(Q[0][t] + r), V(sT[j]), dp))
            for t in range(2):
                for h in range(2):
                    e('v_cvt_pk_bf16_f32 %s, %s, %s' % (V(Qf[j] + 2 * t + h), V(Q[j][t] + 2 * h), V(Q[j][t] + 2 * h + 1)))
            for h in range(2):
                e('v_cndmask_b32 %s, %s, %s, %s' % (V(Qf[j] + 2 + h), V(Qf[j] + 2 + h), V(self.vZero), S(s_Q3, 2)))
        for j in (1, 2, 0):
            for t in range(2):
                for r in range(4):
                    e('v_fmac_f32_dpp %s, %s, %s %s' % (V(K[j][t] + r), V(K[0][t] + r), V(sT[j]), dp))
            for t in range(2):
                for h in range(2):
                    e('v_pk_mul_f32 %s, %s, %s op_sel:[0,1] op_sel_hi:[1,1]' %
                      (V(K[j][t] + 2 * h, 2), V(K[j][t] + 2 * h, 2), V(sT[j], 2)))
            for t in range(2):
                for h in range(2):
                    e('v_cvt_pk_bf16_f32 %s, %s, %s' % (V(Kf[j] + 2 * t + h), V(K[j][t] + 2 * h), V(K[j][t] + 2 * h + 1)))
        Sg = [None, [R.alloc(4), R.alloc(4)], [R.alloc(4), R.alloc(4)]]
        mf = 'v_mfma_f32_16x16x32_bf16 %s, %s, %s, %s'
        e(mf % (V(Sg[2][0], 4), V(Kf[1], 4), V(Qf[2], 4), V(self.vBp, 4)))
        e(mf % (V(Sg[2][1], 4), V(Kf[2], 4), V(Qf[2], 4), V(self.vBc, 4)))
        e(mf % (V(Sg[1][1], 4), V(Kf[1], 4), V(Qf[1], 4), V(self.vBc, 4)))
        e(mf % (V(Sg[1][0], 4), V(Kf[0], 4), V(Qf[1], 4), V(self.vBp1, 4)))
        for j in range(3):
            for t in range(2):
                for h in range(2):
                    e('v_pk_fma_f32 %s, %s, %s, %s op_sel:[0,%d,0] op_sel_hi:[1,%d,1]' %
                      (V(Vv[j][t] + 2 * h, 2), V(mV[j] + 2 * h, 2), V(cv, 2), V(Vv[j][t] + 2 * h, 2), t, t))
            for t in range(2):
                for h in range(2):
                    e('v_pk_mul_f32 %s, %s, %s' % (V(Vv[j][t] + 2 * h, 2), V(Vv[j][t] + 2 * h, 2), V(rV[j] + 2 * h, 2)))
            for t in range(2):
                for h in range(2):
                    e('v_cvt_pk_bf16_f32 %s, %s, %s' %
                      (V(Vf[t] + 2 * j + h), V(Vv[j][t] + 2 * h), V(Vv[j][t] + 2 * h + 1)))
        import math
        cs = (28 ** -0.5) * math.log2(math.e)
        mx = [None, R.alloc(), R.alloc()]
        m2 = [None, R.alloc(), R.alloc()]
        cq = [None, R.alloc(), R.alloc()]
        for j in (2, 1):
            e('v_mul_f32 %s, %s, %s' % (V(cq[j]), f32(cs), V(sT[j] + 1)))
            p, c = Sg[j]
            e('v_max3_f32 %s, %s, %s, %s' % (V(mx[j]), V(p), V(p + 1), V(p + 2)))
            e('v_max3_f32 %s, %s, %s, %s' % (V(m2[j]), V(p + 3), V(c), V(c + 1)))
            e('v_max3_f32 %s, %s, %s, %s' % (V(mx[j]), V(mx[j]), V(c + 2), V(c + 3)))
            e('v_max_f32 %s, %s, %s' % (V(mx[j]), V(mx[j]), V(m2[j])))
        for sw in ('16', '32'):
            for j in (2, 1):
                e('v_mov_b32 %s, %s' % (V(m2[j]), V(mx[j])))
            for j in (2, 1):
                e('v_permlane%s_swap_b32 %s, %s' % (sw, V(mx[j]), V(m2[j])))
            for j in (2, 1):
                e('v_max_f32 %s, %s, %s' % (V(mx[j]), V(mx[j]), V(m2[j])))
        Pf = [None, R.alloc(4), R.alloc(4)]
        O = [None, [R.alloc(4) for _ in range(3)], [R.alloc(4) for _ in range(3)]]
        for j in (2, 1):
            e('v_mul_f32 %s, %s, %s' % (V(mx[j]), V(mx[j]), V(cq[j])))
            for x in Sg[j]:
                for r in range(4):
                    e('v_fma_f32 %s, %s, %s, -%s' % (V(x + r), V(x + r), V(cq[j]), V(mx[j])))
            for x in Sg[j]:
                for r in range(4):
                    e('v_exp_f32 %s, %s' % (V(x + r), V(x + r)))
            for k, x in enumerate(Sg[j]):
                for h in range(2):
                    e('v_cvt_pk_bf16_f32 %s, %s, %s' % (V(Pf[j] + 2 * k + h), V(x + 2 * h), V(x + 2 * h + 1)))
            e(mf % (V(O[j][2], 4), V(self.vOnes, 4), V(Pf[j], 4), '0'))
            for t in range(2):
                e(mf % (V(O[j][t], 4), V(Vf[t] + 2 * (j - 1), 4), V(Pf[j], 4), '0'))
        Of = [None, Qf[1], Qf[2]]
        e('s_lshr_b32 %s, %s, 1' % (S(s_t0), S(s_w)))
        e('s_lshl_b32 %s, %s, 1' % (S(s_t1), S(s_rl)))
        e('s_add_u32 %s, %s, %s' % (S(s_t0), S(s_t0), S(s_t1)))
        e('s_lshl_b32 %s, %s, 4' % (S(s_t0), S(s_t0)))
        e('s_add_u32 %s, %s, %s' % (S(s_t0), S(s_t0), S(s_p)))
        e('s_lshl_b32 %s, %s, 1' % (S(s_t0), S(s_t0)))
        e('s_and_b32 %s, %s, 1' % (S(s_t1), S(s_w)))
        e('s_add_u32 %s, %s, %s' % (S(s_t0), S(s_t0), S(s_t1)))
        e('s_lshl_b32 %s, %s, 10' % (S(s_t0), S(s_t0)))
        e('s_add_u32 %s, %s, %d' % (S(s_t1), S(s_t0), 16384))
        for j in (2, 1):
            e('v_rcp_f32 %s, %s' % (V(O[j][2]), V(O[j][2])))
            for t in range(2):
                for h in range(2):
                    e('v_pk_mul_f32 %s, %s, %s op_sel_hi:[1,0]' %
                      (V(O[j][t] + 2 * h, 2), V(O[j][t] + 2 * h, 2), V(O[j][2], 2)))
            for t in range(2):
                for h in range(2):
                    e('v_cvt_pk_bf16_f32 %s, %s, %s' % (V(Of[j] + 2 * t + h), V(O[j][t] + 2 * h), V(O[j][t] + 2 * h + 1)))
            for h in range(2):
                e('v_cndmask_b32 %s, %s, %s, %s' % (V(Of[j] + 2 + h), V(Of[j] + 2 + h), V(self.vZero), S(s_Q3, 2)))
            e(Ins('buffer_store_dwordx4 %s, %s, %s, %s offen sc1' %
                  (V(Of[j], 4), V(self.vL16), S(sWS, 4), S(s_t1 if j == 2 else s_t0)), 'pub'))
        cut = next(i for i, x in enumerate(code) if x == ('wait_lg',))
        a.seq(code[:cut] + weave(code[cut:], dmafill, 0, 80))
        for r_ in (aS_w, aS_t, aS_v, t0, t1) + tuple(su) + tuple(sq) + (mx[1], mx[2], m2[1], m2[2], cq[1], cq[2]):
            R.release(r_)
        for j in range(3):
            R.release(sT[j], 2); R.release(mV[j], 4); R.release(rV[j], 4); R.release(Kf[j], 4); R.release(XX[j], 4)
            for t in range(2):
                R.release(Q[j][t], 4); R.release(K[j][t], 4); R.release(Vv[j][t], 4)
        R.release(cv, 2); R.release(tm, 2)
        for j in (1, 2):
            R.release(Pf[j], 4)
            for x in Sg[j] + O[j]:
                R.release(x, 4)
        for t in range(2):
            R.release(Vf[t], 6)
        for x in (self.vBp1, self.vBp, self.vBc):
            R.release(x, 4)
        R.release(self.vWOd)
        self.Of = Of
        self.stamp()

    def build(self):
        a = self.a
        self.prologue()
        self.p1()
        a.wait_vm()
        a.barrier()
        for j in (1, 2):
            self.R.release(self.Of[j], 4)
        a('s_lshl_b32 %s, %s, 3' % (S(s_t0), S(s_rl)))
        a('s_add_u32 %s, %s, %s' % (S(s_t0), S(s_t0), S(s_p)))
        a('s_mul_i32 %s, %s, %d' % (S(s_t0), S(s_t0), FS))
        a('s_add_u32 %s, %s, %d' % (S(s_t0), S(s_t0), FL1))
        self.flag_store(s_t0)
        self.stamp()
        if self.o.get('upto', 4) >= 2:
            from gen2 import rest
            rest(self)
        a.label('Lfin')
        a.fence()
        self.dump_stamps()
        a.label('Lend')
        a('s_endpgm')
        return self.wrap()

    def wrap(self):
        hdr = open('cdna_kernels/' + KNAME[:-7] + '.s.ref').read().split('\n')
        top = [l for l in hdr if l.startswith(';') and '@launch' not in l][:12]
        s = '\n'.join(top) + '\n'
        s += '; @launch grid=(256,1,1) block=(256,1,1) lds=%d\n' % LDS_BYTES
        s += '.amdgcn_target "amdgcn-amd-amdhsa--gfx950"\n.text\n.globl %s\n.p2align 8\n.type %s,@function\n%s:\n' % (
            KNAME, KNAME, KNAME)
        s += self.a.text()
        s += '.p2align 8\n.fill 8192, 4, 0xbf800000\n' if self.o.get('codepf', 1) else ''
        s += '''.section .rodata,"a"
.p2align 6
.amdhsa_kernel %s
  .amdhsa_next_free_vgpr 512
  .amdhsa_next_free_sgpr 102
  .amdhsa_accum_offset 256
  .amdhsa_group_segment_fixed_size 0
  .amdhsa_kernarg_size 88
  .amdhsa_user_sgpr_count 2
  .amdhsa_user_sgpr_kernarg_segment_ptr 1
  .amdhsa_system_sgpr_workgroup_id_x 1
.end_amdhsa_kernel
''' % KNAME
        return s


if __name__ == '__main__':
    opt = {}
    out = 'k.s'
    for arg in sys.argv[1:]:
        if '=' in arg:
            k, v = arg.split('=')
            opt[k] = int(v)
        else:
            out = arg
    g = Gen(opt)
    s = g.build()
    open(out, 'w').write(s)
    print('instructions', g.a.count(), 'nops', g.a.nnop, 'vgpr hi', g.R.hi, 'stamps', g.nts)
```

```python
import re

REG_RE = re.compile(r'(?<![\w.])(-?\|?)([vas])(\d+|\[(\d+):(\d+)\])(?![\w])')


def regs_of(op):
    out = set()
    op = op.strip()
    if op in ('vcc',):
        return {('s', 'vcc')}
    if op in ('vcc_lo', 'vcc_hi'):
        return {('s', 'vcc')}
    if op in ('exec', 'exec_lo', 'exec_hi'):
        return {('s', 'exec')}
    if op == 'm0':
        return {('s', 'm0')}
    for m in REG_RE.finditer(op):
        k = m.group(2)
        if m.group(4) is not None:
            for i in range(int(m.group(4)), int(m.group(5)) + 1):
                out.add((k, i))
        else:
            out.add((k, int(m.group(3))))
    return out


TRANS = ('v_exp_f32', 'v_log_f32', 'v_rcp_f32', 'v_rsq_f32', 'v_sqrt_f32', 'v_sin_f32', 'v_cos_f32')
NODST_S = ('s_cmp', 's_waitcnt', 's_nop', 's_barrier', 's_branch', 's_cbranch', 's_endpgm', 's_sleep',
           's_setprio', 's_bitcmp', 's_setpc')


class Ins:
    __slots__ = ('text', 'mn', 'ops', 'dst', 'src', 'kind', 'passes', 'srcC', 'srcAB', 'dpp', 'tag', 'ws',
                 'stdata', 'sdwa')

    def __init__(self, text, tag=None):
        self.text = text
        self.tag = tag
        t = text.split(';')[0].strip()
        parts = t.split(None, 1)
        self.mn = mn = parts[0]
        rest = parts[1] if len(parts) > 1 else ''
        ops, depth, cur = [], 0, ''
        for ch in rest:
            if ch in '[(':
                depth += 1
            if ch in '])':
                depth -= 1
            if ch == ',' and depth == 0:
                ops.append(cur.strip())
                cur = ''
            else:
                cur += ch
        if cur.strip():
            ops.append(cur.strip())
        mods = ''
        if ops:
            sp = ops[-1].split(None, 1)
            ops[-1] = sp[0]
            mods = sp[1] if len(sp) > 1 else ''
        self.ops = ops
        self.dst, self.src = set(), set()
        self.passes = 0
        self.srcC, self.srcAB, self.stdata = set(), set(), set()
        self.dpp = ('_dpp' in mn) or ('row_' in mods) or ('quad_perm' in mods)
        self.sdwa = '_sdwa' in mn
        self.ws = 1
        R = [regs_of(o) for o in ops]
        allr = set().union(*R) if R else set()
        if mn.startswith('v_mfma'):
            self.kind = 'mfma'
            self.passes = 8 if '32x32x16' in mn else 4
            assert '32x32x16' in mn or '16x16x32' in mn
            self.dst = R[0]
            self.srcAB = R[1] | R[2]
            self.srcC = R[3]
            self.src = self.srcAB | self.srcC
        elif mn.startswith('ds_'):
            self.kind = 'ds'
            if mn.startswith('ds_write') or mn.startswith('ds_add'):
                self.src = allr
            else:
                self.dst = R[0]
                self.src = set().union(*R[1:])
        elif mn.startswith('buffer_') or mn.startswith('global_'):
            self.kind = 'vm'
            if mn in ('buffer_wbl2', 'buffer_inv'):
                pass
            elif ' lds' in (' ' + mods) or '_lds_' in mn:
                self.src = allr | {('s', 'm0')}
                self.kind = 'dma'
            elif '_load' in mn:
                self.dst = R[0]
                self.src = set().union(*R[1:])
            elif '_store' in mn:
                self.src = allr
                d = R[0] if mn.startswith('buffer_') else R[1]
                if 'x4' in mn or 'x3' in mn:
                    self.stdata = d
            elif '_atomic' in mn:
                self.src = allr
                if 'sc0' in mods:
                    self.dst = R[0]
            else:
                raise ValueError(text)
        elif mn.startswith('s_load') or mn.startswith('s_buffer_load') or mn in ('s_memtime', 's_memrealtime'):
            self.kind = 'smem'
            self.dst = R[0]
            self.src = set().union(*R[1:]) if len(R) > 1 else set()
        elif mn.startswith('s_'):
            self.kind = 'salu'
            if mn == 's_nop':
                self.ws = int(ops[0], 0) + 1
            if any(mn.startswith(p) for p in NODST_S):
                self.src = allr
            else:
                self.dst = R[0]
                self.src = set().union(*R[1:]) if len(R) > 1 else set()
                if 'saveexec' in mn:
                    self.dst = self.dst | {('s', 'exec')}
        elif mn.startswith('v_'):
            self.kind = 'valu'
            if mn.startswith('v_permlane') and 'swap' in mn:
                self.dst = allr
                self.src = allr
            else:
                self.dst = R[0]
                self.src = set().union(*R[1:]) if len(R) > 1 else set()
                if mn.startswith('v_fmac') or mn.startswith('v_dot2c') or mn.startswith('v_pk_fmac') or self.dpp \
                        or mn.startswith('v_writelane') or self.sdwa:
                    self.src = self.src | R[0]
                if '_co_' in mn:
                    self.dst = R[0] | R[1]
                    self.src = set().union(*R[2:])
        else:
            raise ValueError('unknown instr: ' + text)

    def is_trans(self):
        return any(self.mn.startswith(t) for t in TRANS)


def vonly(s):
    return {r for r in s if r[0] in 'va'}


def sonly(s):
    return {r for r in s if r[0] == 's'}


def need_states(p, c):
    n = 0
    pv = vonly(p.dst)
    if p.kind == 'valu':
        if c.kind == 'mfma' and pv & c.src:
            n = max(n, 2)
        if c.kind == 'valu':
            if p.is_trans() and not c.is_trans() and pv & c.src:
                n = max(n, 1)
            if (c.mn.startswith('v_permlane') or c.dpp) and pv & c.src:
                n = max(n, 2)
            if (c.mn.startswith('v_readlane') or c.mn.startswith('v_readfirstlane')) and pv & c.src:
                n = max(n, 1)
            if p.sdwa and pv & (c.src | c.dst):
                n = max(n, 1)
            if p.mn.startswith('v_dot') and pv & (c.src | c.dst) and c.mn != p.mn:
                n = max(n, 3)
        ps = sonly(p.dst)
        if ps:
            if c.kind == 'valu' and ps & c.src:
                n = max(n, 4 if (c.mn.startswith('v_readlane') or c.mn.startswith('v_writelane')) else 2)
            if c.kind in ('vm', 'dma') and ps & c.src:
                n = max(n, 5)
            if c.kind in ('salu', 'smem') and ps & c.src:
                n = max(n, 1)
    if p.kind == 'mfma':
        big = 12 if p.passes == 8 else 8
        if c.kind == 'mfma':
            if p.dst & c.srcAB:
                n = max(n, big)
            if p.dst & c.srcC:
                if not (c.srcC == p.dst and c.passes == p.passes):
                    n = max(n, big - 2)
            elif p.dst & c.dst:
                n = max(n, big - 2)
        elif c.kind in ('valu', 'vm', 'dma', 'ds'):
            if p.dst & (c.src | c.dst):
                n = max(n, big)
            if c.kind == 'valu' and vonly(p.srcC) & c.dst:
                n = max(n, 7 if p.passes == 8 else 3)
    if p.kind == 'salu' and ('s', 'm0') in p.dst and c.kind == 'dma':
        n = max(n, 1)
    if p.stdata and p.stdata & c.dst:
        n = max(n, 2)
    return n


class Asm:
    def __init__(self):
        self.out = []
        self.vmq = []
        self.lgq = []
        self.nnop = 0
        self.uid = 0

    def raw(self, s):
        self.out.append(s)

    def label(self, name):
        self.out.append(name + ':')

    def newlabel(self, base):
        self.uid += 1
        return '%s_%d' % (base, self.uid)

    def comment(self, s):
        self.out.append('    ; ' + s)

    def _emit(self, ins):
        dist = 0
        need = 0
        for p in reversed(self.out):
            if isinstance(p, str):
                continue
            if dist >= 12:
                break
            k = need_states(p, ins) - dist
            if k > need:
                need = k
            dist += p.ws
        while need > 0:
            k = min(need, 16)
            self.out.append(Ins('s_nop %d' % (k - 1)))
            self.nnop += 1
            need -= k
        self.out.append(ins)

    def _wait(self, vm=None, lg=None):
        parts = []
        if vm is not None:
            vm = min(vm, 63)
            if vm < len(self.vmq):
                parts.append('vmcnt(%d)' % vm)
                self.vmq = self.vmq[len(self.vmq) - vm:] if vm else []
        if lg is not None:
            if any(o.kind == 'smem' for o in self.lgq):
                lg = 0
            lg = min(lg, 15)
            if lg < len(self.lgq):
                parts.append('lgkmcnt(%d)' % lg)
                self.lgq = self.lgq[len(self.lgq) - lg:] if lg else []
        if parts:
            self._emit(Ins('s_waitcnt ' + ' '.join(parts)))

    def __call__(self, text, tag=None):
        for line in text.split('\n'):
            line = line.strip()
            if not line or line.startswith(';'):
                continue
            self.one(Ins(line, tag))

    def one(self, ins):
        if isinstance(ins, tuple):
            getattr(self, ins[0])(*ins[1:])
            return
        if isinstance(ins, str):
            ins = Ins(ins)
        assert ins.mn != 's_waitcnt', 'use wait helpers'
        touch = ins.src | ins.dst
        vm = lg = None
        for i, o in enumerate(self.vmq):
            if o.dst & touch:
                vm = len(self.vmq) - 1 - i
        for i, o in enumerate(self.lgq):
            if o.dst & touch:
                lg = len(self.lgq) - 1 - i
        self._wait(vm, lg)
        self._emit(ins)
        if ins.kind in ('vm', 'dma'):
            self.vmq.append(ins)
            assert len(self.vmq) <= 63, 'vmcnt overflow'
        elif ins.kind in ('ds', 'smem'):
            self.lgq.append(ins)

    def need(self, ins):
        if isinstance(ins, str):
            ins = Ins(ins)
        touch = ins.src | ins.dst
        vm = lg = None
        for i, o in enumerate(self.vmq):
            if o.dst & touch:
                vm = len(self.vmq) - 1 - i
        for i, o in enumerate(self.lgq):
            if o.dst & touch:
                lg = len(self.lgq) - 1 - i
        self._wait(vm, lg)

    def rawbar(self):
        self._emit(Ins('s_barrier'))

    def slots(self, mf, streams=(), prewait=True, at=None):
        n = len(mf)
        per = [[] for _ in range(n)]
        for items, lo, hi in streams:
            hi = min(hi, n)
            k = 0
            for i in range(lo, hi):
                tgt = ((i - lo + 1) * len(items) + (hi - lo) - 1) // (hi - lo)
                while k < tgt:
                    per[i].append(items[k])
                    k += 1
            assert k == len(items)
        rank = {'salu': 0, 'smem': 0, 'ds': 1, 'valu': 2, 'mfma': 2, 'vm': 3, 'dma': 3}
        for i in range(n):
            self.one(mf[i])
            if prewait and i + 1 < n:
                self.need(mf[i + 1])
            if at and i in at:
                self.seq(at[i])
            flat = []
            nvm = 0
            for it in per[i]:
                grp = it if isinstance(it, list) else [it]
                grp = [x if isinstance(x, (Ins, tuple)) else Ins(x) for x in grp]
                hasvm = any(isinstance(x, Ins) and x.kind in ('vm', 'dma') for x in grp)
                for x in grp:
                    if isinstance(x, tuple):
                        r = 1
                    elif hasvm and nvm:
                        r = 3
                    else:
                        r = rank[x.kind]
                    flat.append((r, x))
                if hasvm:
                    nvm += 1
            flat.sort(key=lambda t: t[0])
            for _, x in flat:
                self.one(x)

    def seq(self, lst):
        for x in lst:
            if isinstance(x, list):
                self.seq(x)
            else:
                self.one(x)

    def wait_vm(self, tag=None):
        if tag is None:
            self._wait(vm=0)
            return
        n = None
        for i, o in enumerate(self.vmq):
            if o.tag == tag:
                n = len(self.vmq) - 1 - i
        if n is not None:
            self._wait(vm=n)

    def wait_lg(self, tag=None):
        if tag is None:
            self._wait(lg=0)
            return
        n = None
        for i, o in enumerate(self.lgq):
            if o.tag == tag:
                n = len(self.lgq) - 1 - i
        if n is not None:
            self._wait(lg=n)

    def force_wait(self, s):
        self._emit(Ins('s_waitcnt ' + s))
        if 'vmcnt(0)' in s:
            self.vmq = []
        if 'lgkmcnt(0)' in s:
            self.lgq = []

    def barrier(self):
        self._wait(lg=0)
        self._emit(Ins('s_barrier'))

    def fence(self):
        self._emit(Ins('s_nop 11'))

    def text(self):
        lines = []
        for o in self.out:
            lines.append(o if isinstance(o, str) else '    ' + o.text)
        return '\n'.join(lines) + '\n'

    def count(self):
        return sum(1 for o in self.out if not isinstance(o, str))


class Regs:
    def __init__(self, n, first=0):
        self.free = set(range(first, n))
        self.n = n
        self.hi = 0

    def alloc(self, cnt=1, align=None):
        if align is None:
            align = 1 if cnt == 1 else (2 if cnt < 4 else 4)
        for b in range(0, self.n - cnt + 1, align):
            if all((b + i) in self.free for i in range(cnt)):
                for i in range(cnt):
                    self.free.discard(b + i)
                self.hi = max(self.hi, b + cnt)
                return b
        raise RuntimeError('out of registers (%d)' % cnt)

    def release(self, b, cnt=1):
        for i in range(cnt):
            assert (b + i) not in self.free
            self.free.add(b + i)


def rng(k, b, n):
    return '%s%d' % (k, b) if n == 1 else '%s[%d:%d]' % (k, b, b + n - 1)


def V(b, n=1):
    return rng('v', b, n)


def A(b, n=1):
    return rng('a', b, n)


def S(b, n=1):
    return rng('s', b, n)


def weave(main, fill, start=0, end=None):
    if end is None:
        end = len(main)
    out = list(main[:start])
    n = end - start
    k = 0
    for i in range(n):
        out.append(main[start + i])
        tgt = ((i + 1) * len(fill)) // n
        while k < tgt:
            f = fill[k]
            if isinstance(f, list):
                out.extend(f)
            else:
                out.append(f)
            k += 1
    out.extend(main[end:])
    return out
```

```python
import sys
import math
import struct
from asmlib import *

KNAME = 'sequential_preLN__sliding_local_dilated__dense_activation_gelu__prompt_kernel'
MF16 = 'v_mfma_f32_16x16x32_bf16 %s, %s, %s, %s'
MF32 = 'v_mfma_f32_32x32x16_bf16 %s, %s, %s, %s'


def f32(x):
    return '0x%08x' % struct.unpack('<I', struct.pack('<f', x))[0]


WS_O = 0
WS_H = 256 * 1024
WS_ST = 480 * 1024
WS_FL = 496 * 1024
WS_H1 = 512 * 1024
WS_TS = 1536 * 1024
FS = 64
FL1 = WS_FL
FL2 = WS_FL + 4 * 1024
FL3 = WS_FL + 8 * 1024

WBLK = 2064
XOFF = 12 * WBLK
SLOT = XOFF + 10240
L_WO = 3 * SLOT
L_ST = 114688
LDS_BYTES = 163840
L_STG = 114688
STG_W = 11 * 1024
NSTG = 5
NPARK = 14
L_EX = 159744
PITCH = 272
L_HT = 4 * 64 * PITCH
A_EX = 224

sX, sWQ, sWO, sW1, sW2, sB1, sB2, sOUT, sWS = 8, 12, 16, 20, 24, 28, 32, 36, 40
sPTR = 44
s_r, s_rl, s_p, s_w = 64, 65, 66, 67
s_tag = 68
s_woO, s_woM, s_w1O, s_w1M = 70, 71, 72, 73
s_kc, s_oW, s_oX, s_oH = 74, 75, 76, 77
s_bX, s_bH, s_bW = 78, 79, 80
s_m0W, s_m0X, s_m0H = 81, 82, 83
s_M1, s_M2, s_M3, s_Q3 = 84, 86, 88, 90
s_t0, s_t1, s_t2, s_t3 = 92, 93, 94, 95
s_j = 96
s_cnt = 97
s_hi = 98
s_ts = 4
s_d = 3
s_tm, s_to, s_tl, s_ri = 0, 1, 101, 97
s_w2O, s_w2M, s_w2P = 44, 45, 46
s_oO1, s_oO2 = 47, 48
s_f1, s_f2, s_f3, s_p1, s_p2, s_p3 = 49, 50, 51, 52, 53, 54
s_hS, s_stS, s_oL, s_hL, s_stL, s_h1S, s_h1L, s_hLb, s_aM, s_aMb = 55, 56, 57, 58, 59, 60, 61, 62, 63, 100


def nodep(text):
    i = Ins(text, 'junk')
    i.dst = set()
    return i


class Gen:
    def __init__(self, opt):
        self.o = opt
        self.a = Asm()
        self.R = Regs(256)
        self.nts = 0

    def srd(self, d, ptr, size):
        a = self.a
        a('s_mov_b32 %s, %s' % (S(d), S(ptr)))
        a('s_mov_b32 %s, %s' % (S(d + 1), S(ptr + 1)))
        a('s_mov_b32 %s, %d' % (S(d + 2), size))
        a('s_mov_b32 %s, 0x20000' % S(d + 3))

    def lin(self, dst, terms, const=0):
        a = self.a
        first = True
        for reg, k in terms:
            tgt = dst if first else s_t3
            if k == 1:
                if first:
                    a('s_mov_b32 %s, %s' % (S(dst), S(reg)))
                else:
                    a('s_add_u32 %s, %s, %s' % (S(dst), S(dst), S(reg)))
            else:
                a('s_mul_i32 %s, %s, %d' % (S(tgt), S(reg), k))
                if not first:
                    a('s_add_u32 %s, %s, %s' % (S(dst), S(dst), S(s_t3)))
            first = False
        if const:
            a('s_add_u32 %s, %s, %d' % (S(dst), S(dst), const))

    def stamp(self, lvl=1):
        ts = self.o.get('ts', 0)
        if not ts or (lvl > 1 and ts != lvl):
            return
        a = self.a
        a.wait_lg()
        a('s_memrealtime %s' % S(s_ts, 2))
        a('s_memtime %s' % S(s_ts + 2, 2))
        a.wait_lg()
        a('v_writelane_b32 %s, %s, %d' % (V(self.vTS), S(s_ts), self.nts))
        a('v_writelane_b32 %s, %s, %d' % (V(self.vTS), S(s_ts + 2), 32 + self.nts))
        self.nts += 1

    def dump_stamps(self):
        if not self.o.get('ts'):
            return
        a = self.a
        a('s_lshr_b32 %s, s2, 3' % S(s_t0))
        a('s_lshl_b32 %s, %s, 2' % (S(s_t0), S(s_t0)))
        a('s_add_u32 %s, %s, %s' % (S(s_t0), S(s_t0), S(s_w)))
        a('s_lshl_b32 %s, %s, 8' % (S(s_t0), S(s_t0)))
        a('s_add_u32 %s, %s, %d' % (S(s_t0), S(s_t0), WS_TS))
        a('v_lshrrev_b32 v0, 2, %s' % V(self.vL16))
        a('buffer_store_dword %s, v0, %s, %s offen' % (V(self.vTS), S(sWS, 4), S(s_t0)))

    def flag_store(self, soff):
        self.a('buffer_store_dwordx2 %s, %s, %s, %s offen sc1' % (V(self.vTag, 2), V(self.vFs), S(sWS, 4), S(soff)))

    def flag_ins(self, soff):
        return 'buffer_store_dwordx2 %s, %s, %s, %s offen sc1' % (V(self.vTag, 2), V(self.vFs), S(sWS, 4), S(soff))

    def poll(self, soff, vmap):
        a = self.a
        L = a.newlabel('Lpoll')
        Ld = a.newlabel('Lpolld')
        t = self.vPl
        a('s_mov_b32 %s, 0' % S(s_cnt))
        a.label(L)
        a('buffer_load_dwordx2 %s, %s, %s, %s offen sc1' % (V(t, 2), V(vmap), S(sWS, 4), S(soff)))
        a('s_add_u32 %s, %s, 1' % (S(s_cnt), S(s_cnt)))
        a('s_cmp_gt_u32 %s, 0x40000' % S(s_cnt))
        a.force_wait('vmcnt(0)')
        a('s_cbranch_scc1 %s' % Ld)
        a('v_cmp_ne_u64 vcc, %s, %s' % (S(s_tag, 2), V(t, 2)))
        a('s_nop 1')
        a('s_cbranch_vccnz %s' % L)
        a.label(Ld)

    def probe_ins(self, soff, vmap):
        return 'buffer_load_dwordx2 %s, %s, %s, %s offen sc1' % (V(self.vPl, 2), V(vmap), S(sWS, 4), S(soff))

    def check(self, soff, vmap):
        a = self.a
        Lk = a.newlabel('Lok')
        a('v_cmp_ne_u64 vcc, %s, %s' % (S(s_tag, 2), V(self.vPl, 2)))
        a('s_nop 1')
        a('s_cbranch_vccz %s' % Lk)
        keep = list(a.vmq)
        self.poll(soff, vmap)
        a.vmq = keep
        a.label(Lk)

    def prologue(self):
        a, R = self.a, self.R
        R.alloc()
        a('s_cmp_ge_u32 s2, 256')
        a('s_cbranch_scc1 Lend')
        a('s_load_dwordx4 %s, s[0:1], 0' % S(sPTR, 4))
        self.vJunk = R.alloc()
        if self.o.get('codepf', 1):
            a('s_getpc_b64 %s' % S(s_t2, 2))
            a('s_lshr_b32 %s, s2, 3' % S(s_t0))
            a('s_mul_i32 %s, %s, 1280' % (S(s_t0), S(s_t0)))
            a('v_lshrrev_b32 %s, 4, v0' % V(self.vJunk))
            a('v_min_u32 %s, 9, %s' % (V(self.vJunk), V(self.vJunk)))
            a('v_lshl_add_u32 %s, %s, 7, %s' % (V(self.vJunk), V(self.vJunk), S(s_t0)))
            a.one(nodep('global_load_dword %s, %s, %s' % (V(self.vJunk), V(self.vJunk), S(s_t2, 2))))
        self.vL = vL = R.alloc()
        self.vL16 = vL16 = R.alloc()
        self.vZero = R.alloc()
        self.vTag = R.alloc(2)
        if self.o.get('ts'):
            self.vTS = R.alloc()
            a('v_mov_b32 %s, 0' % V(self.vTS))
        t0, t1, t2, t3 = [R.alloc() for _ in range(4)]
        a('v_lshrrev_b32 %s, 6, v0' % V(t0))
        a('v_and_b32 %s, 63, v0' % V(vL))
        a('v_readfirstlane_b32 %s, %s' % (S(s_w), V(t0)))
        a('s_lshr_b32 %s, s2, 3' % S(s_t0))
        a('s_and_b32 %s, %s, 3' % (S(s_rl), S(s_t0)))
        a('s_lshr_b32 %s, %s, 2' % (S(s_p), S(s_t0)))
        a('s_and_b32 %s, s2, 7' % S(s_t1))
        a('s_lshl_b32 %s, %s, 2' % (S(s_r), S(s_t1)))
        a('s_add_u32 %s, %s, %s' % (S(s_r), S(s_r), S(s_rl)))
        self.vWd = [R.alloc(), R.alloc()]
        self.vXd = [R.alloc() for _ in range(4)]
        a('v_lshrrev_b32 %s, 3, %s' % (V(t0), V(vL)))
        a('v_and_b32 %s, 7, %s' % (V(t1), V(vL)))
        a('v_lshrrev_b32 %s, 4, %s' % (V(t2), V(vL)))
        u0, u1, u2 = R.alloc(), R.alloc(), R.alloc()
        a('v_and_b32 %s, 1, %s' % (V(u0), V(t2)))
        a('v_lshlrev_b32 %s, 1, %s' % (V(u0), V(u0)))
        a('v_xor_b32 %s, %s, %s' % (V(u0), V(u0), V(t1)))
        a('v_mul_u32_u24 %s, 2688, %s' % (V(u1), V(t0)))
        a('v_min_u32 %s, 6, %s' % (V(u2), V(u0)))
        a('v_lshl_add_u32 %s, %s, 4, %s' % (V(self.vWd[0]), V(u2), V(u1)))
        a('v_xor_b32 %s, 4, %s' % (V(u0), V(u0)))
        a('v_min_u32 %s, 6, %s' % (V(u2), V(u0)))
        a('v_add_u32 %s, %d, %s' % (V(u1), 8 * 2688 - 1024, V(u1)))
        a('v_lshl_add_u32 %s, %s, 4, %s' % (V(self.vWd[1]), V(u2), V(u1)))
        a('s_mul_i32 %s, %s, %d' % (S(s_bX), S(s_r), 64 * 896))
        a('s_sub_u32 %s, %s, %d' % (S(s_t2), S(s_bX), 16 * 896))
        a('v_xor_b32 %s, %s, %s' % (V(u0), V(t2), V(t1)))
        a('v_lshlrev_b32 %s, 4, %s' % (V(u0), V(u0)))
        a('v_mul_u32_u24 %s, 896, %s' % (V(u1), V(t0)))
        a('s_and_b32 %s, %s, 1' % (S(s_t0), S(s_w)))
        a('s_lshl_b32 %s, %s, 6' % (S(s_t0), S(s_t0)))
        a('v_xor_b32 %s, %s, %s' % (V(u2), S(s_t0), V(u0)))
        a('v_add_u32 %s, %s, %s' % (V(t3), V(u1), V(u2)))
        a('v_xor_b32 %s, 64, %s' % (V(u2), V(u2)))
        a('v_add_u32 %s, %s, %s' % (V(u2), V(u1), V(u2)))
        a('s_mul_i32 %s, %s, 7168' % (S(s_t0), S(s_w)))
        a('s_add_u32 %s, %s, %s' % (S(s_t0), S(s_t0), S(s_t2)))
        a('s_max_i32 %s, %s, 0' % (S(s_t1), S(s_t0)))
        a('v_add_u32 %s, %s, %s' % (V(self.vXd[0]), S(s_t1), V(t3)))
        a('s_add_u32 %s, %s, %d' % (S(s_t1), S(s_t0), 3 * 7168))
        a('v_add_u32 %s, %s, %s' % (V(self.vXd[1]), S(s_t1), V(u2)))
        a('s_add_u32 %s, %s, %d' % (S(s_t1), S(s_t0), 6 * 7168))
        a('v_add_u32 %s, %s, %s' % (V(self.vXd[2]), S(s_t1), V(t3)))
        a('v_xor_b32 %s, 64, %s' % (V(u0), V(u0)))
        a('s_add_u32 %s, %s, %d' % (S(s_t1), S(s_t2), 9 * 7168))
        a('v_add3_u32 %s, %s, %s, %s' % (V(self.vXd[3]), V(u1), V(u0), S(s_t1)))
        a('s_mul_i32 %s, %s, 112' % (S(s_bW), S(s_p)))
        a('s_mul_i32 %s, %s, 896' % (S(s_t0), S(s_w)))
        a('s_add_u32 %s, %s, %s' % (S(s_bW), S(s_bW), S(s_t0)))
        a('s_mul_i32 %s, %s, %d' % (S(s_m0W), S(s_w), WBLK))
        a('s_lshl_b32 %s, %s, 10' % (S(s_m0H), S(s_w)))
        a('s_lshl_b32 %s, %s, 11' % (S(s_m0X), S(s_w)))
        a('s_lshl_b32 %s, %s, 1' % (S(s_kc), S(s_rl)))
        a('s_add_u32 %s, %s, %s' % (S(s_kc), S(s_kc), S(s_p)))
        a('s_cmp_ge_u32 %s, 7' % S(s_kc))
        a('s_cselect_b32 %s, 7, 0' % S(s_t0))
        a('s_sub_u32 %s, %s, %s' % (S(s_kc), S(s_kc), S(s_t0)))
        for r_ in (t0, t1, t2, t3, u0, u1, u2):
            R.release(r_)
        a('s_mov_b32 %s, %d' % (S(sX + 2), 2048 * 896))
        a('s_mov_b32 %s, 0x20000' % S(sX + 3))
        a('s_mov_b32 %s, %d' % (S(sWQ + 2), 448 * 2688))
        a('s_mov_b32 %s, 0x20000' % S(sWQ + 3))
        d0 = self.p1_dma(0)
        a.seq(d0[0])
        a.wait_lg()
        a('s_mov_b64 %s, %s' % (S(sX, 2), S(sPTR, 2)))
        a('s_mov_b64 %s, %s' % (S(sWQ, 2), S(sPTR + 2, 2)))
        self.stamp()
        a('s_load_dwordx4 %s, s[0:1], 16' % S(sPTR + 4, 4))
        a('s_load_dwordx8 %s, s[0:1], 32' % S(sPTR + 8, 8))
        a('s_load_dwordx2 %s, s[0:1], 64' % S(60, 2))
        a('s_load_dwordx2 %s, s[0:1], 80' % S(62, 2))
        a('s_cmp_eq_u32 %s, 3' % S(s_w))
        a('s_cbranch_scc1 Lnoc0')
        a.seq(d0[1:])
        a.label('Lnoc0')

    def sconst(self, val, sreg):
        self.a('s_mov_b32 %s, %d' % (S(sreg), val))
        return S(sreg)

    def late_setup(self):
        a, R = self.a, self.R
        a('v_lshlrev_b32 %s, 4, %s' % (V(self.vL16), V(self.vL)))
        a('v_mov_b32 %s, 0' % V(self.vZero))
        self.srd(sWO, sPTR + 4, 448 * 896)
        self.srd(sW1, sPTR + 8, 448 * 3584)
        self.srd(sB1, sPTR + 10, 1792 * 2)
        self.srd(sW2, sPTR + 12, 1792 * 896)
        self.srd(sB2, sPTR + 14, 448 * 2)
        self.srd(sOUT, 60, 2048 * 896)
        a('s_and_b32 %s, s2, 7' % S(s_t0))
        a('s_lshl_b32 %s, %s, 21' % (S(s_t0), S(s_t0)))
        a('s_add_u32 %s, s62, %s' % (S(sWS), S(s_t0)))
        a('s_addc_u32 %s, s63, 0' % S(sWS + 1))
        a('s_mov_b32 %s, %d' % (S(sWS + 2), 2 << 20))
        a('s_mov_b32 %s, 0x20000' % S(sWS + 3))
        a('s_lshr_b32 %s, %s, 1' % (S(s_t1), S(s_rl)))
        self.lin(s_p3, [(s_t1, 32 * FS)], FL3)
        a('s_add_u32 %s, %s, %d' % (S(s_t0), S(s_p3), 16 * FS))
        a('s_buffer_load_dwordx2 %s, %s, %s' % (S(s_tag, 2), S(sWS, 4), S(s_t0)))
        a('s_and_b32 %s, %s, 1' % (S(s_j), S(s_rl)))
        a('s_mul_i32 %s, %s, 7' % (S(s_j), S(s_j)))
        a('s_min_u32 %s, %s, 6' % (S(s_t0), S(s_p)))
        a('s_add_u32 %s, %s, %s' % (S(s_j), S(s_j), S(s_t0)))
        self.lin(s_p2, [(s_t1, 16 * FS)], FL2)
        self.lin(s_p1, [(s_rl, 8 * FS)], FL1)
        self.lin(s_f1, [(s_p, FS), (s_p1, 1)])
        a('s_add_u32 %s, %s, %d' % (S(s_f2), S(s_f1), FL2 - FL1))
        self.lin(s_f3, [(s_j, FS), (s_p3, 1)])
        self.lin(s_woO, [(s_w, 7168), (s_t0, 128)])
        self.lin(s_woM, [(s_w, 1024)], L_WO)
        self.lin(s_w1O, [(s_w, 16 * 3584), (s_j, 256)])
        self.lin(s_w1M, [(s_w, 4096)])
        self.lin(s_w2O, [(s_w, 16 * 896), (s_t0, 128)])
        self.lin(s_w2M, [(s_w, STG_W)], L_STG)
        self.lin(s_w2P, [(s_w, NPARK * 2048)])
        self.lin(s_oL, [(s_rl, 65536), (s_w, 16384)], WS_O)
        self.lin(s_hL, [(s_t1, 4 * 28 * 1024), (s_w, 4096)], WS_H)
        self.lin(s_hLb, [(s_t1, 4 * 28 * 1024), (s_w, 3072)], WS_H + 16384)
        self.lin(s_aM, [(s_w, 4096)])
        self.lin(s_aMb, [(s_w, 3072)], 16384)
        self.lin(s_stL, [(s_t1, 4 * 2048), (s_w, 2048)], WS_ST)
        self.lin(s_h1S, [(s_t1, 4 * 112 * 1024), (s_j, 8192), (s_w, 2048)], WS_H1)
        self.lin(s_h1L, [(s_rl, 2 * 112 * 1024), (s_w, 1024)], WS_H1)
        a('s_lshr_b32 %s, %s, 1' % (S(s_t1), S(s_w)))
        a('s_and_b32 %s, %s, 1' % (S(s_t2), S(s_w)))
        self.lin(s_oO1, [(s_rl, 65536), (s_t1, 32768), (s_p, 2048), (s_t2, 1024)], WS_O)
        a('s_add_u32 %s, %s, 16384' % (S(s_oO2), S(s_oO1)))
        self.lin(s_hS, [(s_rl, 2 * 28 * 1024), (s_t1, 28 * 1024), (s_t0, 4096), (s_t2, 256)], WS_H)
        self.lin(s_stS, [(s_rl, 4096), (s_t1, 2048), (s_t0, 256), (s_t2, 128)], WS_ST)
        for sm, k in ((s_M1, 1), (s_M2, 2), (s_M3, 3)):
            m = sum(1 << l for l in range(32) if (l & 3) == k)
            a('s_mov_b32 %s, 0x%x' % (S(sm), m))
            a('s_mov_b32 %s, 0x%x' % (S(sm + 1), m))
        a('s_mov_b32 %s, 0' % S(s_Q3))
        a('s_mov_b32 %s, 0xffff0000' % S(s_Q3 + 1))
        a('s_mov_b32 %s, 0' % S(s_hi))
        a('s_mov_b32 %s, -1' % S(s_hi + 1))
        self.vF1, self.vF2, self.vF3 = R.alloc(), R.alloc(), R.alloc()
        self.vFs = R.alloc()
        self.vPl = R.alloc(2)
        a('v_and_b32 %s, 7, %s' % (V(self.vF1), V(self.vL)))
        a('v_min_u32 %s, 6, %s' % (V(self.vF2), V(self.vF1)))
        a('v_and_or_b32 %s, %s, 8, %s' % (V(self.vF2), V(self.vL), V(self.vF2)))
        a('v_min_u32 %s, 13, %s' % (V(self.vF3), V(self.vL)))
        for x in (self.vF1, self.vF2, self.vF3):
            a('v_mul_u32_u24 %s, %d, %s' % (V(x), FS, V(x)))
        a('v_min_u32 %s, 1, v0' % V(self.vFs))
        a('v_lshlrev_b32 %s, 30, %s' % (V(self.vFs), V(self.vFs)))

    def tag_finish(self):
        a = self.a
        a('s_mul_i32 %s, %s, 0x9E3779B1' % (S(s_tag), S(s_tag)))
        a('s_add_u32 %s, %s, 0x7F4A7C15' % (S(s_tag), S(s_tag)))
        a('s_mul_i32 %s, %s, 0x85EBCA6B' % (S(s_tag + 1), S(s_tag + 1)))
        a('s_add_u32 %s, %s, 0x165667B1' % (S(s_tag + 1), S(s_tag + 1)))
        a('v_mov_b32 %s, %s' % (V(self.vTag), S(s_tag)))
        a('v_mov_b32 %s, %s' % (V(self.vTag + 1), S(s_tag + 1)))

    def p1_dma(self, i):
        sl = (i % 3) * SLOT
        tag = 'c%d' % i
        pre = ['s_mul_i32 %s, %s, %d' % (S(s_oW), S(s_kc), 64 * 2688),
               's_add_u32 %s, %s, %s' % (S(s_oW), S(s_oW), S(s_bW)),
               's_lshl_b32 %s, %s, 7' % (S(s_oX), S(s_kc)),
               's_add_u32 %s, %s, 1' % (S(s_kc), S(s_kc)),
               ['s_cmp_eq_u32 %s, 7' % S(s_kc),
                's_cselect_b32 %s, 0, %s' % (S(s_kc), S(s_kc))]]
        out = [pre]
        for kq in range(4):
            m0x = 's_add_u32 m0, %s, %d' % (S(s_m0H), sl + XOFF + kq * 3072) if kq < 3 else \
                's_mov_b32 m0, %d' % (sl + XOFF + 9 * 1024)
            out.append([m0x, Ins('buffer_load_dwordx4 %s, %s, %s offen lds' % (V(self.vXd[kq]), S(sX, 4), S(s_oX)), tag)])
            out.append(['s_add_u32 m0, %s, %d' % (S(s_m0W), sl + kq * 3 * WBLK),
                        's_add_u32 %s, %s, %d' % (S(s_oH), S(s_oW), kq * 16 * 2688),
                        Ins('buffer_load_dwordx4 %s, %s, %s offen lds' % (V(self.vWd[0]), S(sWQ, 4), S(s_oH)), tag)])
            out.append(Ins('buffer_load_dwordx4 %s, %s, %s offen offset:1024 lds' %
                           (V(self.vWd[1]), S(sWQ, 4), S(s_oH)), tag))
        return out

    def p1_setup(self):
        a, R = self.a, self.R
        vL, vL16 = self.vL, self.vL16
        t0, t1, t2, t3, t4 = [R.alloc() for _ in range(5)]
        self.vOnes = vOnes = R.alloc(4)
        for i in range(4):
            a('v_mov_b32 %s, 0x3f803f80' % V(vOnes + i))
        a('v_min_u32 %s, 11, %s' % (V(t0), V(vL)))
        a('v_mul_u32_u24 %s, %d, %s' % (V(t0), WBLK, V(t0)))
        a('v_add_u32 %s, %d, %s' % (V(t1), 2 * SLOT, V(t0)))
        a('ds_write_b128 %s, %s offset:2048' % (V(t0), V(vOnes, 4)))
        a('ds_write_b128 %s, %s offset:%d' % (V(t0), V(vOnes, 4), SLOT + 2048))
        a('ds_write_b128 %s, %s offset:2048' % (V(t1), V(vOnes, 4)))
        self.aW = [[R.alloc() for _ in range(3)] for _ in range(3)]
        self.aX0 = [[R.alloc() for _ in range(2)] for _ in range(3)]
        self.aX1 = [[R.alloc() for _ in range(2)] for _ in range(3)]
        a('v_bfe_u32 %s, %s, 2, 2' % (V(t0), V(vL)))
        a('v_bfe_u32 %s, %s, 4, 1' % (V(t1), V(vL)))
        a('v_lshl_add_u32 %s, %s, 3, %s' % (V(t2), V(t1), V(t0)))
        a('v_lshlrev_b32 %s, 7, %s' % (V(t2), V(t2)))
        a('v_lshrrev_b32 %s, 5, %s' % (V(t3), V(vL)))
        a('v_mul_u32_u24 %s, %d, %s' % (V(t3), 3 * WBLK, V(t3)))
        a('v_add_u32 %s, %s, %s' % (V(t2), V(t2), V(t3)))
        a('v_bfe_u32 %s, %s, 3, 1' % (V(t0), V(vL)))
        a('v_lshl_or_b32 %s, %s, 1, %s' % (V(t0), V(t1), V(t0)))
        a('v_lshlrev_b32 %s, 5, %s' % (V(t0), V(t0)))
        a('s_and_b32 %s, %s, 1' % (S(s_t0), S(s_w)))
        a('s_mul_i32 %s, %s, 56' % (S(s_t0), S(s_t0)))
        a('v_and_b32 %s, 3, %s' % (V(t1), V(vL)))
        a('v_lshl_add_u32 %s, %s, 3, %s' % (V(t1), V(t1), S(s_t0)))
        a('v_xor_b32 %s, %s, %s' % (V(t3), V(t1), V(t0)))
        a('v_add_u32 %s, %s, %s' % (V(self.aW[0][0]), V(t2), V(t3)))
        a('v_add_u32 %s, 32, %s' % (V(t1), V(t1)))
        a('v_xor_b32 %s, %s, %s' % (V(t3), V(t1), V(t0)))
        a('v_add_u32 %s, %s, %s' % (V(t3), V(t2), V(t3)))
        a('v_mov_b32 %s, 2048' % V(t4))
        a('v_cndmask_b32 %s, %s, %s, %s' % (V(self.aW[0][1]), V(t3), V(t4), S(s_M3, 2)))
        a('v_add_u32 %s, 512, %s' % (V(t3), V(t3)))
        a('v_cndmask_b32 %s, %s, %s, %s' % (V(self.aW[0][2]), V(t3), V(t4), S(s_M3, 2)))
        a('v_and_b32 %s, 15, %s' % (V(t0), V(vL)))
        a('v_lshrrev_b32 %s, 4, %s' % (V(t1), V(vL)))
        a('v_lshrrev_b32 %s, 1, %s' % (V(t2), V(t0)))
        a('v_xor_b32 %s, %s, %s' % (V(t1), V(t1), V(t2)))
        a('v_lshlrev_b32 %s, 4, %s' % (V(t1), V(t1)))
        a('v_lshl_add_u32 %s, %s, 7, %s' % (V(t1), V(t0), V(t1)))
        a('s_lshr_b32 %s, %s, 1' % (S(s_t0), S(s_w)))
        a('s_lshl_b32 %s, %s, 12' % (S(s_t0), S(s_t0)))
        a('s_add_u32 %s, %s, %d' % (S(s_t0), S(s_t0), XOFF))
        a('v_add_u32 %s, %s, %s' % (V(self.aX1[0][0]), S(s_t0), V(t1)))
        a('v_xor_b32 %s, 64, %s' % (V(t1), V(t1)))
        a('v_add_u32 %s, %s, %s' % (V(self.aX1[0][1]), S(s_t0), V(t1)))
        a('v_cmp_eq_u32 vcc, 0, %s' % V(t0))
        for s in range(2):
            a('v_cndmask_b32 %s, %s, %s, vcc' % (V(self.aX0[0][s]), V(self.aX1[0][s]), V(t4)))
        for sl in (1, 2):
            for arr in (self.aW, self.aX0, self.aX1):
                for k in range(len(arr[0])):
                    a('v_add_u32 %s, %d, %s' % (V(arr[sl][k]), sl * SLOT, V(arr[0][k])))
        self.vBp1, self.vBp, self.vBc = R.alloc(4), R.alloc(4), R.alloc(4)
        a('v_lshrrev_b32 %s, 4, %s' % (V(t1), V(vL)))
        a('v_lshlrev_b32 %s, 2, %s' % (V(t1), V(t1)))
        a('v_sub_u32 %s, %s, %s' % (V(t1), V(t0), V(t1)))
        a('v_mov_b32 %s, %s' % (V(t4), f32(-1e30)))
        a('s_lshr_b32 %s, %s, 1' % (S(s_t0), S(s_w)))
        a('s_or_b32 %s, %s, %s' % (S(s_t0), S(s_t0), S(s_r)))
        a('s_cmp_eq_u32 %s, 0' % S(s_t0))
        a('s_cselect_b32 %s, %s, 0' % (S(s_t0), f32(-1e30)))
        for base, add in ((self.vBp, 16), (self.vBc, 0)):
            for r in range(4):
                a('v_add_u32 %s, %d, %s' % (V(t2), add - r, V(t1)))
                a('v_and_b32 %s, 0xfffffff1, %s' % (V(t2), V(t2)))
                a('v_cmp_eq_u32 vcc, 0, %s' % V(t2))
                a('v_cndmask_b32 %s, %s, %s, vcc' % (V(base + r), V(t4), V(self.vZero)))
        for r in range(4):
            a('v_min_f32 %s, %s, %s' % (V(self.vBp1 + r), S(s_t0), V(self.vBp + r)))
        self.aS = aS_w, aS_t, aS_v = R.alloc(), R.alloc(), R.alloc()
        self.lin(s_t0, [(s_w, 384)], L_ST)
        a('v_lshl_add_u32 %s, %s, 2, %s' % (V(aS_t), V(t0), S(s_t0)))
        a('v_and_b32 %s, 0x30, %s' % (V(t1), V(vL)))
        a('v_add_u32 %s, %s, %s' % (V(aS_v), S(s_t0), V(t1)))
        a('v_and_b32 %s, 3, %s' % (V(t1), V(vL)))
        a('v_lshl_add_u32 %s, %s, 2, %s' % (V(aS_w), V(t1), V(aS_v)))
        self.aXr = R.alloc(4)
        a('v_lshrrev_b32 %s, 5, %s' % (V(t1), V(vL)))
        a('v_lshrrev_b32 %s, 1, %s' % (V(t2), V(t0)))
        a('v_xor_b32 %s, %s, %s' % (V(t1), V(t1), V(t2)))
        a('v_lshlrev_b32 %s, 4, %s' % (V(t1), V(t1)))
        a('v_bfe_u32 %s, %s, 4, 1' % (V(t2), V(vL)))
        a('v_lshl_add_u32 %s, %s, 3, %s' % (V(t1), V(t2), V(t1)))
        a('v_lshl_add_u32 %s, %s, 7, %s' % (V(t1), V(t0), V(t1)))
        a('s_add_u32 %s, %s, %d' % (S(s_t0), S(s_m0X), XOFF + 2048))
        for t in range(4):
            a('v_xor_b32 %s, %d, %s' % (V(t2), 32 * t, V(t1)))
            a('v_add_u32 %s, %s, %s' % (V(self.aXr + t), S(s_t0), V(t2)))
        a('s_min_u32 %s, %s, 6' % (S(s_ri), S(s_p)))
        a('s_add_u32 %s, %s, 8' % (S(s_ri), S(s_ri)))
        a('s_sub_u32 %s, %s, %s' % (S(s_ri), S(s_ri), S(s_kc)))
        for _ in range(2):
            a('s_cmp_ge_u32 %s, 7' % S(s_ri))
            a('s_cselect_b32 %s, 7, 0' % S(s_t0))
            a('s_sub_u32 %s, %s, %s' % (S(s_ri), S(s_ri), S(s_t0)))
        self.vWOd = R.alloc()
        a('v_lshrrev_b32 %s, 4, %s' % (V(t0), V(vL)))
        a('v_lshlrev_b32 %s, 5, %s' % (V(t1), V(t0)))
        a('v_and_b32 %s, 0x70, %s' % (V(t2), V(vL16)))
        a('v_xor_b32 %s, %s, %s' % (V(t1), V(t1), V(t2)))
        a('v_lshrrev_b32 %s, 3, %s' % (V(t3), V(vL)))
        a('v_mul_u32_u24 %s, 896, %s' % (V(t3), V(t3)))
        a('v_add_u32 %s, %s, %s' % (V(self.vWOd), V(t1), V(t3)))
        self.vW2d = [R.alloc(), R.alloc()]
        a('v_and_b32 %s, 1, %s' % (V(t1), V(t0)))
        a('v_lshlrev_b32 %s, 6, %s' % (V(t1), V(t1)))
        a('v_xor_b32 %s, %s, %s' % (V(t1), V(t1), V(t2)))
        a('v_add_u32 %s, %s, %s' % (V(self.vW2d[0]), V(t1), V(t3)))
        a('v_add_u32 %s, %d, %s' % (V(self.vW2d[1]), 8 * 896 - 1024, V(self.vW2d[0])))
        self.vW1d = [R.alloc() for _ in range(4)]
        a('v_lshlrev_b32 %s, 6, %s' % (V(t1), V(t0)))
        a('v_and_b32 %s, 0xf0, %s' % (V(t2), V(vL16)))
        a('v_xor_b32 %s, %s, %s' % (V(t1), V(t1), V(t2)))
        a('v_mul_u32_u24 %s, 3584, %s' % (V(t0), V(t0)))
        a('v_add_u32 %s, %s, %s' % (V(self.vW1d[0]), V(t0), V(t1)))
        for i in range(1, 4):
            a('v_add_u32 %s, %d, %s' % (V(self.vW1d[i]), i * (4 * 3584 - 1024), V(self.vW1d[0])))
        self.aWO = [[R.alloc() for _ in range(4)] for _ in range(2)]
        a('v_lshrrev_b32 %s, 2, %s' % (V(t0), V(vL)))
        a('v_bfe_u32 %s, %s, 3, 2' % (V(t1), V(vL)))
        a('v_lshlrev_b32 %s, 5, %s' % (V(t1), V(t1)))
        a('v_and_b32 %s, 3, %s' % (V(t2), V(vL)))
        a('v_lshl_or_b32 %s, %s, 3, %s' % (V(t1), V(t2), V(t1)))
        a('v_lshl_add_u32 %s, %s, 7, %s' % (V(t0), V(t0), V(t1)))
        a('v_mov_b32 %s, %d' % (V(t1), L_WO + 2048))
        a('v_mov_b32 %s, %d' % (V(t2), L_WO))
        a('v_cndmask_b32 %s, %s, %s, %s' % (V(t1), V(t1), V(t2), S(s_Q3, 2)))
        for t in range(4):
            a('v_xor_b32 %s, %d, %s' % (V(t3), 32 * t, V(t0)))
            a('v_add_u32 %s, %s, %s' % (V(self.aWO[0][t]), V(t3), V(t2)))
            a('v_add_u32 %s, %s, %s' % (V(self.aWO[1][t]), V(t3), V(t1)))
        for r_ in (t0, t1, t2, t3, t4):
            R.release(r_)

    def p1_reads(self, i, s, W, X):
        sl = i % 3
        out = []
        out.append('ds_read_b128 %s, %s' % (V(X[0], 4), V(self.aX0[sl][s])))
        out.append('ds_read_b128 %s, %s offset:2048' % (V(X[1], 4), V(self.aX1[sl][s])))
        out.append('ds_read_b128 %s, %s offset:4096' % (V(X[2], 4), V(self.aX1[sl][s])))
        for mat in range(3):
            off = s * 6 * WBLK + mat * WBLK
            aw = self.aW[sl]
            out.append('ds_read_b64_tr_b16 %s, %s offset:%d' % (V(W[mat][0], 2), V(aw[0]), off))
            out.append('ds_read_b64_tr_b16 %s, %s offset:%d' % (V(W[mat][0] + 2, 2), V(aw[0]), off + 512))
            out.append('ds_read_b64_tr_b16 %s, %s offset:%d' % (V(W[mat][1], 2), V(aw[1]), off))
            out.append('ds_read_b64_tr_b16 %s, %s offset:%d' % (V(W[mat][1] + 2, 2), V(aw[2]), off))
        return out

    def p1_mfma(self, first, W, X):
        def mm(d, x, y):
            return MF16 % (V(d, 4), V(x, 4), V(y, 4), '0' if first else V(d, 4))
        out = []
        for j in range(3):
            out.append(mm(self.XX[j], X[j], X[j]))
        for t in range(2):
            for j in range(3):
                out.append(mm(self.Q[j][t], W[0][t], X[j]))
        for t in range(2):
            for j in range(3):
                out.append(mm(self.K[j][t], W[1][t], X[j]))
        for t in (1, 0):
            for j in range(3):
                out.append(mm(self.Vv[j][t], X[j], W[2][t]))
        return out

    def wo_dma(self, lo, hi, tag='wo'):
        return [['s_add_u32 m0, %s, %d' % (S(s_woM), i * 4096),
                 's_add_u32 %s, %s, %d' % (S(s_d), S(s_woO), i * 4 * 7168),
                 Ins('buffer_load_dwordx4 %s, %s, %s offen lds' % (V(self.vWOd), S(sWO, 4), S(s_d)), tag)]
                for i in range(lo, hi)]

    def wo_reads(self, lo, hi):
        return ['ds_read_b64_tr_b16 %s, %s offset:%d' %
                (A(16 * h + 4 * t + 2 * sec, 2), V(self.aWO[sec][t ^ (2 * (h & 1))]), h * 28 * 128)
                for h in range(lo, hi) for t in range(4) for sec in range(2)]

    def w1_group(self, i):
        g = ['s_add_u32 m0, %s, %d' % (S(s_w1M), i * 16384),
             's_add_u32 %s, %s, %d' % (S(s_d), S(s_w1O), i * 64 * 3584)]
        for k in range(4):
            g.append(Ins('buffer_load_dwordx4 %s, %s, %s offen offset:%d lds' %
                         (V(self.vW1d[k]), S(sW1, 4), S(s_d), k * 1024), 'w1'))
        return g

    def w2_slot(self, k):
        if k < NSTG:
            return s_w2M, 0, k * 2048
        if k < NSTG + NPARK:
            return s_w2P, 1, (k - NSTG) * 2048
        return s_w2M, 0, ((k - NSTG - NPARK) % NSTG) * 2048

    def w2_dma(self, k):
        sm, _, off = self.w2_slot(k)
        tag = 'w2_%d' % k
        return ['s_add_u32 m0, %s, %d' % (S(sm), off),
                's_add_u32 %s, %s, %d' % (S(s_d), S(s_w2O), k * 64 * 896),
                Ins('buffer_load_dwordx4 %s, %s, %s offen lds' % (V(self.vW2d[0]), S(sW2, 4), S(s_d)), tag),
                Ins('buffer_load_dwordx4 %s, %s, %s offen offset:1024 lds' % (V(self.vW2d[1]), S(sW2, 4), S(s_d)), tag)]

    def w2_reads(self, k):
        _, ai, off = self.w2_slot(k)
        out = [('wait_vm', 'w2_%d' % k)]
        for u in range(2):
            for sec in range(2):
                out.append(Ins('ds_read_b64_tr_b16 %s, %s offset:%d' %
                               (A(8 * k + 4 * u + 2 * sec, 2), V(self.aW2[ai][u]), off + sec * 1024), 'w2r_%d' % k))
        return out

    def extra_prefetch(self):
        a, R = self.a, self.R
        vL = self.vL
        jk = V(self.vJunk)
        self.vXr = R.alloc(8)
        self.vT, self.vT2 = R.alloc(), R.alloc()
        a('v_lshlrev_b32 %s, 7, %s' % (V(self.vT), V(vL)))
        a('s_add_u32 %s, %s, 1' % (S(s_t0), S(s_p)))
        a('s_and_b32 %s, %s, 6' % (S(s_t0), S(s_t0)))
        a('s_cmp_eq_u32 %s, 0' % S(s_t0))
        a('s_cselect_b32 %s, 0, 0x40000000' % S(s_t0))
        a('v_add_u32 %s, %s, %s' % (V(self.vT2), S(s_t0), V(self.vT)))
        a('s_lshr_b32 %s, %s, 2' % (S(s_t0), S(s_p)))
        self.lin(s_tl, [(s_rl, 2 * 1568 * 128), (s_t0, 1568 * 128)])
        a('s_mul_i32 %s, s2, %d' % (S(s_tm), 49 * 128))
        a('s_lshr_b32 %s, s2, 3' % S(s_to))
        a('s_mul_i32 %s, %s, %d' % (S(s_to), S(s_to), 98 * 128))
        self.touch = {}

        def tl(srd, v, sbase, off):
            return ['s_add_u32 %s, %s, %d' % (S(s_d), S(sbase), off),
                    nodep('buffer_load_dword %s, %s, %s, %s offen' % (jk, V(v), S(srd, 4), S(s_d)))]
        self.tlb = [nodep('buffer_load_dword %s, %s, %s, 0 offen' % (jk, V(self.vZero), S(x, 4)))
                    for x in (sWO, sW1, sW2, sWS, sOUT, sB1, sB2)] if self.o.get('tlb', 1) else []
        if self.o.get('mall', 1):
            m0 = self.o.get('mallit', 0)
            self.touch.setdefault(m0, []).extend([tl(sWO, self.vT, s_to, 0), tl(sWO, self.vT, s_to, 34 * 128),
                                                  tl(sW1, self.vT, s_tm, 0), tl(sW2, self.vT, s_tm, 0)])
        n = self.o.get('l2t', 24)
        l0 = self.o.get('l2it', 2)
        for k in range(n):
            self.touch.setdefault(l0 + k * (6 - l0) // n, []).append(tl(sW1, self.vT2, s_tl, k * 8192))

    def resid(self, i):
        a, R = self.a, self.R
        L = a.newlabel('Lres')
        a('s_cmp_lg_u32 %s, %d' % (S(s_ri), i))
        a('s_cbranch_scc1 %s' % L)
        t0, t1 = R.alloc(), R.alloc()
        keep = list(a.lgq)
        a('v_add_u32 %s, %d, %s' % (V(t0), (i % 3) * SLOT, V(self.aXr)))
        a('v_add_u32 %s, %d, %s' % (V(t1), (i % 3) * SLOT, V(self.aXr + 1)))
        a('ds_read_b64 %s, %s' % (V(self.vXr, 2), V(t0)))
        a('ds_read_b64 %s, %s' % (V(self.vXr + 2, 2), V(t1)))
        a('v_add_u32 %s, %d, %s' % (V(t0), (i % 3) * SLOT, V(self.aXr + 2)))
        a('v_add_u32 %s, %d, %s' % (V(t1), (i % 3) * SLOT, V(self.aXr + 3)))
        a('ds_read_b64 %s, %s' % (V(self.vXr + 4, 2), V(t0)))
        a('ds_read_b64 %s, %s' % (V(self.vXr + 6, 2), V(t1)))
        a.force_wait('lgkmcnt(0)')
        a.lgq = keep
        R.release(t0); R.release(t1)
        a.label(L)

    def p1(self):
        a, R = self.a, self.R
        self.late_setup()
        self.extra_prefetch()
        self.p1_setup()
        self.Q = [[R.alloc(4) for _ in range(2)] for _ in range(3)]
        self.K = [[R.alloc(4) for _ in range(2)] for _ in range(3)]
        self.Vv = [[R.alloc(4) for _ in range(2)] for _ in range(3)]
        self.XX = [R.alloc(4) for _ in range(3)]
        W = [[[R.alloc(4) for _ in range(2)] for _ in range(3)] for _ in range(2)]
        X = [[R.alloc(4) for _ in range(3)] for _ in range(2)]
        a('s_cmp_lg_u32 %s, 3' % S(s_w))
        a('s_cbranch_scc1 LroleA')
        st0 = (list(a.vmq), list(a.lgq), self.nts)
        a.vmq = []
        self.p1_loop(W, X, False)
        a('s_branch Ljoin1')
        a.label('LroleA')
        a.vmq, a.lgq, self.nts = st0
        self.p1_loop(W, X, True)
        a.label('Ljoin1')
        for s in range(2):
            for mat in range(3):
                for t in range(2):
                    R.release(W[s][mat][t], 4)
            for j in range(3):
                R.release(X[s][j], 4)
        for arr in (self.aW, self.aX0, self.aX1):
            for sl in range(3):
                for x in arr[sl]:
                    R.release(x)
        for r_ in self.vWd + self.vXd + [self.vWOd, self.vT, self.vT2]:
            R.release(r_)
        R.release(self.aXr, 4)
        self.stamp()
        self.p1_epilogue()

    def p1_loop(self, W, X, loader):
        a = self.a
        if loader:
            a.seq(self.p1_dma(1))
        else:
            a.seq(self.tlb)
            a.seq(self.touch.get(-1, []))
        D = self.o.get('defer', 8)
        defer = []
        for i in range(7):
            a.wait_vm('c%d' % i)
            if i == 6:
                a.wait_vm('woA')
            a.barrier()
            self.stamp(1 if i in (0, 6) else 2)
            r0 = self.p1_reads(i, 0, W[0], X[0])
            r1 = self.p1_reads(i, 1, W[1], X[1])
            m1 = self.p1_mfma(False, W[1], X[1])
            keep = 21 - D if i < 6 else 21
            mf = defer + self.p1_mfma(i == 0, W[0], X[0]) + m1[:keep]
            nd = len(defer)
            defer = m1[keep:]
            st = []
            if nd:
                a.seq(r0[:3])
                st.append((r0[3:], 0, nd))
            else:
                a.seq(r0)
                self.tag_finish()
            st.append((r1, nd, nd + 15))
            vm = []
            if i == 4:
                vm += self.wo_dma(0, 4, 'woA')
            if i + 2 < 7 and loader:
                d = self.p1_dma(i + 2)
                st.append((d[0], 0, 3))
                vm += d[1:]
            if not loader:
                vm += self.touch.get(i, [])
            if i == 5:
                vm += self.wo_dma(4, 10)
            if i == 6:
                vm += self.wo_dma(10, 14)
                st.append((self.wo_reads(0, 4), nd + 15, len(mf) - 4))
            st.append((vm, 3, len(mf)))
            a.slots(mf, st)
            self.resid(i)
        a.barrier()

    def p1_epilogue(self):
        a, R = self.a, self.R
        Q, K, Vv, XX = self.Q, self.K, self.Vv, self.XX
        aS_w, aS_t, aS_v = self.aS
        e = a
        grp = [self.w1_group(i) for i in range(7)]
        ng = self.o.get('w1e', 4)

        def burst():
            if grp and 7 - len(grp) < ng:
                a.seq(grp.pop(0))
        burst()
        su = [R.alloc() for _ in range(3)]
        sq = [R.alloc() for _ in range(3)]
        for dst, src in ((sq, XX), (su, [Vv[j][1] for j in range(3)])):
            for j in range(3):
                e('v_cndmask_b32 %s, %s, %s, %s' % (V(dst[j]), V(src[j]), V(src[j] + 1), S(s_M1, 2)))
                e('v_cndmask_b32 %s, %s, %s, %s' % (V(dst[j]), V(dst[j]), V(src[j] + 2), S(s_M2, 2)))
                e('v_cndmask_b32 %s, %s, %s, %s' % (V(dst[j]), V(dst[j]), V(src[j] + 3), S(s_M3, 2)))
        for row in range(3):
            for j in range(3):
                e('v_mov_b32_dpp %s, %s row_shr:%d row_mask:0x%x bank_mask:0xf' %
                  (V(sq[j]), V(sq[j]), 12 - 4 * row, 1 << row))
        for j in range(3):
            e('v_mul_f32 %s, %s, %s' % (V(su[j]), f32(-1.0 / 448), V(su[j])))
        for j in range(3):
            e('v_mul_f32 %s, %s, %s' % (V(sq[j]), f32(1.0 / 448), V(sq[j])))
        for j in range(3):
            e('v_fma_f32 %s, -%s, %s, %s' % (V(sq[j]), V(su[j]), V(su[j]), V(sq[j])))
        for j in range(3):
            e('v_max_f32 %s, 0, %s' % (V(sq[j]), V(sq[j])))
        for j in range(3):
            e('v_add_f32 %s, %s, %s' % (V(sq[j]), f32(1e-5), V(sq[j])))
        for j in range(3):
            e('v_rsq_f32 %s, %s' % (V(sq[j]), V(sq[j])))
        e('s_mov_b32 exec_lo, 0xf000f000')
        e('s_mov_b32 exec_hi, 0xf000f000')
        for j in range(3):
            e('ds_write2_b32 %s, %s, %s offset0:%d offset1:%d' % (V(aS_w), V(su[j]), V(sq[j]), j * 32, j * 32 + 16))
        e('s_mov_b64 exec, -1')
        for j in range(3):
            R.release(XX[j], 4)
        sT = [R.alloc(2) for _ in range(3)]
        mV = [R.alloc(4) for _ in range(3)]
        rV = [R.alloc(4) for _ in range(3)]
        for j in (1, 2, 0):
            e('ds_read2_b32 %s, %s offset0:%d offset1:%d' % (V(sT[j], 2), V(aS_t), j * 32, j * 32 + 16))
        for j in range(3):
            e('ds_read_b128 %s, %s offset:%d' % (V(mV[j], 4), V(aS_v), j * 128))
            e('ds_read_b128 %s, %s offset:%d' % (V(rV[j], 4), V(aS_v), j * 128 + 64))
        burst()
        cv = R.alloc(2)
        tm = R.alloc(2)
        for t in range(2):
            e('v_mov_b32 %s, %s' % (V(cv + t), V(Vv[0][t])))
            e('v_mov_b32 %s, %s' % (V(tm + t), V(Vv[0][t])))
        for t in range(2):
            e('v_permlane16_swap_b32 %s, %s' % (V(cv + t), V(tm + t)))
        for t in range(2):
            e('v_mov_b32 %s, %s' % (V(tm + t), V(cv + t)))
        dp = 'row_newbcast:0 row_mask:0xf bank_mask:0xf'
        Qf = [None, R.alloc(4), R.alloc(4)]
        Kf = [R.alloc(4) for _ in range(3)]
        Vf = [R.alloc(6, 2) for _ in range(2)]
        for j in (1, 2):
            for t in range(2):
                for r in range(4):
                    e('v_fmac_f32_dpp %s, %s, %s %s' % (V(Q[j][t] + r), V(Q[0][t] + r), V(sT[j]), dp))
            for t in range(2):
                for h in range(2):
                    e('v_cvt_pk_bf16_f32 %s, %s, %s' % (V(Qf[j] + 2 * t + h), V(Q[j][t] + 2 * h), V(Q[j][t] + 2 * h + 1)))
            for h in range(2):
                e('v_cndmask_b32 %s, %s, %s, %s' % (V(Qf[j] + 2 + h), V(Qf[j] + 2 + h), V(self.vZero), S(s_Q3, 2)))
        for t in range(2):
            e('v_permlane32_swap_b32 %s, %s' % (V(cv + t), V(tm + t)))
        burst()
        for j in (1, 2, 0):
            for t in range(2):
                for r in range(4):
                    e('v_fmac_f32_dpp %s, %s, %s %s' % (V(K[j][t] + r), V(K[0][t] + r), V(sT[j]), dp))
            for t in range(2):
                for h in range(2):
                    e('v_pk_mul_f32 %s, %s, %s op_sel:[0,1] op_sel_hi:[1,1]' %
                      (V(K[j][t] + 2 * h, 2), V(K[j][t] + 2 * h, 2), V(sT[j], 2)))
            for t in range(2):
                for h in range(2):
                    e('v_cvt_pk_bf16_f32 %s, %s, %s' % (V(Kf[j] + 2 * t + h), V(K[j][t] + 2 * h), V(K[j][t] + 2 * h + 1)))
        burst()
        for j in range(3):
            for t in range(2):
                for h in range(2):
                    e('v_pk_fma_f32 %s, %s, %s, %s op_sel:[0,%d,0] op_sel_hi:[1,%d,1]' %
                      (V(Vv[j][t] + 2 * h, 2), V(mV[j] + 2 * h, 2), V(cv, 2), V(Vv[j][t] + 2 * h, 2), t, t))
            for t in range(2):
                for h in range(2):
                    e('v_pk_mul_f32 %s, %s, %s' % (V(Vv[j][t] + 2 * h, 2), V(Vv[j][t] + 2 * h, 2), V(rV[j] + 2 * h, 2)))
        Sg = [None, [K[0][0], K[0][1]], [K[1][0], K[1][1]]]
        vc = []
        for j in range(3):
            for t in range(2):
                for h in range(2):
                    vc.append('v_cvt_pk_bf16_f32 %s, %s, %s' %
                              (V(Vf[t] + 2 * j + h), V(Vv[j][t] + 2 * h), V(Vv[j][t] + 2 * h + 1)))
        cs = (28 ** -0.5) * math.log2(math.e)
        mx = [None, su[0], su[1]]
        m2 = [None, sq[0], sq[1]]
        cq = [None, su[2], sq[2]]
        for j in (2, 1):
            vc.append('v_mul_f32 %s, %s, %s' % (V(cq[j]), f32(cs), V(sT[j] + 1)))
        a.slots([MF16 % (V(Sg[2][0], 4), V(Kf[1], 4), V(Qf[2], 4), V(self.vBp, 4)),
                 MF16 % (V(Sg[2][1], 4), V(Kf[2], 4), V(Qf[2], 4), V(self.vBc, 4)),
                 MF16 % (V(Sg[1][1], 4), V(Kf[1], 4), V(Qf[1], 4), V(self.vBc, 4)),
                 MF16 % (V(Sg[1][0], 4), V(Kf[0], 4), V(Qf[1], 4), V(self.vBp1, 4))], [(vc[:6], 0, 3), (vc[6:], 3, 4)])
        burst()
        for j in (2, 1):
            p, c = Sg[j]
            e('v_max3_f32 %s, %s, %s, %s' % (V(mx[j]), V(p), V(p + 1), V(p + 2)))
            e('v_max3_f32 %s, %s, %s, %s' % (V(m2[j]), V(p + 3), V(c), V(c + 1)))
            e('v_max3_f32 %s, %s, %s, %s' % (V(mx[j]), V(mx[j]), V(c + 2), V(c + 3)))
            e('v_max_f32 %s, %s, %s' % (V(mx[j]), V(mx[j]), V(m2[j])))
            e('v_mov_b32 %s, %s' % (V(m2[j]), V(mx[j])))
        for j in (2, 1):
            e('v_permlane16_swap_b32 %s, %s' % (V(mx[j]), V(m2[j])))
        for j in (2, 1):
            e('v_max_f32 %s, %s, %s' % (V(mx[j]), V(mx[j]), V(m2[j])))
            e('v_mov_b32 %s, %s' % (V(m2[j]), V(mx[j])))
        burst()
        for j in (2, 1):
            e('v_permlane32_swap_b32 %s, %s' % (V(mx[j]), V(m2[j])))
        for j in (2, 1):
            e('v_max_f32 %s, %s, %s' % (V(mx[j]), V(mx[j]), V(m2[j])))
        Pf = [None, Kf[0], Kf[1]]
        O = [None, [Q[0][0], Q[0][1], Q[1][0]], [Q[1][1], Q[2][0], Q[2][1]]]
        sm = {}
        for j in (2, 1):
            c = []
            c.append('v_mul_f32 %s, %s, %s' % (V(mx[j]), V(mx[j]), V(cq[j])))
            for x in Sg[j]:
                for r in range(4):
                    c.append('v_fma_f32 %s, %s, %s, -%s' % (V(x + r), V(x + r), V(cq[j]), V(mx[j])))
            for x in Sg[j]:
                for r in range(4):
                    c.append('v_exp_f32 %s, %s' % (V(x + r), V(x + r)))
            for k, x in enumerate(Sg[j]):
                for h in range(2):
                    c.append('v_cvt_pk_bf16_f32 %s, %s, %s' % (V(Pf[j] + 2 * k + h), V(x + 2 * h), V(x + 2 * h + 1)))
            sm[j] = c

        def pv(j):
            return [MF16 % (V(O[j][2], 4), V(self.vOnes, 4), V(Pf[j], 4), '0')] + \
                   [MF16 % (V(O[j][t], 4), V(Vf[t] + 2 * (j - 1), 4), V(Pf[j], 4), '0') for t in range(2)]
        Of = [None, Qf[1], Qf[2]]

        def fin(j):
            c = ['v_rcp_f32 %s, %s' % (V(O[j][2]), V(O[j][2]))]
            c.append('v_cndmask_b32 %s, %s, %s, %s' % (V(O[j][2] + 1), V(O[j][2]), V(self.vZero), S(s_Q3, 2)))
            for t in range(2):
                for r in range(4):
                    c.append('v_mul_f32 %s, %s, %s' % (V(O[j][t] + r), V(O[j][t] + r), V(O[j][2] + t)))
            for t in range(2):
                for h in range(2):
                    c.append('v_cvt_pk_bf16_f32 %s, %s, %s' %
                             (V(Of[j] + 2 * t + h), V(O[j][t] + 2 * h), V(O[j][t] + 2 * h + 1)))
            c.append(Ins('buffer_store_dwordx4 %s, %s, %s, %s offen sc1' %
                         (V(Of[j], 4), V(self.vL16), S(sWS, 4), S(s_oO2 if j == 2 else s_oO1)), 'pub'))
            return c
        a.seq(sm[2])
        burst()
        a.seq(sm[1][:2])
        a.slots(pv(2), [(sm[1][2:6], 0, 2), (sm[1][6:], 2, 3)])
        f2 = fin(2)
        a.seq(f2[:2])
        a.slots(pv(1), [(f2[2:6], 0, 2), (f2[6:], 2, 3)])
        a.seq(fin(1))
        self.w1_rest = grp
        for r_ in (aS_w, aS_t, aS_v) + tuple(su) + tuple(sq):
            R.release(r_)
        for j in range(3):
            R.release(sT[j], 2); R.release(mV[j], 4); R.release(rV[j], 4); R.release(Kf[j], 4)
            for t in range(2):
                R.release(Q[j][t], 4); R.release(K[j][t], 4); R.release(Vv[j][t], 4)
        R.release(cv, 2); R.release(tm, 2)
        for t in range(2):
            R.release(Vf[t], 6)
        for x in (self.vBp1, self.vBp, self.vBc):
            R.release(x, 4)
        self.Of = Of
        self.stamp()

    def h1_window(self):
        a, R = self.a, self.R
        vL, vL16 = self.vL, self.vL16
        a.wait_vm('wo')
        a.rawbar()
        wr = self.wo_reads(4, 16)
        nw = self.o.get('wor', 64)
        single = []
        for g_ in self.w1_rest:
            single += [g_[:3]] + g_[3:]
        a.seq(weave(wr[:nw], single))
        a.wait_vm('pub')
        a.rawbar()
        self.flag_store(s_f1)
        for j in (1, 2):
            R.release(self.Of[j], 4)
        self.stamp()
        a('s_cmp_eq_u32 %s, 7' % S(s_p))
        a('s_cbranch_scc1 Lfin')
        a.seq(wr[nw:])
        t0, t1 = R.alloc(), R.alloc()
        self.aW2 = [[R.alloc(), R.alloc()] for _ in range(2)]
        aW1 = [R.alloc(), R.alloc()]
        t2 = R.alloc()
        a('v_bfe_u32 %s, %s, 4, 1' % (V(t1), V(vL)))
        a('v_lshlrev_b32 %s, 5, %s' % (V(t2), V(t1)))
        a('v_and_b32 %s, 3, %s' % (V(t1), V(vL)))
        a('v_lshl_add_u32 %s, %s, 3, %s' % (V(t2), V(t1), V(t2)))
        a('v_bfe_u32 %s, %s, 2, 2' % (V(t0), V(vL)))
        a('v_lshrrev_b32 %s, 5, %s' % (V(t1), V(vL)))
        a('v_lshl_add_u32 %s, %s, 2, %s' % (V(t1), V(t1), V(t0)))
        a('v_xor_b32 %s, %s, %s' % (V(t0), S(s_w), V(t0)))
        a('v_lshl_add_u32 %s, %s, 6, %s' % (V(t0), V(t0), V(t2)))
        a('v_lshl_add_u32 %s, %s, 8, %s' % (V(aW1[0]), V(t1), V(t0)))
        a('v_add_u32 %s, %d, %s' % (V(aW1[1]), 224 * 256, V(aW1[0])))
        a('v_lshl_add_u32 %s, %s, 7, %s' % (V(t0), V(t1), V(t2)))
        a('v_bfe_u32 %s, %s, 3, 1' % (V(t1), V(vL)))
        a('v_lshl_add_u32 %s, %s, 6, %s' % (V(t0), V(t1), V(t0)))
        a('v_xor_b32 %s, 64, %s' % (V(t1), V(t0)))
        for k, sm in enumerate((s_w2M, s_w2P)):
            a('v_add_u32 %s, %s, %s' % (V(self.aW2[k][0]), S(sm), V(t0)))
            a('v_add_u32 %s, %s, %s' % (V(self.aW2[k][1]), S(sm), V(t1)))
        a.wait_vm('w1')
        a.barrier()
        self.stamp(2)
        self.W1 = [R.alloc(4) for _ in range(28)]
        rd = []
        for ks in range(28):
            row = 32 * (ks >> 1) + 8 * (ks & 1)
            hi = row >= 224
            off = (row - 224 * hi) * 256
            rd.append('ds_read_b64_tr_b16 %s, %s offset:%d' % (V(self.W1[ks], 2), V(aW1[hi]), off))
            rd.append('ds_read_b64_tr_b16 %s, %s offset:%d' % (V(self.W1[ks] + 2, 2), V(aW1[hi]), off + 16 * 256))
        a.seq(weave(rd, [self.w2_dma(k) for k in range(NSTG)]))
        self.vB1 = R.alloc()
        self.vB2 = R.alloc(4)
        a('v_and_b32 %s, 31, %s' % (V(t0), V(vL)))
        a('v_lshlrev_b32 %s, 1, %s' % (V(t0), V(t0)))
        a('v_and_b32 %s, 0x70, %s' % (V(t1), V(vL16)))
        self.lin(s_t0, [(s_j, 256), (s_w, 64)])
        a('s_lshl_b32 %s, %s, 7' % (S(s_t1), S(s_p)))
        a('buffer_load_ushort %s, %s, %s, %s offen' % (V(self.vB1), V(t0), S(sB1, 4), S(s_t0)))
        a('buffer_load_dwordx4 %s, %s, %s, %s offen' % (V(self.vB2, 4), V(t1), S(sB2, 4), S(s_t1)))
        a.barrier()
        self.stamp(2)
        self.w2i = NSTG + self.o.get('w2a', 2)
        cs = R.alloc(16)
        mf = [MF32 % (V(cs, 16), V(self.vOnes, 4), V(self.W1[ks], 4), '0' if ks == 0 else V(cs, 16))
              for ks in range(28)]
        a.slots(mf, [([self.w2_dma(k) for k in range(NSTG, self.w2i)], 0, 8), (self.p2_init(), 8, 24)],
                prewait=False)
        ex = R.alloc(4)
        a('v_lshlrev_b32 %s, 16, %s' % (V(self.vB1), V(self.vB1)))
        a('v_cvt_pk_bf16_f32 %s, %s, %s' % (V(t0), V(cs), V(cs)))
        a('v_lshlrev_b32 %s, 16, %s' % (V(t0), V(t0)))
        a('v_sub_f32 %s, %s, %s' % (V(t0), V(cs), V(t0)))
        a('v_cvt_pk_bf16_f32 %s, %s, %s' % (V(ex), V(cs), V(t0)))
        a('v_cvt_pk_bf16_f32 %s, %s, %s' % (V(ex + 1), V(cs), V(self.vB1)))
        a('v_cvt_pk_bf16_f32 %s, %s, %s' % (V(ex + 2), V(self.vB1), V(self.vZero)))
        a('v_mov_b32 %s, 0' % V(ex + 3))
        for i in range(3):
            a('v_cndmask_b32 %s, %s, %s, %s' % (V(ex + i), V(ex + i), V(self.vZero), S(s_hi, 2)))
        self.vEx = ex
        R.release(cs, 16)
        R.release(self.vB1)
        for sec in range(2):
            for t in range(4):
                R.release(self.aWO[sec][t])
        for r_ in [t0, t1, t2] + aW1 + self.vW1d:
            R.release(r_)

    def p2_init(self):
        R = self.R
        vL = self.vL
        c = []
        self.p2acc = acc = [R.alloc(4) for _ in range(4)]
        for t in range(4):
            for h in range(2):
                c.append('v_lshlrev_b32 %s, 16, %s' % (V(acc[t] + 2 * h), V(self.vXr + 2 * t + h)))
                c.append('v_and_b32 %s, 0xffff0000, %s' % (V(acc[t] + 2 * h + 1), V(self.vXr + 2 * t + h)))
        self.vHs, self.vSs = vHs, vSs = R.alloc(), R.alloc()
        c.append('v_and_b32 %s, 15, %s' % (V(vSs), V(vL)))
        c.append('v_lshlrev_b32 %s, 3, %s' % (V(vSs), V(vSs)))
        c.append('v_lshrrev_b32 %s, 4, %s' % (V(vHs), V(vL)))
        c.append('v_lshlrev_b32 %s, 9, %s' % (V(vHs), V(vHs)))
        c.append('v_lshl_add_u32 %s, %s, 1, %s' % (V(vHs), V(vSs), V(vHs)))
        return c

    def p2(self):
        a, R = self.a, self.R
        vL, vL16 = self.vL, self.vL16
        acc, vHs, vSs = self.p2acc, self.vHs, self.vSs
        self.stamp()
        self.poll(s_p1, self.vF1)
        self.stamp()
        of = [R.alloc(4) for _ in range(16)]
        for h in range(16):
            if h and h % 4 == 0:
                a('s_add_u32 %s, %s, 4096' % (S(s_oL), S(s_oL)))
            a('buffer_load_dwordx4 %s, %s, %s, %s offen offset:%d sc1' %
              (V(of[h], 4), V(vL16), S(sWS, 4), S(s_oL), (h % 4) * 1024))
        mf = [MF16 % (V(acc[t], 4), A(16 * h + 4 * t, 4), V(of[h], 4), V(acc[t], 4))
              for h in range(16) for t in range(4)]
        nb = min(self.w2i + self.o.get('w2b', 7), NSTG + NPARK)
        it = []
        for k in range(self.w2i, nb):
            d = self.w2_dma(k)
            it += [d[:3], d[3]]
        a.slots(mf, [(it, 4, 62)], prewait=False)
        self.w2i = nb
        Hf = self.vXr
        for t in range(4):
            for h in range(2):
                a('v_cvt_pk_bf16_f32 %s, %s, %s' % (V(Hf + 2 * t + h), V(acc[t] + 2 * h), V(acc[t] + 2 * h + 1)))
        ss, su = of[0], of[1]
        st = [Ins('buffer_store_dwordx4 %s, %s, %s, %s offen offset:%d sc1' %
                  (V(Hf + 4 * f, 4), V(vHs), S(sWS, 4), S(s_hS), f * 2048), 'pub') for f in range(2)]
        a.slots([MF16 % (V(ss, 4), V(Hf, 4), V(Hf, 4), '0'),
                 MF16 % (V(ss, 4), V(Hf + 4, 4), V(Hf + 4, 4), V(ss, 4)),
                 MF16 % (V(su, 4), V(self.vOnes, 4), V(Hf, 4), '0'),
                 MF16 % (V(su, 4), V(self.vOnes, 4), V(Hf + 4, 4), V(su, 4))], [(st, 3, 4)])
        a('v_cndmask_b32 %s, %s, %s, %s' % (V(ss), V(ss), V(ss + 1), S(s_M1, 2)))
        a('v_cndmask_b32 %s, %s, %s, %s' % (V(ss), V(ss), V(ss + 2), S(s_M2, 2)))
        a('v_cndmask_b32 %s, %s, %s, %s' % (V(su + 1), V(ss), V(ss + 3), S(s_M3, 2)))
        a('s_mov_b32 exec_lo, 0x00f0000f')
        a('s_mov_b32 exec_hi, 0xf0000f00')
        a('buffer_store_dwordx2 %s, %s, %s, %s offen sc1' % (V(su, 2), V(vSs), S(sWS, 4), S(s_stS)), 'pub')
        a('s_mov_b64 exec, -1')
        self.stamp()
        ne = self.w2i
        a.seq(weave([self.w2_reads(k) for k in range(ne)], [self.w2_dma(k) for k in range(ne, NSTG + NPARK)]))
        a.wait_vm('pub')
        a.rawbar()
        self.flag_store(s_f2)
        self.stamp()
        self.w2r = ne
        for x in of + acc:
            R.release(x, 4)
        for r_ in (vHs, vSs):
            R.release(r_)

    def h2_window(self):
        a = self.a
        NP = NSTG + NPARK
        a.wait_lg('w2r_%d' % (NSTG - 1))
        self.w2c = NP + self.o.get('w2c', NSTG)
        for k in range(NP, self.w2c):
            a.seq(self.w2_dma(k))
        for k in range(self.w2r, NP):
            a.seq(self.w2_reads(k))
        a.barrier()

    @staticmethod
    def gelu_code(acc, cst, tmp, pk=False):
        C1, C3, sd = cst, cst + 1, cst + 2
        code = []
        for b in range(0, 16, 4):
            x = acc + b
            t = tmp + (b & 4)
            if pk:
                P = lambda r, i: V(r + 2 * i, 2)
                for i in range(2):
                    code.append('v_pk_mul_f32 %s, %s, %s' % (P(t, i), P(x, i), P(x, i)))
                for i in range(2):
                    code.append('v_pk_fma_f32 %s, %s, %s, %s op_sel:[0,1,0] op_sel_hi:[1,1,0]' %
                                (P(t, i), P(t, i), V(cst, 2), V(cst, 2)))
                for i in range(2):
                    code.append('v_pk_mul_f32 %s, %s, %s' % (P(t, i), P(t, i), P(x, i)))
            else:
                for i in range(4):
                    code.append('v_mul_f32 %s, %s, %s' % (V(t + i), V(x + i), V(x + i)))
                for i in range(4):
                    code.append('v_fma_f32 %s, %s, %s, %s' % (V(t + i), V(t + i), V(C3), V(C1)))
                for i in range(4):
                    code.append('v_mul_f32 %s, %s, %s' % (V(t + i), V(t + i), V(x + i)))
            for i in range(4):
                code.append('v_exp_f32 %s, %s' % (V(t + i), V(t + i)))
            if pk:
                for i in range(2):
                    code.append('v_pk_fma_f32 %s, %s, %s, %s op_sel_hi:[1,0,0]' % (P(t, i), P(t, i), V(sd, 2), V(sd, 2)))
            else:
                for i in range(4):
                    code.append('v_fma_f32 %s, %s, %s, %s' % (V(t + i), V(t + i), V(sd), V(sd)))
            for i in range(4):
                code.append('v_rcp_f32 %s, %s' % (V(t + i), V(t + i)))
            if pk:
                for i in range(2):
                    code.append('v_pk_mul_f32 %s, %s, %s' % (P(t, i), P(t, i), P(x, i)))
            else:
                for i in range(4):
                    code.append('v_mul_f32 %s, %s, %s' % (V(t + i), V(t + i), V(x + i)))
            for h in range(2):
                code.append('v_cvt_pk_bf16_f32 %s, %s, %s' % (V(acc + b // 2 + h), V(t + 2 * h), V(t + 2 * h + 1)))
        return code

    def p3(self):
        a, R = self.a, self.R
        vL, vL16 = self.vL, self.vL16
        vS0, vS3, aE, aA = R.alloc(), R.alloc(), R.alloc(), R.alloc()
        t0 = R.alloc()
        a('v_lshlrev_b32 %s, 3, %s' % (V(vS0), V(vL)))
        a('v_mov_b32 %s, 0x40000000' % V(t0))
        a('v_cndmask_b32 %s, %s, %s, %s' % (V(vS3), V(vS0), V(t0), S(s_hi, 2)))
        a('v_and_b32 %s, 0x1f0, %s' % (V(aE), V(vL16)))
        a('v_add_u32 %s, %d, %s' % (V(aE), L_EX, V(aE)))
        a('s_lshl_b32 %s, %s, 10' % (S(s_t0), S(s_w)))
        a('v_add_u32 %s, %s, %s' % (V(t0), S(s_t0), V(aE)))
        a('v_add_u32 %s, %d, %s' % (V(aA), 57344, V(vL16)))
        order = [0, 2, 1, 3]
        NP = NSTG + NPARK

        def dma(n, part):
            rt = order[n]
            so, sm, cnt = (s_hL, s_aM, 4) if part == 0 else (s_hLb, s_aMb, 3)
            pre = ['s_add_u32 m0, %s, %d' % (S(sm), rt * 28672),
                   's_add_u32 %s, %s, %d' % (S(s_d), S(so), rt * 28672)]
            ld = [Ins('buffer_load_dwordx4 %s, %s, %s offen offset:%d sc1 lds' %
                      (V(vL16), S(sWS, 4), S(s_d), k * 1024), 'h%d%d' % (n, part)) for k in range(cnt)]
            return [pre + ld[:1]] + ld[1:]
        self.stamp()
        self.poll(s_p2, self.vF2)
        self.stamp()
        st = R.alloc(8)
        a.seq(dma(0, 0))
        for i in range(4):
            a('buffer_load_dwordx2 %s, %s, %s, %s offen offset:%d sc1' %
              (V(st + 2 * i, 2), V(vS3 if i == 3 else vS0), S(sWS, 4), S(s_stL), 512 * i))
        a.seq(dma(0, 1) + dma(1, 0) + dma(1, 1))
        bx = R.alloc(4)
        cc = R.alloc(4)
        C1, C3, sd = cc, cc + 1, cc + 2
        sc = []
        e = sc.append
        e('v_add_f32 %s, %s, %s' % (V(st), V(st), V(st + 2)))
        e('v_add_f32 %s, %s, %s' % (V(st + 1), V(st + 1), V(st + 3)))
        e('v_add_f32 %s, %s, %s' % (V(st + 4), V(st + 4), V(st + 6)))
        e('v_add_f32 %s, %s, %s' % (V(st + 5), V(st + 5), V(st + 7)))
        e('v_add_f32 %s, %s, %s' % (V(st), V(st), V(st + 4)))
        e('v_add_f32 %s, %s, %s' % (V(st + 1), V(st + 1), V(st + 5)))
        e('v_mov_b32 %s, %s' % (V(st + 2), V(st)))
        e('v_mov_b32 %s, %s' % (V(st + 3), V(st + 1)))
        e('v_mov_b32 %s, 0' % V(bx + 3))
        e('v_permlane32_swap_b32 %s, %s' % (V(st), V(st + 2)))
        e('v_permlane32_swap_b32 %s, %s' % (V(st + 1), V(st + 3)))
        e('v_add_f32 %s, %s, %s' % (V(st), V(st), V(st + 2)))
        e('v_add_f32 %s, %s, %s' % (V(st + 1), V(st + 1), V(st + 3)))
        e('v_mul_f32 %s, %s, %s' % (V(st), f32(-1.0 / 448), V(st)))
        e('v_mul_f32 %s, %s, %s' % (V(st + 1), f32(1.0 / 448), V(st + 1)))
        e('v_fma_f32 %s, -%s, %s, %s' % (V(st + 1), V(st), V(st), V(st + 1)))
        e('v_max_f32 %s, 0, %s' % (V(st + 1), V(st + 1)))
        e('v_add_f32 %s, %s, %s' % (V(st + 1), f32(1e-5), V(st + 1)))
        e('v_rsq_f32 %s, %s' % (V(st + 2), V(st + 1)))
        e('v_cvt_pk_bf16_f32 %s, %s, %s' % (V(bx), V(st), V(st)))
        e('v_mul_f32 %s, %s, %s' % (V(sd), V(st + 1), V(st + 2)))
        e('v_lshlrev_b32 %s, 16, %s' % (V(st + 3), V(bx)))
        e('v_sub_f32 %s, %s, %s' % (V(st + 3), V(st), V(st + 3)))
        e('v_cvt_pk_bf16_f32 %s, %s, %s' % (V(bx + 1), V(st + 3), V(sd)))
        e('v_and_b32 %s, 0xffff0000, %s' % (V(st + 3), V(bx + 1)))
        e('v_sub_f32 %s, %s, %s' % (V(st + 3), V(sd), V(st + 3)))
        e('v_cvt_pk_bf16_f32 %s, %s, %s' % (V(bx + 2), V(st + 3), V(self.vZero)))
        kk = 2 * math.sqrt(2 / math.pi) * math.log2(math.e)
        e('v_mul_f32 %s, %s, %s' % (V(C1), f32(-kk), V(st + 2)))
        e('v_mul_f32 %s, %s, %s' % (V(C3), V(st + 2), V(st + 2)))
        e('v_mul_f32 %s, %s, %s' % (V(C3), V(C3), V(C1)))
        e('v_mul_f32 %s, %s, %s' % (V(C3), f32(0.044715), V(C3)))
        xw = [Ins('ds_write_b128 %s, %s' % (V(t0), V(bx, 4)), 'xw'),
              Ins('ds_write_b128 %s, %s offset:512' % (V(t0), V(cc, 4)), 'xw')]
        NB = 4
        fr = [R.alloc(4) for _ in range(NB)]
        acc = [R.alloc(16) for _ in range(2)]
        bx2 = R.alloc(4)
        cc2 = [R.alloc(4), R.alloc(4)]
        tmp = R.alloc(8)

        def rd(q):
            n, ks = divmod(q, 28)
            off = order[n] * 28672 + ks * 1024
            hi = off >= 57344
            return 'ds_read_b128 %s, %s offset:%d' % (V(fr[q % NB], 4), V(aA if hi else vL16), off - 57344 * hi)

        def gelu(n, pk=False):
            c = self.gelu_code(acc[n & 1], cc2[n & 1], tmp, pk)
            h = len(c) // 2
            sts = [Ins('buffer_store_dwordx4 %s, %s, %s, %s offen offset:%d sc1' %
                       (V(acc[n & 1] + 4 * s, 4), V(vL16), S(sWS, 4), S(s_t0), s * 1024), 'pub%d' % n) for s in range(2)]
            return ['s_add_u32 %s, %s, %d' % (S(s_t0), S(s_h1S), order[n] * 112 * 1024)] + c[:h] + [sts[0]] + c[h:] + [sts[1]]
        a.wait_vm('h00')
        a.rawbar()
        self.stamp(3)
        PF = NB - 1
        for q in range(PF):
            a(rd(q))
        for n in range(4):
            mf = [MF32 % (V(acc[n & 1], 16), V(self.W1[ks], 4), V(fr[(28 * n + ks) % NB], 4),
                          '0' if ks == 0 else V(acc[n & 1], 16)) for ks in range(28)]
            mf.append(MF32 % (V(acc[n & 1], 16), V(self.vEx, 4), V(bx2, 4), V(acc[n & 1], 16)))
            reads = [rd(q) for q in range(28 * n + PF, min(28 * n + 28 + PF, 112))]
            st_ = [(reads, 0, len(reads))]
            at = {}
            xr = ['ds_read_b128 %s, %s offset:%d' % (V(bx2, 4), V(aE), order[n] * 1024),
                  'ds_read_b128 %s, %s offset:%d' % (V(cc2[n & 1], 4), V(aE), order[n] * 1024 + 512)]
            if n == 0:
                st_.append((sc, 0, 8))
                st_.append((xw, 9, 10))
                at[16 - PF] = [('wait_vm', 'h01'), ('wait_lg', 'xw'), ('rawbar',)]
                st_.append((dma(2, 0) + dma(2, 1), 6, 28))
                st_.append(([x for k in range(NP, self.w2c) for x in self.w2_reads(k)[1:]], 10, 24))
            else:
                st_.append((gelu(n - 1), 2, 28))
            if n == 1:
                st_.append((dma(3, 0) + dma(3, 1), 0, 16))
            if n == 2:
                it = []
                for k in range(self.w2c, 28):
                    d = self.w2_dma(k)
                    it += [d[:3], d[3]]
                assert 28 - self.w2c <= NSTG
                st_.append((it, 0, 12))
            st_.append((xr, 24, 26))
            if n < 3:
                at.setdefault(28 - PF, []).extend([('wait_vm', 'h%d1' % (n + 1)), ('rawbar',)])
            if n == 3:
                fs = self.o.get('f0slot', 20)
                at[fs] = [('wait_vm', 'pub1'), ('rawbar',)]
                st_.append(([self.flag_ins(s_f3)], fs, fs + 1))
            a.slots(mf, st_, at=at)
            self.stamp(3)
        self.stamp()
        a('s_add_u32 %s, %s, %d' % (S(s_f3), S(s_f3), 16 * FS))
        a.seq(gelu(3, True))
        self.stamp()
        for x in fr + self.W1 + [bx, cc, bx2, self.vEx] + cc2:
            R.release(x, 4)
        R.release(acc[0], 16)
        self.p3_live = acc[1]
        R.release(st, 8); R.release(tmp, 8)
        for r_ in (vS0, vS3, t0, aE, aA):
            R.release(r_)

    def p4(self):
        a, R = self.a, self.R
        vL, vL16 = self.vL, self.vL16
        a0 = R.alloc(32)
        acc = [[a0, a0 + 16], [R.alloc(16), R.alloc(16)]]
        NF = 28
        fr = sorted(R.alloc(4) for _ in range(NF))

        def load(n):
            mt, k = divmod(n, 28)
            return ['s_add_u32 %s, %s, %d' % (S(s_d), S(s_h1L), mt * 112 * 1024 + k * 4096),
                    'buffer_load_dwordx4 %s, %s, %s, %s offen sc1' % (V(fr[n % NF], 4), V(vL16), S(sWS, 4), S(s_d))]

        def mm(lo, hi):
            out = []
            for n in range(lo, hi):
                mt, k = divmod(n, 28)
                out += [MF32 % (V(acc[mt][u], 16), A(8 * k + 4 * u, 4), V(fr[n % NF], 4),
                                '0' if k == 0 else V(acc[mt][u], 16)) for u in range(2)]
            return out
        self.poll(s_p3, self.vF3)
        a.rawbar()
        self.flag_store(s_f3)
        R.release(self.p3_live, 16)
        self.stamp()
        NB0 = self.o.get('p4b', 14)
        for n in range(NB0):
            a.seq(load(n))
        for k in range(self.w2c, 28):
            a.seq(self.w2_reads(k))
        t0, t1 = R.alloc(), R.alloc()
        a('v_and_b32 %s, 15, %s' % (V(t0), V(vL)))
        a('v_mul_u32_u24 %s, 144, %s' % (V(t0), V(t0)))
        a('v_lshrrev_b32 %s, 4, %s' % (V(t1), V(vL)))
        a('v_lshl_add_u32 %s, %s, 3, %s' % (V(t0), V(t1), V(t0)))
        self.lin(s_t0, [(s_w, 16 * 144)], L_HT)
        a('v_add_u32 %s, %s, %s' % (V(t0), S(s_t0), V(t0)))
        for t in range(4):
            a('ds_write_b64 %s, %s offset:%d' % (V(t0), V(self.vXr + 2 * t, 2), 32 * t))
        aP, aR, aH, vO = R.alloc(), R.alloc(), R.alloc(), R.alloc()
        a('v_and_b32 %s, 31, %s' % (V(aP), V(vL)))
        a('v_mul_u32_u24 %s, %d, %s' % (V(aP), PITCH, V(aP)))
        a('v_lshrrev_b32 %s, 5, %s' % (V(t1), V(vL)))
        a('v_lshl_add_u32 %s, %s, 4, %s' % (V(aP), V(t1), V(aP)))
        a('s_mul_i32 %s, %s, %d' % (S(s_t0), S(s_w), 64 * PITCH))
        a('v_add_u32 %s, %s, %s' % (V(aP), S(s_t0), V(aP)))
        a('v_lshrrev_b32 %s, 3, v0' % V(vO))
        a('v_and_b32 %s, 7, v0' % V(t1))
        a('v_mul_u32_u24 %s, %d, %s' % (V(aR), PITCH, V(vO)))
        a('v_lshl_add_u32 %s, %s, 5, %s' % (V(aR), V(t1), V(aR)))
        a('v_mul_u32_u24 %s, 144, %s' % (V(aH), V(vO)))
        a('v_lshl_add_u32 %s, %s, 4, %s' % (V(aH), V(t1), V(aH)))
        a('v_add_u32 %s, %d, %s' % (V(aH), L_HT, V(aH)))
        a('v_mul_u32_u24 %s, 896, %s' % (V(vO), V(vO)))
        a('v_lshl_add_u32 %s, %s, 4, %s' % (V(vO), V(t1), V(vO)))
        self.lin(s_bX, [(s_r, 64 * 896), (s_p, 128)])
        a('s_add_u32 %s, %s, %d' % (S(s_bH), S(s_bX), 32 * 896))
        a('s_add_u32 %s, %s, %d' % (S(s_p3), S(s_p3), 16 * FS))
        bfl = R.alloc(8)
        for i in range(4):
            a('v_lshlrev_b32 %s, 16, %s' % (V(bfl + 2 * i), V(self.vB2 + i)))
            a('v_and_b32 %s, 0xffff0000, %s' % (V(bfl + 2 * i + 1), V(self.vB2 + i)))
        R.release(t0); R.release(t1)
        c1 = 28 - NB0
        pp = self.o.get('p4pp', 6)
        it = [load(n) for n in range(NB0, 28 - pp)] + [self.probe_ins(s_p3, self.vF3)] + \
             [load(n) for n in range(28 - pp, 28)]
        a.slots(mm(0, c1), [(it, 0, 2 * c1)], prewait=False)
        cp = 28 - pp
        a.slots(mm(c1, cp), prewait=False)
        self.check(s_p3, self.vF3)
        self.stamp()
        nq = self.o.get('p4q', 5)
        for n in range(28, 28 + nq):
            a.seq(load(n))
        cq = nq + (28 - cp)
        a.slots(mm(cp, 28), [([load(n) for n in range(28 + nq, 28 + cq)], 0, 2 * (28 - cp))], prewait=False)

        def pw(mt):
            return [Ins('ds_write_b128 %s, %s offset:%d' %
                        (V(aP), V(acc[mt][u] + 4 * gq, 4), mt * 32 * PITCH + u * 128 + gq * 32), 'pw')
                    for u in range(2) for gq in range(4)]

        def red(mt, regs, pk):
            pr = [[regs + 8 * w + 4 * k for k in range(2)] for w in range(4)]
            hr, hx = self.vXr, self.vXr + 4
            hx = [bflx, bflx + 4]
            rdl = ['ds_read_b128 %s, %s offset:%d' % (V(hr, 4), V(aH), mt * 32 * 144)]
            for w in range(4):
                for k in range(2):
                    rdl.append('ds_read_b128 %s, %s offset:%d' %
                               (V(pr[w][k], 4), V(aR), w * 64 * PITCH + mt * 32 * PITCH + k * 16))
            c = []

            def add(d, s):
                if pk:
                    for h in range(2):
                        c.append('v_pk_add_f32 %s, %s, %s' % (V(d + 2 * h, 2), V(d + 2 * h, 2), V(s + 2 * h, 2)))
                else:
                    for h in range(4):
                        c.append('v_add_f32 %s, %s, %s' % (V(d + h), V(d + h), V(s + h)))
            for k in range(2):
                for h in range(2):
                    c.append('v_lshlrev_b32 %s, 16, %s' % (V(hx[k] + 2 * h), V(hr + 2 * k + h)))
                    c.append('v_and_b32 %s, 0xffff0000, %s' % (V(hx[k] + 2 * h + 1), V(hr + 2 * k + h)))
                add(hx[k], bfl + 4 * k)
            npre = len(c)
            for w in range(4):
                for k in range(2):
                    add(hx[k], pr[w][k])
            for k in range(2):
                for h in range(2):
                    c.append('v_cvt_pk_bf16_f32 %s, %s, %s' %
                             (V(self.vXr + 4 + 2 * k + h), V(hx[k] + 2 * h), V(hx[k] + 2 * h + 1)))
            c.append('buffer_store_dwordx4 %s, %s, %s, %s offen sc1' %
                     (V(self.vXr + 4, 4), V(vO), S(sOUT, 4), S(s_bH if mt else s_bX)))
            return rdl, c[:npre], c[npre:]
        bflx = R.alloc(8)
        assert acc[0][1] == acc[0][0] + 16
        r0, c0a, c0b = red(0, acc[0][0], False)
        r1, c1a, c1b = red(1, acc[0][0], True)
        rest = [load(n) for n in range(28 + cq, 56)]
        a.slots(mm(28, 56), [(rest, 0, 2 * len(rest)), (pw(0), 2, 14), (r0, 20, 26), (c0a + c0b, 28, 44),
                             (r1[:1], 46, 47), ([x for x in red(1, acc[0][0], False)[1]], 49, 54)],
                prewait=False, at={18: [('wait_lg', 'pw'), ('rawbar',)]})
        self.stamp()
        a.seq(pw(1))
        a.barrier()
        a.seq(r1[1:])
        a.seq(c1b)
        self.stamp()

    def build(self):
        a = self.a
        self.prologue()
        self.p1()
        self.h1_window()
        self.p2()
        self.h2_window()
        self.p3()
        self.p4()
        a.label('Lfin')
        if self.o.get('ts'):
            a.fence()
        self.dump_stamps()
        a.label('Lend')
        a('s_endpgm')
        return self.wrap()

    def wrap(self):
        hdr = open('cdna_kernels/' + KNAME[:-7] + '.s.ref').read().split('\n')
        top = [l for l in hdr if l.startswith(';') and '@launch' not in l][:12]
        s = '\n'.join(top) + '\n'
        s += '; @launch grid=(256,1,1) block=(256,1,1) lds=%d\n' % LDS_BYTES
        s += '.amdgcn_target "amdgcn-amd-amdhsa--gfx950"\n.text\n.globl %s\n.p2align 8\n.type %s,@function\n%s:\n' % (
            KNAME, KNAME, KNAME)
        s += self.a.text()
        s += '.p2align 8\n.fill 4096, 4, 0xbf800000\n' if self.o.get('codepf', 1) else ''
        s += '''.section .rodata,"a"
.p2align 6
.amdhsa_kernel %s
  .amdhsa_next_free_vgpr 512
  .amdhsa_next_free_sgpr 102
  .amdhsa_accum_offset 256
  .amdhsa_group_segment_fixed_size 0
  .amdhsa_kernarg_size 88
  .amdhsa_user_sgpr_count 2
  .amdhsa_user_sgpr_kernarg_segment_ptr 1
  .amdhsa_system_sgpr_workgroup_id_x 1
.end_amdhsa_kernel
''' % KNAME
        return s


if __name__ == '__main__':
    opt = {}
    out = 'k.s'
    for arg in sys.argv[1:]:
        if '=' in arg:
            k, v = arg.split('=')
            opt[k] = int(v)
        else:
            out = arg
    g = Gen(opt)
    s = g.build()
    open(out, 'w').write(s)
    print('instructions', g.a.count(), 'nops', g.a.nnop, 'vgpr hi', g.R.hi, 'stamps', g.nts)
```

```python
import sys
import math
from asmlib import *
import gen3
from gen3 import *

WS_EX = 1408 * 1024
gen3.WS_TS = 1792 * 1024

L_WV = 0
L_RING = 57344
SL = 26640
XO = 16384
L_Q = 57344
QP = 136
L_K = L_Q + 64 * QP
L_STAT = 95616
L_VS = 96256
L_WO4 = 106496

s_ex = 47
s_oS = 48
s_kv = 83
s_G1, s_G2 = 78, 0
s_bV = 1


def segments(c):
    lo, hi = 16 * c, 16 * c + 16
    out = []
    for h in range(16):
        a0, b0 = max(lo, 7 * h), min(hi, 7 * h + 7)
        if a0 < b0:
            kind = 'L' if 7 * h < lo else ('R' if 7 * h + 7 > hi else 'M')
            out.append((a0 - lo, b0 - lo, kind))
    return out


class Gen4(Gen):
    def prologue(self):
        a, R = self.a, self.R
        R.alloc()
        a('s_cmp_ge_u32 s2, 256')
        a('s_cbranch_scc1 Lend')
        a('s_load_dwordx4 %s, s[0:1], 0' % S(sPTR, 4))
        self.vJunk = R.alloc()
        a('s_getpc_b64 %s' % S(s_t2, 2))
        a('s_lshr_b32 %s, s2, 3' % S(s_t0))
        a('s_lshl_b32 %s, %s, 11' % (S(s_t1), S(s_t0)))
        a('v_lshrrev_b32 %s, 4, v0' % V(self.vJunk))
        a('v_lshl_add_u32 %s, %s, 7, %s' % (V(self.vJunk), V(self.vJunk), S(s_t1)))
        a.one(nodep('global_load_dword %s, %s, %s' % (V(self.vJunk), V(self.vJunk), S(s_t2, 2))))
        self.vL = vL = R.alloc()
        self.vL16 = R.alloc()
        self.vZero = R.alloc()
        self.vTag = R.alloc(2)
        if self.o.get('ts'):
            self.vTS = R.alloc()
            a('v_mov_b32 %s, 0' % V(self.vTS))
        t0, t1, t2, t3 = [R.alloc() for _ in range(4)]
        a('v_lshrrev_b32 %s, 6, v0' % V(t0))
        a('v_and_b32 %s, 63, v0' % V(vL))
        a('v_readfirstlane_b32 %s, %s' % (S(s_w), V(t0)))
        a('s_and_b32 %s, %s, 3' % (S(s_rl), S(s_t0)))
        a('s_lshr_b32 %s, %s, 2' % (S(s_p), S(s_t0)))
        a('s_and_b32 %s, s2, 7' % S(s_t1))
        a('s_lshl_b32 %s, %s, 2' % (S(s_r), S(s_t1)))
        a('s_add_u32 %s, %s, %s' % (S(s_r), S(s_r), S(s_rl)))
        self.vWd = [R.alloc(), R.alloc()]
        self.vXd = [R.alloc() for _ in range(3)]
        a('v_lshrrev_b32 %s, 3, %s' % (V(t0), V(vL)))
        a('v_and_b32 %s, 7, %s' % (V(t1), V(vL)))
        a('v_lshrrev_b32 %s, 4, %s' % (V(t2), V(vL)))
        u0, u1 = R.alloc(), R.alloc()
        a('v_and_b32 %s, 1, %s' % (V(u0), V(t2)))
        a('v_lshlrev_b32 %s, 1, %s' % (V(u0), V(u0)))
        a('v_xor_b32 %s, %s, %s' % (V(u0), V(u0), V(t1)))
        a('v_mul_u32_u24 %s, 2688, %s' % (V(u1), V(t0)))
        a('v_lshl_add_u32 %s, %s, 4, %s' % (V(self.vWd[0]), V(u0), V(u1)))
        a('v_xor_b32 %s, 4, %s' % (V(u0), V(u0)))
        a('v_add_u32 %s, %d, %s' % (V(u1), 8 * 2688 - 1024, V(u1)))
        a('v_lshl_add_u32 %s, %s, 4, %s' % (V(self.vWd[1]), V(u0), V(u1)))
        a('s_mul_i32 %s, %s, %d' % (S(s_t2), S(s_r), 64 * 896))
        a('s_sub_u32 %s, %s, %d' % (S(s_t2), S(s_t2), 16 * 896))
        a('s_and_b32 %s, %s, 1' % (S(s_t3), S(s_w)))
        a('s_lshl_b32 %s, %s, 2' % (S(s_t0), S(s_t3)))
        a('v_xor_b32 %s, %s, %s' % (V(u0), V(t2), V(t1)))
        a('v_xor_b32 %s, %s, %s' % (V(u0), S(s_t0), V(u0)))
        a('v_mul_u32_u24 %s, 896, %s' % (V(u1), V(t0)))
        a('v_lshl_add_u32 %s, %s, 4, %s' % (V(t3), V(u0), V(u1)))
        a('s_mul_i32 %s, %s, 7168' % (S(s_t0), S(s_w)))
        a('s_add_u32 %s, %s, %s' % (S(s_t0), S(s_t0), S(s_t2)))
        a('s_max_i32 %s, %s, 0' % (S(s_t1), S(s_t0)))
        a('v_add_u32 %s, %s, %s' % (V(self.vXd[0]), S(s_t1), V(t3)))
        a('s_add_u32 %s, %s, %d' % (S(s_t1), S(s_t0), 4 * 7168))
        a('v_add_u32 %s, %s, %s' % (V(self.vXd[1]), S(s_t1), V(t3)))
        a('s_mul_i32 %s, %s, 7168' % (S(s_t0), S(s_t3)))
        a('s_add_u32 %s, %s, %s' % (S(s_t0), S(s_t0), S(s_t2)))
        a('s_add_u32 %s, %s, %d' % (S(s_t0), S(s_t0), 8 * 7168))
        a('v_add_u32 %s, %s, %s' % (V(self.vXd[2]), S(s_t0), V(t3)))
        a('s_lshl_b32 %s, %s, 10' % (S(s_oH), S(s_t3)))
        a('s_mul_i32 %s, %s, %d' % (S(s_bW), S(s_w), 16 * 2688))
        a('s_lshl_b32 %s, %s, 7' % (S(s_t0), S(s_p)))
        a('s_add_u32 %s, %s, %s' % (S(s_bW), S(s_bW), S(s_t0)))
        a('s_lshl_b32 %s, %s, 12' % (S(s_m0W), S(s_w)))
        a('s_lshl_b32 %s, %s, 10' % (S(s_m0X), S(s_w)))
        a('s_lshl_b32 %s, %s, 1' % (S(s_kc), S(s_rl)))
        a('s_add_u32 %s, %s, %s' % (S(s_kc), S(s_kc), S(s_p)))
        a('s_cmp_ge_u32 %s, 7' % S(s_kc))
        a('s_cselect_b32 %s, 7, 0' % S(s_t0))
        a('s_sub_u32 %s, %s, %s' % (S(s_kc), S(s_kc), S(s_t0)))
        for r_ in (t0, t1, t2, t3, u0, u1):
            R.release(r_)
        a('s_mov_b32 %s, %d' % (S(sX + 2), 2048 * 896))
        a('s_mov_b32 %s, 0x20000' % S(sX + 3))
        a('s_mov_b32 %s, %d' % (S(sWQ + 2), 448 * 2688))
        a('s_mov_b32 %s, 0x20000' % S(sWQ + 3))
        d0 = self.p1_dma(0)
        a.seq(d0[0])
        a.wait_lg()
        a('s_mov_b64 %s, %s' % (S(sX, 2), S(sPTR, 2)))
        a('s_mov_b64 %s, %s' % (S(sWQ, 2), S(sPTR + 2, 2)))
        self.stamp()
        a('s_load_dwordx4 %s, s[0:1], 16' % S(sPTR + 4, 4))
        a('s_load_dwordx8 %s, s[0:1], 32' % S(sPTR + 8, 8))
        a('s_load_dwordx2 %s, s[0:1], 64' % S(60, 2))
        a('s_load_dwordx2 %s, s[0:1], 80' % S(62, 2))
        a('s_cmp_eq_u32 %s, 7' % S(s_p))
        a('s_cbranch_scc1 Lhelper')
        self.st_helper = (list(a.vmq), list(a.lgq), self.nts)
        a.seq(d0[1:])
        a.seq(self.p1_dma(1))

    def srds(self):
        a = self.a
        a('v_lshlrev_b32 %s, 4, %s' % (V(self.vL16), V(self.vL)))
        a('v_mov_b32 %s, 0' % V(self.vZero))
        self.srd(sWO, sPTR + 4, 448 * 896)
        self.srd(sW1, sPTR + 8, 448 * 3584)
        self.srd(sB1, sPTR + 10, 1792 * 2)
        self.srd(sW2, sPTR + 12, 1792 * 896)
        self.srd(sB2, sPTR + 14, 448 * 2)
        self.srd(sOUT, 60, 2048 * 896)
        a('s_and_b32 %s, s2, 7' % S(s_t0))
        a('s_lshl_b32 %s, %s, 21' % (S(s_t0), S(s_t0)))
        a('s_add_u32 %s, s62, %s' % (S(sWS), S(s_t0)))
        a('s_addc_u32 %s, s63, 0' % S(sWS + 1))
        a('s_mov_b32 %s, %d' % (S(sWS + 2), 2 << 20))
        a('s_mov_b32 %s, 0x20000' % S(sWS + 3))

    def helper(self):
        a, R = self.a, self.R
        a.label('Lhelper')
        a.vmq, a.lgq, nts = self.st_helper
        keep = self.nts
        self.nts = nts
        jk = V(self.vJunk)
        t0, t1 = 20, 21
        a('v_mul_u32_u24 %s, 37, %s' % (V(t0), V(self.vL)))
        a('v_lshrrev_b32 %s, 8, %s' % (V(t0), V(t0)))
        a('v_mul_u32_u24 %s, %d, %s' % (V(t1), 2688 - 7 * 128, V(t0)))
        a('v_lshl_add_u32 %s, %s, 7, %s' % (V(t1), V(self.vL), V(t1)))
        a('v_lshlrev_b32 %s, 7, %s' % (V(t0), V(self.vL)))
        self.lin(s_t1, [(s_rl, 4), (s_w, 1)])
        a('s_and_b32 %s, s2, 1' % S(s_t0))
        a('s_lshl_b32 %s, %s, 5' % (S(s_t0), S(s_t0)))
        a('s_add_u32 %s, %s, %s' % (S(s_t0), S(s_t0), S(s_t1)))
        a('s_mov_b32 exec_hi, 0x1ffff')
        for i in range(4):
            a('s_add_u32 %s, %s, %d' % (S(s_d), S(s_t0), 16 * i))
            a('s_and_b32 %s, %s, 63' % (S(s_d), S(s_d)))
            a('s_mul_i32 %s, %s, %d' % (S(s_d), S(s_d), 7 * 2688))
            a.one(nodep('buffer_load_dword %s, %s, %s, %s offen offset:1792' % (jk, V(t1), S(sWQ, 4), S(s_d))))
        a('s_mov_b64 exec, -1')
        self.srds()
        a('s_mov_b32 exec_hi, 0x1ffff')

        def tl(srd, sbase, off):
            a('s_add_u32 %s, %s, %d' % (S(s_d), S(sbase), off))
            a.one(nodep('buffer_load_dword %s, %s, %s, %s offen' % (jk, V(t0), S(srd, 4), S(s_d))))
        for x in (sWS, sOUT, sB1, sB2):
            a.one(nodep('buffer_load_dword %s, %s, %s, 0 offen' % (jk, V(self.vZero), S(x, 4))))
        a('s_and_b32 %s, s2, 7' % S(s_t0))
        self.lin(s_t2, [(s_t1, 8), (s_t0, 1)])
        a('s_lshr_b32 %s, %s, 1' % (S(s_t0), S(s_t2)))
        a('s_mul_i32 %s, %s, %d' % (S(s_t0), S(s_t0), 49 * 128))
        tl(sWO, s_t0, 0)
        a('s_mul_i32 %s, %s, %d' % (S(s_t0), S(s_t2), 98 * 128))
        for srd in (sW1, sW2):
            tl(srd, s_t0, 0)
            tl(srd, s_t0, 49 * 128)
        self.stamp()
        a('s_mul_i32 %s, %s, %d' % (S(s_t0), S(s_t1), 49 * 128))
        for i in range(4):
            tl(sWO, s_t0, i * 16 * 49 * 128)
        for srd, n in ((sW1, self.o.get('hw1', 16)), (sW2, self.o.get('hw2', 16))):
            for i in range(n):
                tl(srd, s_t0, i * 16 * 49 * 128)
            self.stamp()
        a('s_mov_b64 exec, -1')
        a('s_branch Lfin')
        self.nts = keep

    def late_setup(self):
        a, R = self.a, self.R
        self.srds()
        a('s_lshr_b32 %s, %s, 1' % (S(s_t1), S(s_rl)))
        self.lin(s_p3, [(s_t1, 32 * FS)], FL3)
        a('s_add_u32 %s, %s, %d' % (S(s_t0), S(s_p3), 16 * FS))
        a('s_buffer_load_dwordx2 %s, %s, %s' % (S(s_tag, 2), S(sWS, 4), S(s_t0)))
        a('s_and_b32 %s, %s, 1' % (S(s_j), S(s_rl)))
        a('s_mul_i32 %s, %s, 7' % (S(s_j), S(s_j)))
        a('s_add_u32 %s, %s, %s' % (S(s_j), S(s_j), S(s_p)))
        self.lin(s_p2, [(s_t1, 16 * FS)], FL2)
        self.lin(s_p1, [(s_rl, 8 * FS)], FL1)
        self.lin(s_f1, [(s_p, FS), (s_p1, 1)])
        a('s_add_u32 %s, %s, %d' % (S(s_f2), S(s_f1), FL2 - FL1))
        self.lin(s_f3, [(s_j, FS), (s_p3, 1)])
        self.lin(s_woO, [(s_w, 7168), (s_p, 128)])
        self.lin(s_woM, [(s_w, 1024)], L_WO4)
        self.lin(s_w1O, [(s_w, 16 * 3584), (s_j, 256)])
        self.lin(s_w1M, [(s_w, 4096)])
        self.lin(s_w2O, [(s_w, 16 * 896), (s_p, 128)])
        self.lin(s_w2M, [(s_w, STG_W)], L_STG)
        self.lin(s_w2P, [(s_w, NPARK * 2048)])
        self.lin(s_oL, [(s_rl, 4 * 14336), (s_w, 14336)], WS_O)
        self.lin(s_oS, [(s_p, 2048), (s_oL, 1)])
        self.lin(s_ex, [(s_rl, 49152), (s_w, 1024)], WS_EX)
        self.lin(s_hL, [(s_t1, 4 * 28 * 1024), (s_w, 4096)], WS_H)
        self.lin(s_hLb, [(s_t1, 4 * 28 * 1024), (s_w, 3072)], WS_H + 16384)
        self.lin(s_aM, [(s_w, 4096)])
        self.lin(s_aMb, [(s_w, 3072)], 16384)
        self.lin(s_stL, [(s_t1, 4 * 2048), (s_w, 2048)], WS_ST)
        self.lin(s_h1S, [(s_t1, 4 * 112 * 1024), (s_j, 8192), (s_w, 2048)], WS_H1)
        self.lin(s_h1L, [(s_rl, 2 * 112 * 1024), (s_w, 1024)], WS_H1)
        a('s_lshr_b32 %s, %s, 1' % (S(s_t1), S(s_w)))
        a('s_and_b32 %s, %s, 1' % (S(s_t2), S(s_w)))
        self.lin(s_hS, [(s_rl, 2 * 28 * 1024), (s_t1, 28 * 1024), (s_p, 4096), (s_t2, 256)], WS_H)
        self.lin(s_stS, [(s_rl, 4096), (s_t1, 2048), (s_p, 256), (s_t2, 128)], WS_ST)
        a('s_lshl_b32 %s, %s, 11' % (S(s_kv), S(s_w)))
        a('s_add_u32 %s, %s, 1792' % (S(s_bV), S(s_bW)))
        for sm, k in ((s_M1, 1), (s_M2, 2), (s_M3, 3)):
            m = sum(1 << l for l in range(32) if (l & 3) == k)
            a('s_mov_b32 %s, 0x%x' % (S(sm), m))
            a('s_mov_b32 %s, 0x%x' % (S(sm + 1), m))
        a('s_mov_b32 %s, 0' % S(s_Q3))
        a('s_mov_b32 %s, 0xffff0000' % S(s_Q3 + 1))
        a('s_mov_b32 %s, 0' % S(s_hi))
        a('s_mov_b32 %s, -1' % S(s_hi + 1))
        a('s_mov_b32 %s, 0xffff0000' % S(s_G1))
        a('s_mov_b32 %s, -1' % S(s_G1 + 1))
        self.vF1, self.vF2, self.vF3 = R.alloc(), R.alloc(), R.alloc()
        self.vFs = R.alloc()
        self.vPl = R.alloc(2)
        a('v_min_u32 %s, 6, %s' % (V(self.vF1), V(self.vL)))
        a('v_and_b32 %s, 7, %s' % (V(self.vF2), V(self.vL)))
        a('v_min_u32 %s, 6, %s' % (V(self.vF2), V(self.vF2)))
        a('v_and_or_b32 %s, %s, 8, %s' % (V(self.vF2), V(self.vL), V(self.vF2)))
        a('v_min_u32 %s, 13, %s' % (V(self.vF3), V(self.vL)))
        for x in (self.vF1, self.vF2, self.vF3):
            a('v_mul_u32_u24 %s, %d, %s' % (V(x), FS, V(x)))
        a('v_min_u32 %s, 1, v0' % V(self.vFs))
        a('v_lshlrev_b32 %s, 30, %s' % (V(self.vFs), V(self.vFs)))

    def kc_next(self):
        return ['s_add_u32 %s, %s, 1' % (S(s_kc), S(s_kc)),
                ['s_cmp_eq_u32 %s, 7' % S(s_kc),
                 's_cselect_b32 %s, 0, %s' % (S(s_kc), S(s_kc))]]

    def p1_dma(self, i):
        sl = L_RING + (i % 3) * SL
        tag = 'c%d' % i
        pre = ['s_mul_i32 %s, %s, %d' % (S(s_oW), S(s_kc), 64 * 2688),
               's_add_u32 %s, %s, %s' % (S(s_oW), S(s_oW), S(s_bW)),
               's_lshl_b32 %s, %s, 7' % (S(s_oX), S(s_kc))] + self.kc_next()
        out = [pre]

        def xd(k):
            m = 's_add_u32 m0, %s, %d' % ((S(s_m0X), sl + XO + 4096 * k) if k < 2 else (S(s_oH), sl + XO + 8192))
            return [m, Ins('buffer_load_dwordx4 %s, %s, %s offen lds' % (V(self.vXd[k]), S(sX, 4), S(s_oX)), tag)]
        out.append(xd(0))
        for mat in range(2):
            out.append(['s_add_u32 m0, %s, %d' % (S(s_m0W), sl + mat * (2048 - 896)),
                        Ins('buffer_load_dwordx4 %s, %s, %s offen offset:%d lds' %
                            (V(self.vWd[0]), S(sWQ, 4), S(s_oW), mat * 896), tag)])
            out.append(Ins('buffer_load_dwordx4 %s, %s, %s offen offset:%d lds' %
                           (V(self.vWd[1]), S(sWQ, 4), S(s_oW), 1024 + mat * 896), tag))
            out.append(xd(1 + mat))
        return out

    def wv_dma(self, i):
        return [['s_mul_i32 %s, %s, %d' % (S(s_oW), S(s_kc), 64 * 2688),
                 's_add_u32 %s, %s, %s' % (S(s_oW), S(s_oW), S(s_bV)),
                 's_add_u32 m0, %s, %d' % (S(s_kv), L_WV + i * 8192),
                 Ins('buffer_load_dwordx4 %s, %s, %s offen lds' % (V(self.vWd[0]), S(sWQ, 4), S(s_oW)), 'wv')],
                ['s_add_u32 %s, %s, 1' % (S(s_kc), S(s_kc)),
                 's_cmp_eq_u32 %s, 7' % S(s_kc),
                 's_cselect_b32 %s, 0, %s' % (S(s_kc), S(s_kc)),
                 Ins('buffer_load_dwordx4 %s, %s, %s offen offset:1024 lds' %
                     (V(self.vWd[1]), S(sWQ, 4), S(s_oW)), 'wv')]]

    def p1_setup(self):
        a, R = self.a, self.R
        vL, vL16 = self.vL, self.vL16
        t0, t1, t2, t3, t4 = [R.alloc() for _ in range(5)]
        self.vOnes = vOnes = R.alloc(4)
        for i in range(4):
            a('v_mov_b32 %s, 0x3f803f80' % V(vOnes + i))
        a('v_mov_b32 %s, %d' % (V(t4), L_RING + 26624))
        for sl in range(3):
            a('ds_write_b128 %s, %s offset:%d' % (V(t4), V(vOnes, 4), sl * SL))
        self.aW, self.aWv = R.alloc(), R.alloc()
        a('v_bfe_u32 %s, %s, 2, 2' % (V(t0), V(vL)))
        a('v_bfe_u32 %s, %s, 4, 1' % (V(t1), V(vL)))
        a('v_lshl_add_u32 %s, %s, 3, %s' % (V(t2), V(t1), V(t0)))
        a('v_lshlrev_b32 %s, 7, %s' % (V(t2), V(t2)))
        a('v_bfe_u32 %s, %s, 3, 1' % (V(t0), V(vL)))
        a('v_lshl_or_b32 %s, %s, 1, %s' % (V(t0), V(t1), V(t0)))
        a('v_xor_b32 %s, %s, %s' % (V(t0), S(s_w), V(t0)))
        a('v_lshl_add_u32 %s, %s, 5, %s' % (V(t2), V(t0), V(t2)))
        a('v_and_b32 %s, 3, %s' % (V(t1), V(vL)))
        a('v_lshl_add_u32 %s, %s, 3, %s' % (V(t2), V(t1), V(t2)))
        a('v_lshrrev_b32 %s, 5, %s' % (V(t3), V(vL)))
        a('v_lshl_add_u32 %s, %s, 11, %s' % (V(self.aWv), V(t3), V(t2)))
        a('v_lshl_add_u32 %s, %s, 12, %s' % (V(self.aW), V(t3), V(t2)))
        a('v_add_u32 %s, %d, %s' % (V(self.aW), L_RING, V(self.aW)))
        self.aX = [R.alloc(), R.alloc()]
        self.aXh = [R.alloc(), R.alloc()]
        self.aXo = [R.alloc(), R.alloc()]
        a('v_and_b32 %s, 15, %s' % (V(t0), V(vL)))
        a('v_lshrrev_b32 %s, 4, %s' % (V(t1), V(vL)))
        a('v_lshrrev_b32 %s, 1, %s' % (V(t2), V(t0)))
        a('v_xor_b32 %s, %s, %s' % (V(t1), V(t1), V(t2)))
        a('v_lshlrev_b32 %s, 4, %s' % (V(t1), V(t1)))
        a('v_lshl_add_u32 %s, %s, 7, %s' % (V(t1), V(t0), V(t1)))
        a('v_add_u32 %s, %d, %s' % (V(self.aX[0]), L_RING + XO, V(t1)))
        a('v_xor_b32 %s, 64, %s' % (V(self.aX[1]), V(self.aX[0])))
        a('v_cmp_eq_u32 vcc, 0, %s' % V(t0))
        a('s_add_u32 %s, %s, 2048' % (S(s_t0), S(s_kv)))
        for s in range(2):
            a('v_cndmask_b32 %s, %s, %s, vcc' % (V(self.aXh[s]), V(self.aX[s]), V(t4)))
            a('v_add_u32 %s, %s, %s' % (V(self.aXo[s]), S(s_t0), V(self.aX[s])))
        self.vBp, self.vBc, self.vMP = R.alloc(4), R.alloc(4), R.alloc(4)
        a('v_lshrrev_b32 %s, 4, %s' % (V(t1), V(vL)))
        a('v_lshlrev_b32 %s, 2, %s' % (V(t1), V(t1)))
        a('v_sub_u32 %s, %s, %s' % (V(t1), V(t0), V(t1)))
        a('v_mov_b32 %s, %s' % (V(t4), f32(-1e30)))
        for k, (base, add) in enumerate(((self.vBp, 16), (self.vBc, 0))):
            for r in range(4):
                mp = self.vMP + 2 * k + (r >> 1)
                a('v_add_u32 %s, %d, %s' % (V(t2), add - r, V(t1)))
                a('v_and_b32 %s, 0xfffffff1, %s' % (V(t2), V(t2)))
                a('v_mov_b32 %s, 0x%x' % (V(t3), 0xffff0000 if r & 1 else 0xffff))
                a('v_cmp_eq_u32 vcc, 0, %s' % V(t2))
                a('v_cndmask_b32 %s, %s, %s, vcc' % (V(base + r), V(t4), V(self.vZero)))
                a('v_cndmask_b32 %s, %s, %s, vcc' % (V(mp), V(mp if r & 1 else self.vZero), V(t3)))
        a('s_or_b32 %s, %s, %s' % (S(s_t0), S(s_w), S(s_r)))
        a('s_cmp_eq_u32 %s, 0' % S(s_t0))
        a('s_cselect_b32 %s, %s, 0' % (S(s_t0), f32(-1e30)))
        for r in range(4):
            a('v_min_f32 %s, %s, %s' % (V(self.vBp + r), S(s_t0), V(self.vBp + r)))
        self.aSt, self.aSo, self.aSv, self.aQw, self.aQr, self.aVw, self.aVr = [R.alloc() for _ in range(7)]
        a('v_lshlrev_b32 %s, 2, %s' % (V(t1), V(t0)))
        a('v_add_u32 %s, %d, %s' % (V(self.aSt), L_STAT, V(t1)))
        self.lin(s_t0, [(s_w, 64)], 64)
        a('v_add_u32 %s, %s, %s' % (V(self.aSo), S(s_t0), V(self.aSt)))
        a('v_and_b32 %s, 0x30, %s' % (V(t1), V(vL)))
        a('v_add_u32 %s, %d, %s' % (V(self.aSv), L_STAT, V(t1)))
        a('v_lshrrev_b32 %s, 1, %s' % (V(t1), V(t1)))
        a('v_mul_u32_u24 %s, %d, %s' % (V(t2), QP, V(t0)))
        a('v_add3_u32 %s, %s, %s, %s' % (V(t1), V(t1), V(t2), self.sconst(L_Q, s_t0)))
        a('s_lshl_b32 %s, %s, 5' % (S(s_t0), S(s_w)))
        a('v_add_u32 %s, %s, %s' % (V(self.aQw), S(s_t0), V(t1)))
        a('s_mul_i32 %s, %s, %d' % (S(s_t0), S(s_w), 16 * QP))
        a('v_add_u32 %s, %s, %s' % (V(self.aQr), S(s_t0), V(t1)))
        a('v_lshlrev_b32 %s, 3, %s' % (V(t1), V(vL)))
        self.lin(s_t0, [(s_w, 2560)], L_VS)
        a('v_add_u32 %s, %s, %s' % (V(self.aVw), S(s_t0), V(t1)))
        self.lin(s_t0, [(s_w, 512)], L_VS)
        a('v_add_u32 %s, %s, %s' % (V(self.aVr), S(s_t0), V(t1)))
        self.vXr = R.alloc(8)
        self.aXr = R.alloc(4)
        a('v_lshrrev_b32 %s, 5, %s' % (V(t1), V(vL)))
        a('v_lshrrev_b32 %s, 1, %s' % (V(t2), V(t0)))
        a('v_xor_b32 %s, %s, %s' % (V(t1), V(t1), V(t2)))
        a('v_lshlrev_b32 %s, 4, %s' % (V(t1), V(t1)))
        a('v_bfe_u32 %s, %s, 4, 1' % (V(t2), V(vL)))
        a('v_lshl_add_u32 %s, %s, 3, %s' % (V(t1), V(t2), V(t1)))
        a('v_lshl_add_u32 %s, %s, 7, %s' % (V(t1), V(t0), V(t1)))
        a('s_add_u32 %s, %s, %d' % (S(s_t0), S(s_kv), L_RING + XO + 2048))
        for t in range(4):
            a('v_xor_b32 %s, %d, %s' % (V(t2), 32 * t, V(t1)))
            a('v_add_u32 %s, %s, %s' % (V(self.aXr + t), S(s_t0), V(t2)))
        self.vWOd = R.alloc()
        a('v_lshrrev_b32 %s, 4, %s' % (V(t0), V(vL)))
        a('v_lshlrev_b32 %s, 5, %s' % (V(t1), V(t0)))
        a('v_and_b32 %s, 0x70, %s' % (V(t2), V(vL16)))
        a('v_xor_b32 %s, %s, %s' % (V(t1), V(t1), V(t2)))
        a('v_lshrrev_b32 %s, 3, %s' % (V(t3), V(vL)))
        a('v_mul_u32_u24 %s, 896, %s' % (V(t3), V(t3)))
        a('v_add_u32 %s, %s, %s' % (V(self.vWOd), V(t1), V(t3)))
        self.vW2d = [R.alloc(), R.alloc()]
        a('v_and_b32 %s, 1, %s' % (V(t1), V(t0)))
        a('v_lshlrev_b32 %s, 6, %s' % (V(t1), V(t1)))
        a('v_xor_b32 %s, %s, %s' % (V(t1), V(t1), V(t2)))
        a('v_add_u32 %s, %s, %s' % (V(self.vW2d[0]), V(t1), V(t3)))
        a('v_add_u32 %s, %d, %s' % (V(self.vW2d[1]), 8 * 896 - 1024, V(self.vW2d[0])))
        self.vW1d = [R.alloc() for _ in range(4)]
        a('v_lshlrev_b32 %s, 6, %s' % (V(t1), V(t0)))
        a('v_and_b32 %s, 0xf0, %s' % (V(t2), V(vL16)))
        a('v_xor_b32 %s, %s, %s' % (V(t1), V(t1), V(t2)))
        a('v_mul_u32_u24 %s, 3584, %s' % (V(t0), V(t0)))
        a('v_add_u32 %s, %s, %s' % (V(self.vW1d[0]), V(t0), V(t1)))
        for i in range(1, 4):
            a('v_add_u32 %s, %d, %s' % (V(self.vW1d[i]), i * (4 * 3584 - 1024), V(self.vW1d[0])))
        self.aWO = [R.alloc() for _ in range(4)]
        a('v_lshrrev_b32 %s, 2, %s' % (V(t0), V(vL)))
        a('v_bfe_u32 %s, %s, 3, 2' % (V(t1), V(vL)))
        a('v_lshlrev_b32 %s, 5, %s' % (V(t1), V(t1)))
        a('v_and_b32 %s, 3, %s' % (V(t2), V(vL)))
        a('v_lshl_or_b32 %s, %s, 3, %s' % (V(t1), V(t2), V(t1)))
        a('v_lshl_add_u32 %s, %s, 7, %s' % (V(t0), V(t0), V(t1)))
        a('v_add_u32 %s, %d, %s' % (V(t0), L_WO4, V(t0)))
        for t in range(4):
            a('v_xor_b32 %s, %d, %s' % (V(self.aWO[t]), 32 * t, V(t0)))
        for r_ in (t0, t1, t2, t3, t4):
            R.release(r_)

    def XF(self, n, j):
        k = 5 * n + j
        return A(4 * k, 4) if k < 64 else V(self.xv + 4 * (k - 64), 4)

    def p1_reads(self, i, s, W, Xo):
        sl = (i % 3) * SL
        n = 2 * i + s
        out = ['ds_read_b128 %s, %s offset:%d' % (V(Xo, 4), V(self.aXo[s]), sl),
               'ds_read_b128 %s, %s offset:%d' % (self.XF(n, 0), V(self.aXh[s]), sl)]

        def w(mat):
            off = sl + s * 8192 + mat * 2048
            return ['ds_read_b64_tr_b16 %s, %s offset:%d' % (V(W[mat] + 2 * h, 2), V(self.aW), off + 512 * h)
                    for h in range(2)]
        out += w(0)
        for j in range(1, 5):
            out.append('ds_read_b128 %s, %s offset:%d' % (self.XF(n, j), V(self.aX[s]), sl + 2048 * j))
        out += w(1)
        return out

    def p1_mfma(self, n, W, Xo):
        def mm(d, x, y):
            return MF16 % (V(d, 4), x, y, '0' if n == 0 else V(d, 4))
        out = [mm(self.XXo, V(Xo, 4), V(Xo, 4)),
               mm(self.RS, V(self.vOnes, 4), V(Xo, 4)),
               mm(self.XXh, self.XF(n, 0), self.XF(n, 0))]
        for j in range(5):
            out.append(mm(self.Q[j], V(W[0], 4), self.XF(n, j)))
        for j in range(5):
            out.append(mm(self.K[j], V(W[1], 4), self.XF(n, j)))
        return out

    def wo_reads(self, lo, hi):
        return ['ds_read_b64_tr_b16 %s, %s offset:%d' %
                (A(16 * ks + 4 * t + 2 * sec, 2), V(self.aWO[t]), ks * 4096 + sec * 2048)
                for ks in range(lo, hi) for t in range(4) for sec in range(2)]

    def resid(self, i):
        a = self.a
        rls = [rl for rl in range(4) if (-2 * rl) % 7 == i]
        if not rls:
            return
        L = a.newlabel('Lres')
        a('s_cmp_lg_u32 %s, %d' % (S(s_rl), rls[0]))
        a('s_cbranch_scc1 %s' % L)
        keep = list(a.lgq)
        for t in range(4):
            a('ds_read_b64 %s, %s offset:%d' % (V(self.vXr + 2 * t, 2), V(self.aXr + t), (i % 3) * SL))
        a.force_wait('lgkmcnt(0)')
        a.lgq = keep
        a.label(L)

    def p1(self):
        a, R = self.a, self.R
        self.late_setup()
        self.p1_setup()
        self.Q = [R.alloc(4) for _ in range(5)]
        self.K = [R.alloc(4) for _ in range(5)]
        self.XXo, self.XXh, self.RS = R.alloc(4), R.alloc(4), R.alloc(4)
        self.xv = R.alloc(24)
        W = [[R.alloc(4) for _ in range(2)] for _ in range(2)]
        Xo = [R.alloc(4), R.alloc(4)]
        D = self.o.get('defer', 6)
        defer = []
        wv = [x for i in range(7) for x in self.wv_dma(i)]
        for i in range(7):
            a.wait_vm('c%d' % i)
            a.barrier()
            self.stamp(1 if i in (0, 6) else 2)
            r0 = self.p1_reads(i, 0, W[0], Xo[0])
            r1 = self.p1_reads(i, 1, W[1], Xo[1])
            m1 = self.p1_mfma(2 * i + 1, W[1], Xo[1])
            keep = 13 - D if i < 6 else 13
            mf = defer + self.p1_mfma(2 * i, W[0], Xo[0]) + m1[:keep]
            nd = len(defer)
            defer = m1[keep:]
            st = []
            if nd:
                a.seq(r0[:2])
                st.append((r0[2:], 0, nd))
            else:
                a.seq(r0)
                self.tag_finish()
            st.append((r1, nd, nd + 10))
            if i + 2 < 7:
                d = self.p1_dma(i + 2)
                st.append((d[0], 0, 3))
                st.append((d[1:], 3, len(mf)))
            else:
                st.append((wv[:6] if i == 5 else wv[6:], 0, len(mf)))
            a.slots(mf, st)
            self.resid(i)
        for x in W[1] + Xo:
            R.release(x, 4)
        for r_ in self.vWd + self.vXd + self.aX + self.aXh + self.aXo + [self.aW]:
            R.release(r_)
        R.release(self.aXr, 4)
        self.stamp()
        self.epi1()
        for x in W[0] + self.Q + [self.XXo, self.XXh, self.RS]:
            R.release(x, 4)
        for r_ in (self.aSt, self.aSo, self.aQw):
            R.release(r_)
        for c in range(1, 7):
            a('s_cmp_eq_u32 %s, %d' % (S(s_p), c))
            a('s_cbranch_scc1 Lvar%d' % c)
        self.Of = R.alloc(8)
        st0 = (list(a.vmq), list(a.lgq), self.nts, set(R.free))
        ends = []
        for c in range(7):
            a.label('Lvar%d' % c)
            a.vmq, a.lgq, self.nts, R.free = list(st0[0]), list(st0[1]), st0[2], set(st0[3])
            self.attn(c)
            ends.append([o.tag for o in a.vmq])
            if c < 6:
                a('s_branch Ljoin')
        a.label('Ljoin')
        a.fence()
        assert all(e[-2:] == ['pub', 'pub'] for e in ends)
        R.free = set(st0[3])
        for x in self.K + [self.vBp, self.vBc, self.vMP]:
            R.release(x, 4)
        R.release(self.xv, 24)
        for r_ in (self.aSv, self.aQr, self.aVw, self.aVr, self.aWv, self.vWOd, self.cq):
            R.release(r_)
        self.stamp()

    def epi1(self):
        a, R = self.a, self.R
        Q, K = self.Q, self.K
        e = a
        so, sh = R.alloc(2), R.alloc(2)
        bc = R.alloc(4)

        def sel(dst, src):
            e('v_cndmask_b32 %s, %s, %s, %s' % (V(dst), V(src), V(src + 1), S(s_M1, 2)))
            e('v_cndmask_b32 %s, %s, %s, %s' % (V(dst), V(dst), V(src + 2), S(s_M2, 2)))
            e('v_cndmask_b32 %s, %s, %s, %s' % (V(dst), V(dst), V(src + 3), S(s_M3, 2)))
        sel(so + 1, self.XXo)
        e('v_mul_f32 %s, %s, %s' % (V(so), f32(-1.0 / 448), V(self.RS)))
        for r in range(4):
            e('v_mov_b32_dpp %s, %s row_newbcast:0 row_mask:0xf bank_mask:0xf' % (V(bc + r), V(self.XXh + r)))
        sel(sh + 1, self.XXh)
        sel(sh, bc)
        e('v_mul_f32 %s, %s, %s' % (V(sh), f32(-1.0 / 448), V(sh)))
        for x in (so, sh):
            e('v_mul_f32 %s, %s, %s' % (V(x + 1), f32(1.0 / 448), V(x + 1)))
            e('v_fma_f32 %s, -%s, %s, %s' % (V(x + 1), V(x), V(x), V(x + 1)))
            e('v_max_f32 %s, 0, %s' % (V(x + 1), V(x + 1)))
            e('v_add_f32 %s, %s, %s' % (V(x + 1), f32(1e-5), V(x + 1)))
            e('v_rsq_f32 %s, %s' % (V(x + 1), V(x + 1)))
        e('s_mov_b32 exec_lo, 0x00f0000f')
        e('s_mov_b32 exec_hi, 0xf0000f00')
        e('ds_write2_b32 %s, %s, %s offset0:0 offset1:80' % (V(self.aSo), V(so), V(so + 1)))
        e('ds_write2_b32 %s, %s, %s offset0:0 offset1:80' % (V(self.aSt), V(sh), V(sh + 1)))
        e('s_mov_b64 exec, -1')
        a.barrier()
        sT = [R.alloc(2) for _ in range(5)]
        self.cq = R.alloc()
        for j in (1, 2, 3, 4, 0):
            e('ds_read2_b32 %s, %s offset0:%d offset1:%d' % (V(sT[j], 2), V(self.aSt), 16 * j, 80 + 16 * j))
        e('ds_read_b32 %s, %s offset:320' % (V(self.cq), V(self.aSo)))
        dp = 'row_newbcast:0 row_mask:0xf bank_mask:0xf'
        for j in range(1, 5):
            for r in range(4):
                e('v_fmac_f32_dpp %s, %s, %s %s' % (V(Q[j] + r), V(Q[0] + r), V(sT[j]), dp))
            for h in range(2):
                e('v_cvt_pk_bf16_f32 %s, %s, %s' % (V(Q[j] + h), V(Q[j] + 2 * h), V(Q[j] + 2 * h + 1)))
        for j in range(1, 5):
            e('ds_write_b64 %s, %s offset:%d' % (V(self.aQw), V(Q[j], 2), (j - 1) * 16 * QP))
        for j in (1, 2, 3, 4, 0):
            for r in range(4):
                e('v_fmac_f32_dpp %s, %s, %s %s' % (V(K[j] + r), V(K[0] + r), V(sT[j]), dp))
            for h in range(2):
                e('v_pk_mul_f32 %s, %s, %s op_sel:[0,1] op_sel_hi:[1,1]' %
                  (V(K[j] + 2 * h, 2), V(K[j] + 2 * h, 2), V(sT[j], 2)))
            for h in range(2):
                e('v_cvt_pk_bf16_f32 %s, %s, %s' % (V(K[j] + h), V(K[j] + 2 * h), V(K[j] + 2 * h + 1)))
        for j in (1, 2, 3, 4, 0):
            e('ds_write_b64 %s, %s offset:%d' % (V(self.aQw), V(K[j], 2), L_K - L_Q + j * 16 * QP))
        cs = (28 ** -0.5) * math.log2(math.e)
        e('v_mul_f32 %s, %s, %s' % (V(self.cq), f32(cs), V(self.cq)))
        a.wait_vm('wv')
        a.barrier()
        self.stamp(2)
        R.release(so, 2); R.release(sh, 2); R.release(bc, 4)
        for x in sT:
            R.release(x, 2)

    def attn(self, c):
        a, R = self.a, self.R
        segs = segments(c)
        vL16, cq = self.vL16, self.cq
        GE = {1: s_G1, 2: s_hi, 3: s_Q3}

        class SG:
            pass
        sg = []
        for (g0, g1, kind) in segs:
            s = SG()
            s.g0, s.g1, s.kind = g0, g1, kind
            s.w0 = min(g0, 8)
            s.q, s.kp, s.kc = R.alloc(4), R.alloc(4), R.alloc(4)
            s.sp, s.sc = R.alloc(4), R.alloc(4)
            s.v = R.alloc(4)
            s.P = s.q
            sg.append(s)

        def reads(s):
            o = s.w0
            kb = (L_K - L_Q) // 8
            out = []
            out.append('ds_read2_b64 %s, %s offset0:%d offset1:%d' % (V(s.q, 4), V(self.aQr), o, o + 4))
            out.append('ds_read2_b64 %s, %s offset0:%d offset1:%d' % (V(s.kp, 4), V(aKp), o, o + 4))
            out.append('ds_read2_b64 %s, %s offset0:%d offset1:%d' % (V(s.kc, 4), V(aKc), o, o + 4))
            return out

        def qmask(s):
            out = []
            for h in range(2):
                b = s.w0 + 4 * h
                lo, hi = max(s.g0 - b, 0), min(s.g1 - b, 4)
                for k in range(2):
                    r = V(s.q + 2 * h + k)
                    if lo >= hi:
                        out.append('v_mov_b32 %s, 0' % r)
                    else:
                        assert lo == 0 or hi == 4
                        if lo > 0:
                            out.append('v_cndmask_b32 %s, %s, %s, %s' % (r, V(self.vZero), r, S(GE[lo], 2)))
                        elif hi < 4:
                            out.append('v_cndmask_b32 %s, %s, %s, %s' % (r, r, V(self.vZero), S(GE[hi], 2)))
            return out

        def logits(s):
            return [MF16 % (V(s.sp, 4), V(s.kp, 4), V(s.q, 4), V(self.vBp, 4)),
                    MF16 % (V(s.sc, 4), V(s.kc, 4), V(s.q, 4), V(self.vBc, 4))]

        def compact(s):
            return ['v_max3_f32 %s, %s, %s, %s' % (V(s.v), V(s.sp), V(s.sp + 1), V(s.sc)),
                    'v_max3_f32 %s, %s, %s, %s' % (V(s.v + 2), V(s.sp + 2), V(s.sp + 3), V(s.sc + 2)),
                    'v_max_f32 %s, %s, %s' % (V(s.v), V(s.v), V(s.sc + 1)),
                    'v_max_f32 %s, %s, %s' % (V(s.v + 2), V(s.v + 2), V(s.sc + 3))]

        def allred(op, x, y):
            if len(x) == 2:
                p, q_ = x
                return ['v_permlane16_swap_b32 %s, %s' % (V(p), V(q_)),
                        '%s %s, %s, %s' % (op, V(p), V(p), V(q_)),
                        'v_mov_b32 %s, %s' % (V(q_), V(p)),
                        'v_permlane32_swap_b32 %s, %s' % (V(p), V(q_)),
                        '%s %s, %s, %s' % (op, V(p), V(p), V(q_)),
                        'v_mov_b32 %s, %s' % (V(q_), V(p)),
                        'v_permlane16_swap_b32 %s, %s' % (V(p), V(q_))]
            p = x[0]
            return ['v_mov_b32 %s, %s' % (V(y), V(p)),
                    'v_permlane16_swap_b32 %s, %s' % (V(p), V(y)),
                    '%s %s, %s, %s' % (op, V(p), V(p), V(y)),
                    'v_mov_b32 %s, %s' % (V(y), V(p)),
                    'v_permlane32_swap_b32 %s, %s' % (V(p), V(y)),
                    '%s %s, %s, %s' % (op, V(p), V(p), V(y))]

        def softmax(ss):
            out = []
            m = [s.sp for s in ss]
            for s in ss:
                out.append('v_max_f32 %s, %s, %s' % (V(s.sp), V(s.v), V(s.v + 2)))
            out += allred('v_max_f32', m, ss[0].sp + 1)
            for s in ss:
                out.append('v_mul_f32 %s, %s, %s' % (V(s.sp), V(s.sp), V(cq)))
                for k in (0, 2):
                    out.append('v_fma_f32 %s, %s, %s, -%s' % (V(s.v + k), V(s.v + k), V(cq), V(s.sp)))
            for s in ss:
                for k in (0, 2):
                    out.append('v_exp_f32 %s, %s' % (V(s.v + k), V(s.v + k)))
            for s in ss:
                out.append('v_add_f32 %s, %s, %s' % (V(s.sp), V(s.v), V(s.v + 2)))
            out += allred('v_add_f32', m, ss[0].sp + 1)
            for s in ss:
                out.append('v_rcp_f32 %s, %s' % (V(s.sp), V(s.sp)))
            for s in ss:
                for k in (0, 2):
                    out.append('v_mul_f32 %s, %s, %s' % (V(s.v + k), V(s.v + k), V(s.sp)))
                for k in (0, 2):
                    out.append('v_cvt_pk_bf16_f32 %s, %s, %s' % (V(s.v + k), V(s.v + k), V(s.v + k)))
                for k in range(4):
                    out.append('v_and_b32 %s, %s, %s' % (V(s.P + k), V(s.v + 2 * (k & 1)), V(self.vMP + k)))
            return out
        edge = [s for s in sg if s.kind != 'M']
        mid = [s for s in sg if s.kind == 'M']
        aKp, aKc = R.alloc(), R.alloc()
        a('v_add_u32 %s, %d, %s' % (V(aKp), L_K - L_Q, V(self.aQr)))
        a('v_add_u32 %s, %d, %s' % (V(aKc), L_K - L_Q + 16 * QP, V(self.aQr)))
        for s in edge + mid:
            a.seq(reads(s))
        NB = 4
        wb = [R.alloc(4) for _ in range(NB)]

        def wrd(n):
            return ['ds_read_b64_tr_b16 %s, %s offset:%d' % (V(wb[n % NB] + 2 * h, 2), V(self.aWv), n * 4096 + 512 * h)
                    for h in range(2)]
        for n in range(NB - 1):
            a.seq(wrd(n))
        for s in edge:
            a('v_mov_b32 %s, %s' % (V(s.v + 1), S(s_tag)))
            a('v_mov_b32 %s, %s' % (V(s.v + 3), S(s_tag + 1)))
        for s in edge:
            a.seq(qmask(s))
        Vv = self.K

        def vm(n):
            return [MF16 % (V(Vv[j], 4), self.XF(n, j), V(wb[n % NB], 4), '0' if n == 0 else V(Vv[j], 4))
                    for j in range(5)]

        def exoff(s, mine):
            b = c - 1 if s.kind == 'L' else c
            side = (s.kind == 'L') == mine
            return (2 * b + side) * 4096
        ne = 2 * len(edge)
        mf = [x for s in edge for x in logits(s)] + vm(0) + [x for s in mid for x in logits(s)]
        nm = len(mf)
        for n in range(1, 14):
            mf += vm(n)
        pub = []
        for s in edge:
            pub += compact(s)
            pub.append(['s_add_u32 %s, %s, %d' % (S(s_t0), S(s_ex), exoff(s, True)),
                        Ins('buffer_store_dwordx4 %s, %s, %s, %s offen sc1' %
                            (V(s.v, 4), V(vL16), S(sWS, 4), S(s_t0)), 'ex')])
        pool = [s.kc for s in sg] + [s.sc for s in sg] + [s.kp for s in mid]
        while len(pool) < 10:
            pool.append(R.alloc(4))
        mV, rV = pool[:5], pool[5:10]
        srd_ = []
        for j in range(5):
            srd_.append('ds_read_b128 %s, %s offset:%d' % (V(mV[j], 4), V(self.aSv), 64 * j))
            srd_.append('ds_read_b128 %s, %s offset:%d' % (V(rV[j], 4), V(self.aSv), 320 + 64 * j))

        def probe(s, k):
            return ['s_add_u32 %s, %s, %d' % (S(s_t1 + k), S(s_ex), exoff(s, False)),
                    'buffer_load_dwordx4 %s, %s, %s, %s offen sc1' % (V(s.kp, 4), V(vL16), S(sWS, 4), S(s_t1 + k))]
        wreads = [wrd(n) for n in range(NB - 1, 14)]
        n_ = len(mf)
        st = [([x for s in mid for x in qmask(s)], 0, ne + 3),
              (pub, ne + 2, ne + 2 + 3 * len(edge)),
              (wreads[:1], ne + 1, ne + 2),
              (wreads[1:], nm, nm + 50),
              ([x for s in mid for x in compact(s)] + softmax(mid), nm + 4, nm + 44),
              (self.wo_dma(0, 14), nm + 2, nm + self.o.get('woend', 56)),
              (srd_, nm + 50, nm + 60),
              ([probe(s, k) for k, s in enumerate(edge)], n_ - 2, n_)]
        a.slots(mf, st)
        self.stamp(2)
        cv = R.alloc(2)
        tm = cv + 1
        a('v_mov_b32 %s, %s' % (V(cv), V(Vv[0])))
        a('v_mov_b32 %s, %s' % (V(tm), V(Vv[0])))
        a('v_permlane16_swap_b32 %s, %s' % (V(cv), V(tm)))
        a('v_mov_b32 %s, %s' % (V(tm), V(cv)))
        a('v_permlane32_swap_b32 %s, %s' % (V(cv), V(tm)))
        for j in range(5):
            for h in range(2):
                a('v_pk_fma_f32 %s, %s, %s, %s op_sel_hi:[1,0,1]' %
                  (V(Vv[j] + 2 * h, 2), V(mV[j] + 2 * h, 2), V(cv, 2), V(Vv[j] + 2 * h, 2)))
            for h in range(2):
                a('v_pk_mul_f32 %s, %s, %s' % (V(Vv[j] + 2 * h, 2), V(Vv[j] + 2 * h, 2), V(rV[j] + 2 * h, 2)))
            for h in range(2):
                a('v_cvt_pk_bf16_f32 %s, %s, %s' % (V(Vv[j] + h), V(Vv[j] + 2 * h), V(Vv[j] + 2 * h + 1)))
        for j in range(5):
            a('ds_write_b64 %s, %s offset:%d' % (V(self.aVw), V(Vv[j], 2), 512 * j))
        a.barrier()
        Vf = mV[:4]
        for t in range(4):
            a('ds_read2st64_b64 %s, %s offset0:%d offset1:%d' % (V(Vf[t], 4), V(self.aVr), 5 * t, 5 * t + 1))
        self.stamp(2)
        Lk, Lp, Ld = a.newlabel('Lxk'), a.newlabel('Lxp'), a.newlabel('Lxd')

        def test():
            for k, s in enumerate(edge):
                a('v_cmp_ne_u32 %s, %s, %s' % ('vcc' if k == 0 else S(s_ts, 2), S(s_tag), V(s.kp + 1)))
                a('v_cmp_ne_u32 %s, %s, %s' % (S(s_ts + 2, 2), S(s_tag + 1), V(s.kp + 3)))
                if k:
                    a('s_or_b64 vcc, vcc, %s' % S(s_ts, 2))
                a('s_or_b64 vcc, vcc, %s' % S(s_ts + 2, 2))
        test()
        a('s_cbranch_scc0 %s' % Lk)
        keep = list(a.vmq)
        a('s_mov_b32 %s, 0' % S(s_cnt))
        a.label(Lp)
        for k, s in enumerate(edge):
            a(probe(s, k)[1])
        a('s_add_u32 %s, %s, 1' % (S(s_cnt), S(s_cnt)))
        a('s_cmp_gt_u32 %s, 0x40000' % S(s_cnt))
        a.force_wait('vmcnt(0)')
        a('s_cbranch_scc1 %s' % Lk)
        test()
        a('s_cbranch_scc1 %s' % Lp)
        a.vmq = keep
        a.label(Lk)
        self.stamp(2)
        grp = [self.w1_group(i) for i in range(7)]
        ng = self.o.get('w1e', 2)
        if ng > 0:
            a.seq(grp[0])
        for s in edge:
            a('v_add_f32 %s, %s, %s' % (V(s.v), V(s.v), V(s.kp)))
            a('v_add_f32 %s, %s, %s' % (V(s.v + 2), V(s.v + 2), V(s.kp + 2)))
        prods = []
        free = [rV[j] for j in range(5)] + [mV[4]] + wb
        for t in range(4):
            for s in sg:
                if s.g0 < 4 * t + 4 and s.g1 > 4 * t:
                    prods.append((t, s, free.pop()))
        pm = lambda p: MF16 % (V(p[2], 4), V(Vf[p[0]], 4), V(p[1].P, 4), '0')
        early = [p for p in prods if p[1].kind == 'M']
        late = [p for p in prods if p[1].kind != 'M']
        sm = softmax(edge)
        k2 = 2 * (len(early) - 1)
        a.slots([pm(p) for p in early], [(sm[:k2], 0, len(early) - 1), (sm[k2:], len(early) - 1, len(early))])
        for g_ in grp[1:ng]:
            a.seq(g_)

        def pack(p):
            t, s, r = p
            first = s.g0 <= 4 * t
            d = self.Of + 2 * t if first else r
            return ['v_cvt_pk_bf16_f32 %s, %s, %s' % (V(d + h), V(r + 2 * h), V(r + 2 * h + 1)) for h in range(2)]
        a.slots([pm(p) for p in late], [([x for p in early for x in pack(p)], 0, len(late))])
        for p in late:
            a.seq(pack(p))
        for f in range(2):
            for (t, s, r) in prods:
                if t >> 1 == f and s.g0 > 4 * t:
                    for h in range(2):
                        d = V(self.Of + 2 * t + h)
                        a('v_cndmask_b32 %s, %s, %s, %s' % (d, d, V(r + h), S(GE[s.g0 - 4 * t], 2)))
        for f in range(2):
            a('buffer_store_dwordx4 %s, %s, %s, %s offen offset:%d sc1' %
              (V(self.Of + 4 * f, 4), V(vL16), S(sWS, 4), S(s_oS), f * 1024), 'pub')
        self.w1_rest = grp[ng:]
        a.wait_lg()

    def h1_window(self):
        a, R = self.a, self.R
        vL, vL16 = self.vL, self.vL16
        a.rawbar()
        wr = self.wo_reads(0, 14)
        nw = self.o.get('wor', 64)
        single = []
        for g_ in self.w1_rest[:-1]:
            single += [g_[:3]] + g_[3:]
        n1 = self.o.get('w1f', 12)
        a.seq(weave(wr[:nw], single[:n1]))
        a.wait_vm('pub')
        a.barrier()
        self.flag_store(s_f1)
        R.release(self.Of, 8)
        self.stamp()
        g_ = self.w1_rest[-1]
        a.seq(weave(wr[nw:], single[n1:] + [g_[:3]] + g_[3:]))
        t0, t1 = R.alloc(), R.alloc()
        self.aW2 = [[R.alloc(), R.alloc()] for _ in range(2)]
        aW1 = [R.alloc(), R.alloc()]
        t2 = R.alloc()
        a('v_bfe_u32 %s, %s, 4, 1' % (V(t1), V(vL)))
        a('v_lshlrev_b32 %s, 5, %s' % (V(t2), V(t1)))
        a('v_and_b32 %s, 3, %s' % (V(t1), V(vL)))
        a('v_lshl_add_u32 %s, %s, 3, %s' % (V(t2), V(t1), V(t2)))
        a('v_bfe_u32 %s, %s, 2, 2' % (V(t0), V(vL)))
        a('v_lshrrev_b32 %s, 5, %s' % (V(t1), V(vL)))
        a('v_lshl_add_u32 %s, %s, 2, %s' % (V(t1), V(t1), V(t0)))
        a('v_xor_b32 %s, %s, %s' % (V(t0), S(s_w), V(t0)))
        a('v_lshl_add_u32 %s, %s, 6, %s' % (V(t0), V(t0), V(t2)))
        a('v_lshl_add_u32 %s, %s, 8, %s' % (V(aW1[0]), V(t1), V(t0)))
        a('v_add_u32 %s, %d, %s' % (V(aW1[1]), 224 * 256, V(aW1[0])))
        a('v_lshl_add_u32 %s, %s, 7, %s' % (V(t0), V(t1), V(t2)))
        a('v_bfe_u32 %s, %s, 3, 1' % (V(t1), V(vL)))
        a('v_lshl_add_u32 %s, %s, 6, %s' % (V(t0), V(t1), V(t0)))
        a('v_xor_b32 %s, 64, %s' % (V(t1), V(t0)))
        for k, sm in enumerate((s_w2M, s_w2P)):
            a('v_add_u32 %s, %s, %s' % (V(self.aW2[k][0]), S(sm), V(t0)))
            a('v_add_u32 %s, %s, %s' % (V(self.aW2[k][1]), S(sm), V(t1)))
        self.vB1 = R.alloc()
        self.vB2 = R.alloc(4)
        a('v_and_b32 %s, 31, %s' % (V(t0), V(vL)))
        a('v_lshlrev_b32 %s, 1, %s' % (V(t0), V(t0)))
        a('v_and_b32 %s, 0x70, %s' % (V(t1), V(vL16)))
        self.lin(s_t0, [(s_j, 256), (s_w, 64)])
        a('s_lshl_b32 %s, %s, 7' % (S(s_t1), S(s_p)))
        a('buffer_load_ushort %s, %s, %s, %s offen' % (V(self.vB1), V(t0), S(sB1, 4), S(s_t0)))
        a('buffer_load_dwordx4 %s, %s, %s, %s offen' % (V(self.vB2, 4), V(t1), S(sB2, 4), S(s_t1)))
        a.seq(self.p2_init())
        self.W1 = [R.alloc(4) for _ in range(28)]
        self.w1rd = []
        for ks in range(28):
            row = 32 * (ks >> 1) + 8 * (ks & 1)
            hi = row >= 224
            off = (row - 224 * hi) * 256
            self.w1rd.append('ds_read_b64_tr_b16 %s, %s offset:%d' % (V(self.W1[ks], 2), V(aW1[hi]), off))
            self.w1rd.append('ds_read_b64_tr_b16 %s, %s offset:%d' % (V(self.W1[ks] + 2, 2), V(aW1[hi]), off + 4096))
        self.aW1 = aW1
        for r_ in [t0, t1, t2] + self.vW1d + self.aWO:
            R.release(r_)

    def colsum(self, streams):
        a, R = self.a, self.R
        cs = R.alloc(16)
        t0 = R.alloc()
        mf = [MF32 % (V(cs, 16), V(self.vOnes, 4), V(self.W1[ks], 4), '0' if ks == 0 else V(cs, 16))
              for ks in range(28)]
        a.slots(mf, streams, prewait=False)
        ex = R.alloc(4)
        a('v_lshlrev_b32 %s, 16, %s' % (V(self.vB1), V(self.vB1)))
        a('v_cvt_pk_bf16_f32 %s, %s, %s' % (V(t0), V(cs), V(cs)))
        a('v_lshlrev_b32 %s, 16, %s' % (V(t0), V(t0)))
        a('v_sub_f32 %s, %s, %s' % (V(t0), V(cs), V(t0)))
        a('v_cvt_pk_bf16_f32 %s, %s, %s' % (V(ex), V(cs), V(t0)))
        a('v_cvt_pk_bf16_f32 %s, %s, %s' % (V(ex + 1), V(cs), V(self.vB1)))
        a('v_cvt_pk_bf16_f32 %s, %s, %s' % (V(ex + 2), V(self.vB1), V(self.vZero)))
        a('v_mov_b32 %s, 0' % V(ex + 3))
        for i in range(3):
            a('v_cndmask_b32 %s, %s, %s, %s' % (V(ex + i), V(ex + i), V(self.vZero), S(s_hi, 2)))
        self.vEx = ex
        R.release(cs, 16)
        R.release(t0)
        R.release(self.vB1)

    def split(self, lo, hi):
        it = []
        for k in range(lo, hi):
            d = self.w2_dma(k)
            it += [d[:3], d[3]]
        return it

    def p2(self):
        a, R = self.a, self.R
        vL16 = self.vL16
        acc, vHs, vSs = self.p2acc, self.vHs, self.vSs
        NP = NSTG + NPARK
        self.stamp()
        self.poll(s_p1, self.vF1)
        self.stamp()
        of = [R.alloc(4) for _ in range(14)]
        for h in range(14):
            if h and h % 4 == 0:
                a('s_add_u32 %s, %s, 4096' % (S(s_oL), S(s_oL)))
            a('buffer_load_dwordx4 %s, %s, %s, %s offen offset:%d sc1' %
              (V(of[h], 4), V(vL16), S(sWS, 4), S(s_oL), (h % 4) * 1024))
            if h == 4:
                a.barrier()
            if h > 4:
                a.seq(self.w1rd[(h - 5) * 6:(h - 4) * 6])
        a.seq(self.w1rd[54:])
        mf = [MF16 % (V(acc[t], 4), A(16 * h + 4 * t, 4), V(of[h], 4), V(acc[t], 4))
              for h in range(14) for t in range(4)]
        nb = self.o.get('w2b', 7)
        a.slots(mf, [(self.split(0, nb), 0, 54)], prewait=False, at={20: [('barrier',)]})
        assert nb <= 12
        Hf = self.vXr
        for t in range(4):
            for h in range(2):
                a('v_cvt_pk_bf16_f32 %s, %s, %s' % (V(Hf + 2 * t + h), V(acc[t] + 2 * h), V(acc[t] + 2 * h + 1)))
        ss, su = of[0], of[1]
        st = [Ins('buffer_store_dwordx4 %s, %s, %s, %s offen offset:%d sc1' %
                  (V(Hf + 4 * f, 4), V(vHs), S(sWS, 4), S(s_hS), f * 2048), 'pub') for f in range(2)]
        a.slots([MF16 % (V(ss, 4), V(Hf, 4), V(Hf, 4), '0'),
                 MF16 % (V(ss, 4), V(Hf + 4, 4), V(Hf + 4, 4), V(ss, 4)),
                 MF16 % (V(su, 4), V(self.vOnes, 4), V(Hf, 4), '0'),
                 MF16 % (V(su, 4), V(self.vOnes, 4), V(Hf + 4, 4), V(su, 4))], [(st, 3, 4)])
        a('v_cndmask_b32 %s, %s, %s, %s' % (V(ss), V(ss), V(ss + 1), S(s_M1, 2)))
        a('v_cndmask_b32 %s, %s, %s, %s' % (V(ss), V(ss), V(ss + 2), S(s_M2, 2)))
        a('v_cndmask_b32 %s, %s, %s, %s' % (V(su + 1), V(ss), V(ss + 3), S(s_M3, 2)))
        a('s_mov_b32 exec_lo, 0x00f0000f')
        a('s_mov_b32 exec_hi, 0xf0000f00')
        a('buffer_store_dwordx2 %s, %s, %s, %s offen sc1' % (V(su, 2), V(vSs), S(sWS, 4), S(s_stS)), 'pub')
        a('s_mov_b64 exec, -1')
        self.stamp()
        for x in of + acc:
            R.release(x, 4)
        for r_ in [vHs, vSs] + self.aW1:
            R.release(r_)
        nc = min(nb + self.o.get('w2d', 6), NP)
        self.colsum([(self.split(nb, nc), 0, 26)])
        a.wait_vm('pub')
        a.rawbar()
        self.flag_store(s_f2)
        self.stamp()
        self.w2i = nc

    def h2_window(self):
        a = self.a
        NP = NSTG + NPARK
        npk = self.o.get('npk', NP)
        a.seq(weave([self.w2_reads(k) for k in range(self.w2i)], [self.w2_dma(k) for k in range(self.w2i, NP)]))
        a.wait_lg('w2r_%d' % (NSTG - 1))
        self.w2c = NP + self.o.get('w2c', NSTG)
        for k in range(NP, self.w2c):
            a.seq(self.w2_dma(k))
        for k in range(self.w2i, NP):
            a.seq(self.w2_reads(k))
        a.barrier()

    def build(self):
        a = self.a
        self.prologue()
        self.p1()
        self.h1_window()
        self.p2()
        self.h2_window()
        self.p3()
        self.p4()
        a.label('Lfin')
        if self.o.get('ts'):
            a.fence()
        self.dump_stamps()
        a.label('Lend')
        a('s_endpgm')
        self.helper()
        return self.wrap().replace('.fill 4096, 4', '.fill 8192, 4')


if __name__ == '__main__':
    opt = {}
    out = 'k.s'
    for arg in sys.argv[1:]:
        if '=' in arg:
            k, v = arg.split('=')
            opt[k] = int(v)
        else:
            out = arg
    g = Gen4(opt)
    s = g.build()
    open(out, 'w').write(s)
    print('instructions', g.a.count(), 'nops', g.a.nnop, 'vgpr hi', g.R.hi, 'stamps', g.nts)
```

```python
import re

REG_RE = re.compile(r'(?<![\w.])(-?\|?)([vas])(\d+|\[(\d+):(\d+)\])(?![\w])')


def regs_of(op):
    out = set()
    op = op.strip()
    if op in ('vcc',):
        return {('s', 'vcc')}
    if op in ('vcc_lo', 'vcc_hi'):
        return {('s', 'vcc')}
    if op in ('exec', 'exec_lo', 'exec_hi'):
        return {('s', 'exec')}
    if op == 'm0':
        return {('s', 'm0')}
    for m in REG_RE.finditer(op):
        k = m.group(2)
        if m.group(4) is not None:
            for i in range(int(m.group(4)), int(m.group(5)) + 1):
                out.add((k, i))
        else:
            out.add((k, int(m.group(3))))
    return out


TRANS = ('v_exp_f32', 'v_log_f32', 'v_rcp_f32', 'v_rsq_f32', 'v_sqrt_f32', 'v_sin_f32', 'v_cos_f32')
NODST_S = ('s_cmp', 's_waitcnt', 's_nop', 's_barrier', 's_branch', 's_cbranch', 's_endpgm', 's_sleep',
           's_setprio', 's_bitcmp', 's_setpc')


class Ins:
    __slots__ = ('text', 'mn', 'ops', 'dst', 'src', 'kind', 'passes', 'srcC', 'srcAB', 'dpp', 'tag', 'ws',
                 'stdata', 'sdwa')

    SC = 'sc1'

    def __init__(self, text, tag=None):
        text = text.replace(' @SC', ' ' + Ins.SC).rstrip()
        self.text = text
        self.tag = tag
        t = text.split(';')[0].strip()
        parts = t.split(None, 1)
        self.mn = mn = parts[0]
        rest = parts[1] if len(parts) > 1 else ''
        ops, depth, cur = [], 0, ''
        for ch in rest:
            if ch in '[(':
                depth += 1
            if ch in '])':
                depth -= 1
            if ch == ',' and depth == 0:
                ops.append(cur.strip())
                cur = ''
            else:
                cur += ch
        if cur.strip():
            ops.append(cur.strip())
        mods = ''
        if ops:
            sp = ops[-1].split(None, 1)
            ops[-1] = sp[0]
            mods = sp[1] if len(sp) > 1 else ''
        self.ops = ops
        self.dst, self.src = set(), set()
        self.passes = 0
        self.srcC, self.srcAB, self.stdata = set(), set(), set()
        self.dpp = ('_dpp' in mn) or ('row_' in mods) or ('quad_perm' in mods)
        self.sdwa = '_sdwa' in mn
        self.ws = 1
        R = [regs_of(o) for o in ops]
        allr = set().union(*R) if R else set()
        if mn.startswith('v_mfma'):
            self.kind = 'mfma'
            self.passes = 8 if '32x32x16' in mn else 4
            assert '32x32x16' in mn or '16x16x32' in mn
            self.dst = R[0]
            self.srcAB = R[1] | R[2]
            self.srcC = R[3]
            self.src = self.srcAB | self.srcC
        elif mn.startswith('ds_'):
            self.kind = 'ds'
            if mn.startswith('ds_write') or mn.startswith('ds_add'):
                self.src = allr
            else:
                self.dst = R[0]
                self.src = set().union(*R[1:])
        elif mn.startswith('buffer_') or mn.startswith('global_'):
            self.kind = 'vm'
            if mn in ('buffer_wbl2', 'buffer_inv'):
                pass
            elif ' lds' in (' ' + mods) or '_lds_' in mn:
                self.src = allr | {('s', 'm0')}
                self.kind = 'dma'
            elif '_load' in mn:
                self.dst = R[0]
                self.src = set().union(*R[1:])
            elif '_store' in mn:
                self.src = allr
                d = R[0] if mn.startswith('buffer_') else R[1]
                if 'x4' in mn or 'x3' in mn:
                    self.stdata = d
            elif '_atomic' in mn:
                self.src = allr
                if 'sc0' in mods:
                    self.dst = R[0]
            else:
                raise ValueError(text)
        elif mn.startswith('s_load') or mn.startswith('s_buffer_load') or mn in ('s_memtime', 's_memrealtime'):
            self.kind = 'smem'
            self.dst = R[0]
            self.src = set().union(*R[1:]) if len(R) > 1 else set()
        elif mn.startswith('s_'):
            self.kind = 'salu'
            if mn == 's_nop':
                self.ws = int(ops[0], 0) + 1
            if any(mn.startswith(p) for p in NODST_S):
                self.src = allr
            else:
                self.dst = R[0]
                self.src = set().union(*R[1:]) if len(R) > 1 else set()
                if 'saveexec' in mn:
                    self.dst = self.dst | {('s', 'exec')}
        elif mn.startswith('v_'):
            self.kind = 'valu'
            if mn.startswith('v_permlane') and 'swap' in mn:
                self.dst = allr
                self.src = allr
            else:
                self.dst = R[0]
                self.src = set().union(*R[1:]) if len(R) > 1 else set()
                if mn.startswith('v_fmac') or mn.startswith('v_dot2c') or mn.startswith('v_pk_fmac') or self.dpp \
                        or mn.startswith('v_writelane') or self.sdwa:
                    self.src = self.src | R[0]
                if '_co_' in mn:
                    self.dst = R[0] | R[1]
                    self.src = set().union(*R[2:])
        else:
            raise ValueError('unknown instr: ' + text)

    def is_trans(self):
        return any(self.mn.startswith(t) for t in TRANS)


def vonly(s):
    return {r for r in s if r[0] in 'va'}


def sonly(s):
    return {r for r in s if r[0] == 's'}


def need_states(p, c):
    n = 0
    pv = vonly(p.dst)
    if p.kind == 'valu':
        if c.kind == 'mfma' and pv & c.src:
            n = max(n, 2)
        if c.kind == 'valu':
            if p.is_trans() and not c.is_trans() and pv & c.src:
                n = max(n, 1)
            if (c.mn.startswith('v_permlane') or c.dpp) and pv & c.src:
                n = max(n, 2)
            if (c.mn.startswith('v_readlane') or c.mn.startswith('v_readfirstlane')) and pv & c.src:
                n = max(n, 1)
            if p.sdwa and pv & (c.src | c.dst):
                n = max(n, 1)
            if p.mn.startswith('v_dot') and pv & (c.src | c.dst) and c.mn != p.mn:
                n = max(n, 3)
        ps = sonly(p.dst)
        if ps:
            if c.kind == 'valu' and ps & c.src:
                n = max(n, 4 if (c.mn.startswith('v_readlane') or c.mn.startswith('v_writelane')) else 2)
            if c.kind in ('vm', 'dma') and ps & c.src:
                n = max(n, 5)
            if c.kind in ('salu', 'smem') and ps & c.src:
                n = max(n, 1)
    if p.kind == 'mfma':
        big = 12 if p.passes == 8 else 8
        if c.kind == 'mfma':
            if p.dst & c.srcAB:
                n = max(n, big)
            if p.dst & c.srcC:
                if not (c.srcC == p.dst and c.passes == p.passes):
                    n = max(n, big - 2)
            elif p.dst & c.dst:
                n = max(n, big - 2)
        elif c.kind in ('valu', 'vm', 'dma', 'ds'):
            if p.dst & (c.src | c.dst):
                n = max(n, big)
            if c.kind == 'valu' and vonly(p.srcC) & c.dst:
                n = max(n, 7 if p.passes == 8 else 3)
    if p.kind == 'salu' and ('s', 'm0') in p.dst and c.kind == 'dma':
        n = max(n, 1)
    if p.stdata and p.stdata & c.dst:
        n = max(n, 2)
    return n


class Asm:
    def __init__(self):
        self.out = []
        self.vmq = []
        self.lgq = []
        self.nnop = 0
        self.uid = 0

    def raw(self, s):
        self.out.append(s)

    def label(self, name):
        self.out.append(name + ':')

    def newlabel(self, base):
        self.uid += 1
        return '%s_%d' % (base, self.uid)

    def comment(self, s):
        self.out.append('    ; ' + s)

    def _emit(self, ins):
        dist = 0
        need = 0
        for p in reversed(self.out):
            if isinstance(p, str):
                continue
            if dist >= 12:
                break
            k = need_states(p, ins) - dist
            if k > need:
                need = k
            dist += p.ws
        while need > 0:
            k = min(need, 16)
            self.out.append(Ins('s_nop %d' % (k - 1)))
            self.nnop += 1
            need -= k
        self.out.append(ins)

    def _wait(self, vm=None, lg=None):
        parts = []
        if vm is not None:
            vm = min(vm, 63)
            if vm < len(self.vmq):
                parts.append('vmcnt(%d)' % vm)
                self.vmq = self.vmq[len(self.vmq) - vm:] if vm else []
        if lg is not None:
            if any(o.kind == 'smem' for o in self.lgq):
                lg = 0
            lg = min(lg, 15)
            if lg < len(self.lgq):
                parts.append('lgkmcnt(%d)' % lg)
                self.lgq = self.lgq[len(self.lgq) - lg:] if lg else []
        if parts:
            self._emit(Ins('s_waitcnt ' + ' '.join(parts)))

    def __call__(self, text, tag=None):
        for line in text.split('\n'):
            line = line.strip()
            if not line or line.startswith(';'):
                continue
            self.one(Ins(line, tag))

    def one(self, ins):
        if isinstance(ins, tuple):
            getattr(self, ins[0])(*ins[1:])
            return
        if isinstance(ins, str):
            ins = Ins(ins)
        assert ins.mn != 's_waitcnt', 'use wait helpers'
        touch = ins.src | ins.dst
        vm = lg = None
        for i, o in enumerate(self.vmq):
            if o.dst & touch:
                vm = len(self.vmq) - 1 - i
        for i, o in enumerate(self.lgq):
            if o.dst & touch:
                lg = len(self.lgq) - 1 - i
        self._wait(vm, lg)
        self._emit(ins)
        if ins.kind in ('vm', 'dma'):
            self.vmq.append(ins)
            assert len(self.vmq) <= 63, 'vmcnt overflow'
        elif ins.kind in ('ds', 'smem'):
            self.lgq.append(ins)

    def need(self, ins):
        if isinstance(ins, str):
            ins = Ins(ins)
        touch = ins.src | ins.dst
        vm = lg = None
        for i, o in enumerate(self.vmq):
            if o.dst & touch:
                vm = len(self.vmq) - 1 - i
        for i, o in enumerate(self.lgq):
            if o.dst & touch:
                lg = len(self.lgq) - 1 - i
        self._wait(vm, lg)

    def call(self, fn, *args):
        fn(*args)

    def rawbar(self):
        self._emit(Ins('s_barrier'))

    def slots(self, mf, streams=(), prewait=True, at=None):
        n = len(mf)
        per = [[] for _ in range(n)]
        def cost(it):
            c = 0
            for x in (it if isinstance(it, list) else [it]):
                if isinstance(x, tuple):
                    continue
                x = x if isinstance(x, Ins) else Ins(x)
                c += 8 if (x.kind in ('vm', 'dma') or x.is_trans()) else (2 if x.kind == 'salu' else 4)
            return c

        def isvalu(items):
            k = sum(1 for it in items if not isinstance(it, (list, tuple)) and
                    (it if isinstance(it, Ins) else Ins(it)).kind == 'valu')
            return 2 * k > len(items)
        used = [0] * n
        for items, lo, hi in [t for t in streams if not isvalu(t[0])]:
            hi = min(hi, n)
            k = 0
            for i in range(lo, hi):
                tgt = ((i - lo + 1) * len(items) + (hi - lo) - 1) // (hi - lo)
                while k < tgt:
                    per[i].append(items[k])
                    used[i] += cost(items[k])
                    k += 1
            assert k == len(items)
        for items, lo, hi in [t for t in streams if isvalu(t[0])]:
            hi = min(hi, n)
            B = 4
            while True:
                k = 0
                put = []
                carry = 0
                for i in range(lo, hi):
                    room = B - used[i] + carry
                    while k < len(items) and cost(items[k]) <= room:
                        room -= cost(items[k])
                        put.append((i, items[k]))
                        k += 1
                    carry = room % 4 if room > 0 else 0
                if k == len(items):
                    break
                B += 1
            for i, it in put:
                per[i].append(it)
                used[i] += cost(it)
        mk = lambda x: x if isinstance(x, (Ins, tuple)) else Ins(x)
        isvm = lambda x: isinstance(x, Ins) and x.kind in ('vm', 'dma')
        sal = [[] for _ in range(n + 1)]
        vmg = [[] for _ in range(n + 1)]
        dsl = [[] for _ in range(n + 1)]
        val = [[] for _ in range(n + 1)]
        for i in range(n):
            written = set()
            moved = set()
            movedvm = False
            for it in per[i]:
                grp = [mk(x) for x in (it if isinstance(it, list) else [it])]
                if any(isvm(x) for x in grp):
                    setup = []
                    for x in grp:
                        if isvm(x):
                            late = bool(x.src & written) or movedvm
                            if late:
                                moved |= x.src
                                movedvm = True
                            vmg[i + late].append((setup, x))
                            setup = []
                        else:
                            assert x.kind == 'salu', x.text
                            setup.append(x)
                    assert not setup
                    continue
                for x in grp:
                    if isinstance(x, tuple):
                        dsl[i].append(x)
                    elif x.kind in ('salu', 'smem'):
                        sal[i].append(x)
                    elif x.kind == 'ds':
                        late = bool((x.src | x.dst) & written)
                        if late:
                            moved |= x.src | x.dst
                        dsl[i + late].append(x)
                    else:
                        assert not (x.dst & moved), x.text
                        val[i].append(x)
                        written |= x.dst | vonly(x.src)
        if vmg[0]:
            self.seq(vmg[0][0][0])
        for i in range(n + 1):
            if i < n:
                self.one(mf[i])
                if prewait and i + 1 < n:
                    self.need(mf[i + 1])
                if at and i in at:
                    self.seq(at[i])
            self.seq(sal[i])
            nxt = vmg[i + 1][0][0] if i < n and vmg[i + 1] else []
            for k, (setup, x) in enumerate(vmg[i]):
                if k:
                    self.seq(setup)
                self.one(x)
            self.seq(nxt)
            self.seq(dsl[i])
            self.seq(val[i])

    def seq(self, lst):
        for x in lst:
            if isinstance(x, list):
                self.seq(x)
            else:
                self.one(x)

    def wait_vm(self, tag=None):
        if tag is None:
            self._wait(vm=0)
            return
        n = None
        for i, o in enumerate(self.vmq):
            if o.tag == tag:
                n = len(self.vmq) - 1 - i
        if n is not None:
            self._wait(vm=n)

    def wait_lg(self, tag=None):
        if tag is None:
            self._wait(lg=0)
            return
        n = None
        for i, o in enumerate(self.lgq):
            if o.tag == tag:
                n = len(self.lgq) - 1 - i
        if n is not None:
            self._wait(lg=n)

    def force_wait(self, s):
        self._emit(Ins('s_waitcnt ' + s))
        if 'vmcnt(0)' in s:
            self.vmq = []
        if 'lgkmcnt(0)' in s:
            self.lgq = []

    def barrier(self):
        self._wait(lg=0)
        self._emit(Ins('s_barrier'))

    def fence(self):
        self._emit(Ins('s_nop 11'))

    def text(self):
        lines = []
        for o in self.out:
            lines.append(o if isinstance(o, str) else '    ' + o.text)
        return '\n'.join(lines) + '\n'

    def count(self):
        return sum(1 for o in self.out if not isinstance(o, str))


class Regs:
    def __init__(self, n, first=0):
        self.free = set(range(first, n))
        self.n = n
        self.hi = 0

    def alloc(self, cnt=1, align=None):
        if align is None:
            align = 1 if cnt == 1 else (2 if cnt < 4 else 4)
        for b in range(0, self.n - cnt + 1, align):
            if all((b + i) in self.free for i in range(cnt)):
                for i in range(cnt):
                    self.free.discard(b + i)
                self.hi = max(self.hi, b + cnt)
                return b
        raise RuntimeError('out of registers (%d)' % cnt)

    def release(self, b, cnt=1):
        for i in range(cnt):
            assert (b + i) not in self.free
            self.free.add(b + i)


def rng(k, b, n):
    return '%s%d' % (k, b) if n == 1 else '%s[%d:%d]' % (k, b, b + n - 1)


def V(b, n=1):
    return rng('v', b, n)


def A(b, n=1):
    return rng('a', b, n)


def S(b, n=1):
    return rng('s', b, n)


def weave(main, fill, start=0, end=None):
    if end is None:
        end = len(main)
    out = list(main[:start])
    n = end - start
    k = 0
    for i in range(n):
        out.append(main[start + i])
        tgt = ((i + 1) * len(fill)) // n
        while k < tgt:
            f = fill[k]
            if isinstance(f, list):
                out.extend(f)
            else:
                out.append(f)
            k += 1
    out.extend(main[end:])
    return out
```

```python
import sys
import math
import struct
from asmlib import *

KNAME = 'sequential_preLN__sliding_local_dilated__dense_activation_gelu__prompt_kernel'
MF16 = 'v_mfma_f32_16x16x32_bf16 %s, %s, %s, %s'
MF32 = 'v_mfma_f32_32x32x16_bf16 %s, %s, %s, %s'


def f32(x):
    return '0x%08x' % struct.unpack('<I', struct.pack('<f', x))[0]


WS_O = 0
WS_H = 256 * 1024
WS_ST = 480 * 1024
WS_FL = 496 * 1024
WS_H1 = 512 * 1024
WS_TS = 1536 * 1024
FS = 64
FL1 = WS_FL
FL2 = WS_FL + 4 * 1024
FL3 = WS_FL + 8 * 1024

WBLK = 2064
XOFF = 12 * WBLK
SLOT = XOFF + 10240
L_WO = 3 * SLOT
L_ST = 114688
LDS_BYTES = 163840
L_STG = 114688
STG_W = 11 * 1024
NSTG = 5
NPARK = 14
L_EX = 159744
PITCH = 272
L_HT = 4 * 64 * PITCH
A_EX = 224

sX, sWQ, sWO, sW1, sW2, sB1, sB2, sOUT, sWS = 8, 12, 16, 20, 24, 28, 32, 36, 40
sPTR = 44
s_r, s_rl, s_p, s_w = 64, 65, 66, 67
s_tag = 68
s_woO, s_woM, s_w1O, s_w1M = 70, 71, 72, 73
s_kc, s_oW, s_oX, s_oH = 74, 75, 76, 77
s_bX, s_bH, s_bW = 78, 79, 80
s_m0W, s_m0X, s_m0H = 81, 82, 83
s_M1, s_M2, s_M3, s_Q3 = 84, 86, 88, 90
s_t0, s_t1, s_t2, s_t3 = 92, 93, 94, 95
s_j = 96
s_cnt = 97
s_hi = 98
s_ts = 4
s_d = 3
s_tm, s_to, s_tl, s_ri = 0, 1, 101, 97
s_w2O, s_w2M, s_w2P = 44, 45, 46
s_oO1, s_oO2 = 47, 48
s_f1, s_f2, s_f3, s_p1, s_p2, s_p3 = 49, 50, 51, 52, 53, 54
s_hS, s_stS, s_oL, s_hL, s_stL, s_h1S, s_h1L, s_hLb, s_aM, s_aMb = 55, 56, 57, 58, 59, 60, 61, 62, 63, 100


def nodep(text):
    i = Ins(text, 'junk')
    i.dst = set()
    return i


class Gen:
    def __init__(self, opt):
        self.o = opt
        self.a = Asm()
        self.R = Regs(256)
        self.nts = 0

    def srd(self, d, ptr, size):
        a = self.a
        a('s_mov_b32 %s, %s' % (S(d), S(ptr)))
        a('s_mov_b32 %s, %s' % (S(d + 1), S(ptr + 1)))
        a('s_mov_b32 %s, %d' % (S(d + 2), size))
        a('s_mov_b32 %s, 0x20000' % S(d + 3))

    def lin(self, dst, terms, const=0):
        a = self.a
        first = True
        for reg, k in terms:
            tgt = dst if first else s_t3
            if k == 1:
                if first:
                    a('s_mov_b32 %s, %s' % (S(dst), S(reg)))
                else:
                    a('s_add_u32 %s, %s, %s' % (S(dst), S(dst), S(reg)))
            else:
                a('s_mul_i32 %s, %s, %d' % (S(tgt), S(reg), k))
                if not first:
                    a('s_add_u32 %s, %s, %s' % (S(dst), S(dst), S(s_t3)))
            first = False
        if const:
            a('s_add_u32 %s, %s, %d' % (S(dst), S(dst), const))

    def stamp(self, lvl=1):
        ts = self.o.get('ts', 0)
        if not ts or (lvl > 1 and ts != lvl):
            return
        a = self.a
        a.wait_lg()
        a('s_memrealtime %s' % S(s_ts, 2))
        a('s_memtime %s' % S(s_ts + 2, 2))
        a.wait_lg()
        a('v_writelane_b32 %s, %s, %d' % (V(self.vTS), S(s_ts), self.nts))
        a('v_writelane_b32 %s, %s, %d' % (V(self.vTS), S(s_ts + 2), 32 + self.nts))
        self.nts += 1

    def dump_stamps(self):
        if not self.o.get('ts'):
            return
        a = self.a
        a('s_lshr_b32 %s, s2, 3' % S(s_t0))
        a('s_lshl_b32 %s, %s, 2' % (S(s_t0), S(s_t0)))
        a('s_add_u32 %s, %s, %s' % (S(s_t0), S(s_t0), S(s_w)))
        a('s_lshl_b32 %s, %s, 8' % (S(s_t0), S(s_t0)))
        a('s_add_u32 %s, %s, %d' % (S(s_t0), S(s_t0), WS_TS))
        a('v_lshrrev_b32 v0, 2, %s' % V(self.vL16))
        a('buffer_store_dword %s, v0, %s, %s offen' % (V(self.vTS), S(sWS, 4), S(s_t0)))

    def flag_store(self, soff):
        self.a('buffer_store_dwordx2 %s, %s, %s, %s offen @SC' % (V(self.vTag, 2), V(self.vFs), S(sWS, 4), S(soff)))

    def flag_ins(self, soff):
        return 'buffer_store_dwordx2 %s, %s, %s, %s offen @SC' % (V(self.vTag, 2), V(self.vFs), S(sWS, 4), S(soff))

    def poll(self, soff, vmap):
        a = self.a
        L = a.newlabel('Lpoll')
        Ld = a.newlabel('Lpolld')
        t = self.vPl
        a('s_mov_b32 %s, 0' % S(s_cnt))
        a.label(L)
        a('buffer_load_dwordx2 %s, %s, %s, %s offen sc1' % (V(t, 2), V(vmap), S(sWS, 4), S(soff)))
        a('s_add_u32 %s, %s, 1' % (S(s_cnt), S(s_cnt)))
        a('s_cmp_gt_u32 %s, 0x40000' % S(s_cnt))
        a.force_wait('vmcnt(0)')
        a('s_cbranch_scc1 %s' % Ld)
        a('v_cmp_ne_u64 vcc, %s, %s' % (S(s_tag, 2), V(t, 2)))
        a('s_nop 1')
        a('s_cbranch_vccnz %s' % L)
        a.label(Ld)

    def probe_ins(self, soff, vmap):
        return 'buffer_load_dwordx2 %s, %s, %s, %s offen sc1' % (V(self.vPl, 2), V(vmap), S(sWS, 4), S(soff))

    def check(self, soff, vmap):
        a = self.a
        Lk = a.newlabel('Lok')
        a('v_cmp_ne_u64 vcc, %s, %s' % (S(s_tag, 2), V(self.vPl, 2)))
        a('s_nop 1')
        a('s_cbranch_vccz %s' % Lk)
        keep = list(a.vmq)
        self.poll(soff, vmap)
        a.vmq = keep
        a.label(Lk)

    def prologue(self):
        a, R = self.a, self.R
        R.alloc()
        a('s_cmp_ge_u32 s2, 256')
        a('s_cbranch_scc1 Lend')
        a('s_load_dwordx4 %s, s[0:1], 0' % S(sPTR, 4))
        self.vJunk = R.alloc()
        if self.o.get('codepf', 1):
            a('s_getpc_b64 %s' % S(s_t2, 2))
            a('s_lshr_b32 %s, s2, 3' % S(s_t0))
            a('s_mul_i32 %s, %s, 1280' % (S(s_t0), S(s_t0)))
            a('v_lshrrev_b32 %s, 4, v0' % V(self.vJunk))
            a('v_min_u32 %s, 9, %s' % (V(self.vJunk), V(self.vJunk)))
            a('v_lshl_add_u32 %s, %s, 7, %s' % (V(self.vJunk), V(self.vJunk), S(s_t0)))
            a.one(nodep('global_load_dword %s, %s, %s' % (V(self.vJunk), V(self.vJunk), S(s_t2, 2))))
        self.vL = vL = R.alloc()
        self.vL16 = vL16 = R.alloc()
        self.vZero = R.alloc()
        self.vTag = R.alloc(2)
        if self.o.get('ts'):
            self.vTS = R.alloc()
            a('v_mov_b32 %s, 0' % V(self.vTS))
        t0, t1, t2, t3 = [R.alloc() for _ in range(4)]
        a('v_lshrrev_b32 %s, 6, v0' % V(t0))
        a('v_and_b32 %s, 63, v0' % V(vL))
        a('v_readfirstlane_b32 %s, %s' % (S(s_w), V(t0)))
        a('s_lshr_b32 %s, s2, 3' % S(s_t0))
        a('s_and_b32 %s, %s, 3' % (S(s_rl), S(s_t0)))
        a('s_lshr_b32 %s, %s, 2' % (S(s_p), S(s_t0)))
        a('s_and_b32 %s, s2, 7' % S(s_t1))
        a('s_lshl_b32 %s, %s, 2' % (S(s_r), S(s_t1)))
        a('s_add_u32 %s, %s, %s' % (S(s_r), S(s_r), S(s_rl)))
        self.vWd = [R.alloc(), R.alloc()]
        self.vXd = [R.alloc() for _ in range(4)]
        a('v_lshrrev_b32 %s, 3, %s' % (V(t0), V(vL)))
        a('v_and_b32 %s, 7, %s' % (V(t1), V(vL)))
        a('v_lshrrev_b32 %s, 4, %s' % (V(t2), V(vL)))
        u0, u1, u2 = R.alloc(), R.alloc(), R.alloc()
        a('v_and_b32 %s, 1, %s' % (V(u0), V(t2)))
        a('v_lshlrev_b32 %s, 1, %s' % (V(u0), V(u0)))
        a('v_xor_b32 %s, %s, %s' % (V(u0), V(u0), V(t1)))
        a('v_mul_u32_u24 %s, 2688, %s' % (V(u1), V(t0)))
        a('v_min_u32 %s, 6, %s' % (V(u2), V(u0)))
        a('v_lshl_add_u32 %s, %s, 4, %s' % (V(self.vWd[0]), V(u2), V(u1)))
        a('v_xor_b32 %s, 4, %s' % (V(u0), V(u0)))
        a('v_min_u32 %s, 6, %s' % (V(u2), V(u0)))
        a('v_add_u32 %s, %d, %s' % (V(u1), 8 * 2688 - 1024, V(u1)))
        a('v_lshl_add_u32 %s, %s, 4, %s' % (V(self.vWd[1]), V(u2), V(u1)))
        a('s_mul_i32 %s, %s, %d' % (S(s_bX), S(s_r), 64 * 896))
        a('s_sub_u32 %s, %s, %d' % (S(s_t2), S(s_bX), 16 * 896))
        a('v_xor_b32 %s, %s, %s' % (V(u0), V(t2), V(t1)))
        a('v_lshlrev_b32 %s, 4, %s' % (V(u0), V(u0)))
        a('v_mul_u32_u24 %s, 896, %s' % (V(u1), V(t0)))
        a('s_and_b32 %s, %s, 1' % (S(s_t0), S(s_w)))
        a('s_lshl_b32 %s, %s, 6' % (S(s_t0), S(s_t0)))
        a('v_xor_b32 %s, %s, %s' % (V(u2), S(s_t0), V(u0)))
        a('v_add_u32 %s, %s, %s' % (V(t3), V(u1), V(u2)))
        a('v_xor_b32 %s, 64, %s' % (V(u2), V(u2)))
        a('v_add_u32 %s, %s, %s' % (V(u2), V(u1), V(u2)))
        a('s_mul_i32 %s, %s, 7168' % (S(s_t0), S(s_w)))
        a('s_add_u32 %s, %s, %s' % (S(s_t0), S(s_t0), S(s_t2)))
        a('s_max_i32 %s, %s, 0' % (S(s_t1), S(s_t0)))
        a('v_add_u32 %s, %s, %s' % (V(self.vXd[0]), S(s_t1), V(t3)))
        a('s_add_u32 %s, %s, %d' % (S(s_t1), S(s_t0), 3 * 7168))
        a('v_add_u32 %s, %s, %s' % (V(self.vXd[1]), S(s_t1), V(u2)))
        a('s_add_u32 %s, %s, %d' % (S(s_t1), S(s_t0), 6 * 7168))
        a('v_add_u32 %s, %s, %s' % (V(self.vXd[2]), S(s_t1), V(t3)))
        a('v_xor_b32 %s, 64, %s' % (V(u0), V(u0)))
        a('s_add_u32 %s, %s, %d' % (S(s_t1), S(s_t2), 9 * 7168))
        a('v_add3_u32 %s, %s, %s, %s' % (V(self.vXd[3]), V(u1), V(u0), S(s_t1)))
        a('s_mul_i32 %s, %s, 112' % (S(s_bW), S(s_p)))
        a('s_mul_i32 %s, %s, 896' % (S(s_t0), S(s_w)))
        a('s_add_u32 %s, %s, %s' % (S(s_bW), S(s_bW), S(s_t0)))
        a('s_mul_i32 %s, %s, %d' % (S(s_m0W), S(s_w), WBLK))
        a('s_lshl_b32 %s, %s, 10' % (S(s_m0H), S(s_w)))
        a('s_lshl_b32 %s, %s, 11' % (S(s_m0X), S(s_w)))
        a('s_lshl_b32 %s, %s, 1' % (S(s_kc), S(s_rl)))
        a('s_add_u32 %s, %s, %s' % (S(s_kc), S(s_kc), S(s_p)))
        a('s_cmp_ge_u32 %s, 7' % S(s_kc))
        a('s_cselect_b32 %s, 7, 0' % S(s_t0))
        a('s_sub_u32 %s, %s, %s' % (S(s_kc), S(s_kc), S(s_t0)))
        for r_ in (t0, t1, t2, t3, u0, u1, u2):
            R.release(r_)
        a('s_mov_b32 %s, %d' % (S(sX + 2), 2048 * 896))
        a('s_mov_b32 %s, 0x20000' % S(sX + 3))
        a('s_mov_b32 %s, %d' % (S(sWQ + 2), 448 * 2688))
        a('s_mov_b32 %s, 0x20000' % S(sWQ + 3))
        d0 = self.p1_dma(0)
        a.seq(d0[0])
        a.wait_lg()
        a('s_mov_b64 %s, %s' % (S(sX, 2), S(sPTR, 2)))
        a('s_mov_b64 %s, %s' % (S(sWQ, 2), S(sPTR + 2, 2)))
        self.stamp()
        a('s_load_dwordx4 %s, s[0:1], 16' % S(sPTR + 4, 4))
        a('s_load_dwordx8 %s, s[0:1], 32' % S(sPTR + 8, 8))
        a('s_load_dwordx2 %s, s[0:1], 64' % S(60, 2))
        a('s_load_dwordx2 %s, s[0:1], 80' % S(62, 2))
        a('s_cmp_eq_u32 %s, 3' % S(s_w))
        a('s_cbranch_scc1 Lnoc0')
        a.seq(d0[1:])
        a.label('Lnoc0')

    def sconst(self, val, sreg):
        self.a('s_mov_b32 %s, %d' % (S(sreg), val))
        return S(sreg)

    def late_setup(self):
        a, R = self.a, self.R
        a('v_lshlrev_b32 %s, 4, %s' % (V(self.vL16), V(self.vL)))
        a('v_mov_b32 %s, 0' % V(self.vZero))
        self.srd(sWO, sPTR + 4, 448 * 896)
        self.srd(sW1, sPTR + 8, 448 * 3584)
        self.srd(sB1, sPTR + 10, 1792 * 2)
        self.srd(sW2, sPTR + 12, 1792 * 896)
        self.srd(sB2, sPTR + 14, 448 * 2)
        self.srd(sOUT, 60, 2048 * 896)
        a('s_and_b32 %s, s2, 7' % S(s_t0))
        a('s_lshl_b32 %s, %s, 21' % (S(s_t0), S(s_t0)))
        a('s_add_u32 %s, s62, %s' % (S(sWS), S(s_t0)))
        a('s_addc_u32 %s, s63, 0' % S(sWS + 1))
        a('s_mov_b32 %s, %d' % (S(sWS + 2), 2 << 20))
        a('s_mov_b32 %s, 0x20000' % S(sWS + 3))
        a('s_lshr_b32 %s, %s, 1' % (S(s_t1), S(s_rl)))
        self.lin(s_p3, [(s_t1, 32 * FS)], FL3)
        a('s_add_u32 %s, %s, %d' % (S(s_t0), S(s_p3), 16 * FS))
        a('s_buffer_load_dwordx2 %s, %s, %s' % (S(s_tag, 2), S(sWS, 4), S(s_t0)))
        a('s_and_b32 %s, %s, 1' % (S(s_j), S(s_rl)))
        a('s_mul_i32 %s, %s, 7' % (S(s_j), S(s_j)))
        a('s_min_u32 %s, %s, 6' % (S(s_t0), S(s_p)))
        a('s_add_u32 %s, %s, %s' % (S(s_j), S(s_j), S(s_t0)))
        self.lin(s_p2, [(s_t1, 16 * FS)], FL2)
        self.lin(s_p1, [(s_rl, 8 * FS)], FL1)
        self.lin(s_f1, [(s_p, FS), (s_p1, 1)])
        a('s_add_u32 %s, %s, %d' % (S(s_f2), S(s_f1), FL2 - FL1))
        self.lin(s_f3, [(s_j, FS), (s_p3, 1)])
        self.lin(s_woO, [(s_w, 7168), (s_t0, 128)])
        self.lin(s_woM, [(s_w, 1024)], L_WO)
        self.lin(s_w1O, [(s_w, 16 * 3584), (s_j, 256)])
        self.lin(s_w1M, [(s_w, 4096)])
        self.lin(s_w2O, [(s_w, 16 * 896), (s_t0, 128)])
        self.lin(s_w2M, [(s_w, STG_W)], L_STG)
        self.lin(s_w2P, [(s_w, NPARK * 2048)])
        self.lin(s_oL, [(s_rl, 65536), (s_w, 16384)], WS_O)
        self.lin(s_hL, [(s_t1, 4 * 28 * 1024), (s_w, 4096)], WS_H)
        self.lin(s_hLb, [(s_t1, 4 * 28 * 1024), (s_w, 3072)], WS_H + 16384)
        self.lin(s_aM, [(s_w, 4096)])
        self.lin(s_aMb, [(s_w, 3072)], 16384)
        self.lin(s_stL, [(s_t1, 4 * 2048), (s_w, 2048)], WS_ST)
        self.lin(s_h1S, [(s_t1, 4 * 112 * 1024), (s_j, 8192), (s_w, 2048)], WS_H1)
        self.lin(s_h1L, [(s_rl, 2 * 112 * 1024), (s_w, 1024)], WS_H1)
        a('s_lshr_b32 %s, %s, 1' % (S(s_t1), S(s_w)))
        a('s_and_b32 %s, %s, 1' % (S(s_t2), S(s_w)))
        self.lin(s_oO1, [(s_rl, 65536), (s_t1, 32768), (s_p, 2048), (s_t2, 1024)], WS_O)
        a('s_add_u32 %s, %s, 16384' % (S(s_oO2), S(s_oO1)))
        self.lin(s_hS, [(s_rl, 2 * 28 * 1024), (s_t1, 28 * 1024), (s_t0, 4096), (s_t2, 256)], WS_H)
        self.lin(s_stS, [(s_rl, 4096), (s_t1, 2048), (s_t0, 256), (s_t2, 128)], WS_ST)
        for sm, k in ((s_M1, 1), (s_M2, 2), (s_M3, 3)):
            m = sum(1 << l for l in range(32) if (l & 3) == k)
            a('s_mov_b32 %s, 0x%x' % (S(sm), m))
            a('s_mov_b32 %s, 0x%x' % (S(sm + 1), m))
        a('s_mov_b32 %s, 0' % S(s_Q3))
        a('s_mov_b32 %s, 0xffff0000' % S(s_Q3 + 1))
        a('s_mov_b32 %s, 0' % S(s_hi))
        a('s_mov_b32 %s, -1' % S(s_hi + 1))
        self.vF1, self.vF2, self.vF3 = R.alloc(), R.alloc(), R.alloc()
        self.vFs = R.alloc()
        self.vPl = R.alloc(2)
        a('v_and_b32 %s, 7, %s' % (V(self.vF1), V(self.vL)))
        a('v_min_u32 %s, 6, %s' % (V(self.vF2), V(self.vF1)))
        a('v_and_or_b32 %s, %s, 8, %s' % (V(self.vF2), V(self.vL), V(self.vF2)))
        a('v_min_u32 %s, 13, %s' % (V(self.vF3), V(self.vL)))
        for x in (self.vF1, self.vF2, self.vF3):
            a('v_mul_u32_u24 %s, %d, %s' % (V(x), FS, V(x)))
        a('v_min_u32 %s, 1, v0' % V(self.vFs))
        a('v_lshlrev_b32 %s, 30, %s' % (V(self.vFs), V(self.vFs)))

    def tag_finish(self):
        a = self.a
        a('s_mul_i32 %s, %s, 0x9E3779B1' % (S(s_tag), S(s_tag)))
        a('s_add_u32 %s, %s, 0x7F4A7C15' % (S(s_tag), S(s_tag)))
        a('s_mul_i32 %s, %s, 0x85EBCA6B' % (S(s_tag + 1), S(s_tag + 1)))
        a('s_add_u32 %s, %s, 0x165667B1' % (S(s_tag + 1), S(s_tag + 1)))
        a('v_mov_b32 %s, %s' % (V(self.vTag), S(s_tag)))
        a('v_mov_b32 %s, %s' % (V(self.vTag + 1), S(s_tag + 1)))

    def p1_dma(self, i):
        sl = (i % 3) * SLOT
        tag = 'c%d' % i
        pre = ['s_mul_i32 %s, %s, %d' % (S(s_oW), S(s_kc), 64 * 2688),
               's_add_u32 %s, %s, %s' % (S(s_oW), S(s_oW), S(s_bW)),
               's_lshl_b32 %s, %s, 7' % (S(s_oX), S(s_kc)),
               's_add_u32 %s, %s, 1' % (S(s_kc), S(s_kc)),
               ['s_cmp_eq_u32 %s, 7' % S(s_kc),
                's_cselect_b32 %s, 0, %s' % (S(s_kc), S(s_kc))]]
        out = [pre]
        for kq in range(4):
            m0x = 's_add_u32 m0, %s, %d' % (S(s_m0H), sl + XOFF + kq * 3072) if kq < 3 else \
                's_mov_b32 m0, %d' % (sl + XOFF + 9 * 1024)
            out.append([m0x, Ins('buffer_load_dwordx4 %s, %s, %s offen lds' % (V(self.vXd[kq]), S(sX, 4), S(s_oX)), tag)])
            out.append(['s_add_u32 m0, %s, %d' % (S(s_m0W), sl + kq * 3 * WBLK),
                        's_add_u32 %s, %s, %d' % (S(s_oH), S(s_oW), kq * 16 * 2688),
                        Ins('buffer_load_dwordx4 %s, %s, %s offen lds' % (V(self.vWd[0]), S(sWQ, 4), S(s_oH)), tag)])
            out.append(Ins('buffer_load_dwordx4 %s, %s, %s offen offset:1024 lds' %
                           (V(self.vWd[1]), S(sWQ, 4), S(s_oH)), tag))
        return out

    def p1_setup(self):
        a, R = self.a, self.R
        vL, vL16 = self.vL, self.vL16
        t0, t1, t2, t3, t4 = [R.alloc() for _ in range(5)]
        self.vOnes = vOnes = R.alloc(4)
        for i in range(4):
            a('v_mov_b32 %s, 0x3f803f80' % V(vOnes + i))
        a('v_min_u32 %s, 11, %s' % (V(t0), V(vL)))
        a('v_mul_u32_u24 %s, %d, %s' % (V(t0), WBLK, V(t0)))
        a('v_add_u32 %s, %d, %s' % (V(t1), 2 * SLOT, V(t0)))
        a('ds_write_b128 %s, %s offset:2048' % (V(t0), V(vOnes, 4)))
        a('ds_write_b128 %s, %s offset:%d' % (V(t0), V(vOnes, 4), SLOT + 2048))
        a('ds_write_b128 %s, %s offset:2048' % (V(t1), V(vOnes, 4)))
        self.aW = [[R.alloc() for _ in range(3)] for _ in range(3)]
        self.aX0 = [[R.alloc() for _ in range(2)] for _ in range(3)]
        self.aX1 = [[R.alloc() for _ in range(2)] for _ in range(3)]
        a('v_bfe_u32 %s, %s, 2, 2' % (V(t0), V(vL)))
        a('v_bfe_u32 %s, %s, 4, 1' % (V(t1), V(vL)))
        a('v_lshl_add_u32 %s, %s, 3, %s' % (V(t2), V(t1), V(t0)))
        a('v_lshlrev_b32 %s, 7, %s' % (V(t2), V(t2)))
        a('v_lshrrev_b32 %s, 5, %s' % (V(t3), V(vL)))
        a('v_mul_u32_u24 %s, %d, %s' % (V(t3), 3 * WBLK, V(t3)))
        a('v_add_u32 %s, %s, %s' % (V(t2), V(t2), V(t3)))
        a('v_bfe_u32 %s, %s, 3, 1' % (V(t0), V(vL)))
        a('v_lshl_or_b32 %s, %s, 1, %s' % (V(t0), V(t1), V(t0)))
        a('v_lshlrev_b32 %s, 5, %s' % (V(t0), V(t0)))
        a('s_and_b32 %s, %s, 1' % (S(s_t0), S(s_w)))
        a('s_mul_i32 %s, %s, 56' % (S(s_t0), S(s_t0)))
        a('v_and_b32 %s, 3, %s' % (V(t1), V(vL)))
        a('v_lshl_add_u32 %s, %s, 3, %s' % (V(t1), V(t1), S(s_t0)))
        a('v_xor_b32 %s, %s, %s' % (V(t3), V(t1), V(t0)))
        a('v_add_u32 %s, %s, %s' % (V(self.aW[0][0]), V(t2), V(t3)))
        a('v_add_u32 %s, 32, %s' % (V(t1), V(t1)))
        a('v_xor_b32 %s, %s, %s' % (V(t3), V(t1), V(t0)))
        a('v_add_u32 %s, %s, %s' % (V(t3), V(t2), V(t3)))
        a('v_mov_b32 %s, 2048' % V(t4))
        a('v_cndmask_b32 %s, %s, %s, %s' % (V(self.aW[0][1]), V(t3), V(t4), S(s_M3, 2)))
        a('v_add_u32 %s, 512, %s' % (V(t3), V(t3)))
        a('v_cndmask_b32 %s, %s, %s, %s' % (V(self.aW[0][2]), V(t3), V(t4), S(s_M3, 2)))
        a('v_and_b32 %s, 15, %s' % (V(t0), V(vL)))
        a('v_lshrrev_b32 %s, 4, %s' % (V(t1), V(vL)))
        a('v_lshrrev_b32 %s, 1, %s' % (V(t2), V(t0)))
        a('v_xor_b32 %s, %s, %s' % (V(t1), V(t1), V(t2)))
        a('v_lshlrev_b32 %s, 4, %s' % (V(t1), V(t1)))
        a('v_lshl_add_u32 %s, %s, 7, %s' % (V(t1), V(t0), V(t1)))
        a('s_lshr_b32 %s, %s, 1' % (S(s_t0), S(s_w)))
        a('s_lshl_b32 %s, %s, 12' % (S(s_t0), S(s_t0)))
        a('s_add_u32 %s, %s, %d' % (S(s_t0), S(s_t0), XOFF))
        a('v_add_u32 %s, %s, %s' % (V(self.aX1[0][0]), S(s_t0), V(t1)))
        a('v_xor_b32 %s, 64, %s' % (V(t1), V(t1)))
        a('v_add_u32 %s, %s, %s' % (V(self.aX1[0][1]), S(s_t0), V(t1)))
        a('v_cmp_eq_u32 vcc, 0, %s' % V(t0))
        for s in range(2):
            a('v_cndmask_b32 %s, %s, %s, vcc' % (V(self.aX0[0][s]), V(self.aX1[0][s]), V(t4)))
        for sl in (1, 2):
            for arr in (self.aW, self.aX0, self.aX1):
                for k in range(len(arr[0])):
                    a('v_add_u32 %s, %d, %s' % (V(arr[sl][k]), sl * SLOT, V(arr[0][k])))
        self.vBp1, self.vBp, self.vBc = R.alloc(4), R.alloc(4), R.alloc(4)
        a('v_lshrrev_b32 %s, 4, %s' % (V(t1), V(vL)))
        a('v_lshlrev_b32 %s, 2, %s' % (V(t1), V(t1)))
        a('v_sub_u32 %s, %s, %s' % (V(t1), V(t0), V(t1)))
        a('v_mov_b32 %s, %s' % (V(t4), f32(-1e30)))
        a('s_lshr_b32 %s, %s, 1' % (S(s_t0), S(s_w)))
        a('s_or_b32 %s, %s, %s' % (S(s_t0), S(s_t0), S(s_r)))
        a('s_cmp_eq_u32 %s, 0' % S(s_t0))
        a('s_cselect_b32 %s, %s, 0' % (S(s_t0), f32(-1e30)))
        for base, add in ((self.vBp, 16), (self.vBc, 0)):
            for r in range(4):
                a('v_add_u32 %s, %d, %s' % (V(t2), add - r, V(t1)))
                a('v_and_b32 %s, 0xfffffff1, %s' % (V(t2), V(t2)))
                a('v_cmp_eq_u32 vcc, 0, %s' % V(t2))
                a('v_cndmask_b32 %s, %s, %s, vcc' % (V(base + r), V(t4), V(self.vZero)))
        for r in range(4):
            a('v_min_f32 %s, %s, %s' % (V(self.vBp1 + r), S(s_t0), V(self.vBp + r)))
        self.aS = aS_w, aS_t, aS_v = R.alloc(), R.alloc(), R.alloc()
        self.lin(s_t0, [(s_w, 384)], L_ST)
        a('v_lshl_add_u32 %s, %s, 2, %s' % (V(aS_t), V(t0), S(s_t0)))
        a('v_and_b32 %s, 0x30, %s' % (V(t1), V(vL)))
        a('v_add_u32 %s, %s, %s' % (V(aS_v), S(s_t0), V(t1)))
        a('v_and_b32 %s, 3, %s' % (V(t1), V(vL)))
        a('v_lshl_add_u32 %s, %s, 2, %s' % (V(aS_w), V(t1), V(aS_v)))
        self.aXr = R.alloc(4)
        a('v_lshrrev_b32 %s, 5, %s' % (V(t1), V(vL)))
        a('v_lshrrev_b32 %s, 1, %s' % (V(t2), V(t0)))
        a('v_xor_b32 %s, %s, %s' % (V(t1), V(t1), V(t2)))
        a('v_lshlrev_b32 %s, 4, %s' % (V(t1), V(t1)))
        a('v_bfe_u32 %s, %s, 4, 1' % (V(t2), V(vL)))
        a('v_lshl_add_u32 %s, %s, 3, %s' % (V(t1), V(t2), V(t1)))
        a('v_lshl_add_u32 %s, %s, 7, %s' % (V(t1), V(t0), V(t1)))
        a('s_add_u32 %s, %s, %d' % (S(s_t0), S(s_m0X), XOFF + 2048))
        for t in range(4):
            a('v_xor_b32 %s, %d, %s' % (V(t2), 32 * t, V(t1)))
            a('v_add_u32 %s, %s, %s' % (V(self.aXr + t), S(s_t0), V(t2)))
        a('s_min_u32 %s, %s, 6' % (S(s_ri), S(s_p)))
        a('s_add_u32 %s, %s, 8' % (S(s_ri), S(s_ri)))
        a('s_sub_u32 %s, %s, %s' % (S(s_ri), S(s_ri), S(s_kc)))
        for _ in range(2):
            a('s_cmp_ge_u32 %s, 7' % S(s_ri))
            a('s_cselect_b32 %s, 7, 0' % S(s_t0))
            a('s_sub_u32 %s, %s, %s' % (S(s_ri), S(s_ri), S(s_t0)))
        self.vWOd = R.alloc()
        a('v_lshrrev_b32 %s, 4, %s' % (V(t0), V(vL)))
        a('v_lshlrev_b32 %s, 5, %s' % (V(t1), V(t0)))
        a('v_and_b32 %s, 0x70, %s' % (V(t2), V(vL16)))
        a('v_xor_b32 %s, %s, %s' % (V(t1), V(t1), V(t2)))
        a('v_lshrrev_b32 %s, 3, %s' % (V(t3), V(vL)))
        a('v_mul_u32_u24 %s, 896, %s' % (V(t3), V(t3)))
        a('v_add_u32 %s, %s, %s' % (V(self.vWOd), V(t1), V(t3)))
        self.vW2d = [R.alloc(), R.alloc()]
        a('v_and_b32 %s, 1, %s' % (V(t1), V(t0)))
        a('v_lshlrev_b32 %s, 6, %s' % (V(t1), V(t1)))
        a('v_xor_b32 %s, %s, %s' % (V(t1), V(t1), V(t2)))
        a('v_add_u32 %s, %s, %s' % (V(self.vW2d[0]), V(t1), V(t3)))
        a('v_add_u32 %s, %d, %s' % (V(self.vW2d[1]), 8 * 896 - 1024, V(self.vW2d[0])))
        self.vW1d = [R.alloc() for _ in range(4)]
        a('v_lshlrev_b32 %s, 6, %s' % (V(t1), V(t0)))
        a('v_and_b32 %s, 0xf0, %s' % (V(t2), V(vL16)))
        a('v_xor_b32 %s, %s, %s' % (V(t1), V(t1), V(t2)))
        a('v_mul_u32_u24 %s, 3584, %s' % (V(t0), V(t0)))
        a('v_add_u32 %s, %s, %s' % (V(self.vW1d[0]), V(t0), V(t1)))
        for i in range(1, 4):
            a('v_add_u32 %s, %d, %s' % (V(self.vW1d[i]), i * (4 * 3584 - 1024), V(self.vW1d[0])))
        self.aWO = [[R.alloc() for _ in range(4)] for _ in range(2)]
        a('v_lshrrev_b32 %s, 2, %s' % (V(t0), V(vL)))
        a('v_bfe_u32 %s, %s, 3, 2' % (V(t1), V(vL)))
        a('v_lshlrev_b32 %s, 5, %s' % (V(t1), V(t1)))
        a('v_and_b32 %s, 3, %s' % (V(t2), V(vL)))
        a('v_lshl_or_b32 %s, %s, 3, %s' % (V(t1), V(t2), V(t1)))
        a('v_lshl_add_u32 %s, %s, 7, %s' % (V(t0), V(t0), V(t1)))
        a('v_mov_b32 %s, %d' % (V(t1), L_WO + 2048))
        a('v_mov_b32 %s, %d' % (V(t2), L_WO))
        a('v_cndmask_b32 %s, %s, %s, %s' % (V(t1), V(t1), V(t2), S(s_Q3, 2)))
        for t in range(4):
            a('v_xor_b32 %s, %d, %s' % (V(t3), 32 * t, V(t0)))
            a('v_add_u32 %s, %s, %s' % (V(self.aWO[0][t]), V(t3), V(t2)))
            a('v_add_u32 %s, %s, %s' % (V(self.aWO[1][t]), V(t3), V(t1)))
        for r_ in (t0, t1, t2, t3, t4):
            R.release(r_)

    def p1_reads(self, i, s, W, X):
        sl = i % 3
        out = []
        out.append('ds_read_b128 %s, %s' % (V(X[0], 4), V(self.aX0[sl][s])))
        out.append('ds_read_b128 %s, %s offset:2048' % (V(X[1], 4), V(self.aX1[sl][s])))
        out.append('ds_read_b128 %s, %s offset:4096' % (V(X[2], 4), V(self.aX1[sl][s])))
        for mat in range(3):
            off = s * 6 * WBLK + mat * WBLK
            aw = self.aW[sl]
            out.append('ds_read_b64_tr_b16 %s, %s offset:%d' % (V(W[mat][0], 2), V(aw[0]), off))
            out.append('ds_read_b64_tr_b16 %s, %s offset:%d' % (V(W[mat][0] + 2, 2), V(aw[0]), off + 512))
            out.append('ds_read_b64_tr_b16 %s, %s offset:%d' % (V(W[mat][1], 2), V(aw[1]), off))
            out.append('ds_read_b64_tr_b16 %s, %s offset:%d' % (V(W[mat][1] + 2, 2), V(aw[2]), off))
        return out

    def p1_mfma(self, first, W, X):
        def mm(d, x, y):
            return MF16 % (V(d, 4), V(x, 4), V(y, 4), '0' if first else V(d, 4))
        out = []
        for j in range(3):
            out.append(mm(self.XX[j], X[j], X[j]))
        for t in range(2):
            for j in range(3):
                out.append(mm(self.Q[j][t], W[0][t], X[j]))
        for t in range(2):
            for j in range(3):
                out.append(mm(self.K[j][t], W[1][t], X[j]))
        for t in (1, 0):
            for j in range(3):
                out.append(mm(self.Vv[j][t], X[j], W[2][t]))
        return out

    def wo_dma(self, lo, hi, tag='wo'):
        return [['s_add_u32 m0, %s, %d' % (S(s_woM), i * 4096),
                 's_add_u32 %s, %s, %d' % (S(s_d), S(s_woO), i * 4 * 7168),
                 Ins('buffer_load_dwordx4 %s, %s, %s offen lds' % (V(self.vWOd), S(sWO, 4), S(s_d)), tag)]
                for i in range(lo, hi)]

    def wo_reads(self, lo, hi):
        return ['ds_read_b64_tr_b16 %s, %s offset:%d' %
                (A(16 * h + 4 * t + 2 * sec, 2), V(self.aWO[sec][t ^ (2 * (h & 1))]), h * 28 * 128)
                for h in range(lo, hi) for t in range(4) for sec in range(2)]

    def w1_group(self, i):
        g = ['s_add_u32 m0, %s, %d' % (S(s_w1M), i * 16384),
             's_add_u32 %s, %s, %d' % (S(s_d), S(s_w1O), i * 64 * 3584)]
        for k in range(4):
            g.append(Ins('buffer_load_dwordx4 %s, %s, %s offen offset:%d lds' %
                         (V(self.vW1d[k]), S(sW1, 4), S(s_d), k * 1024), 'w1'))
        return g

    def w2_slot(self, k):
        if k < NSTG:
            return s_w2M, 0, k * 2048
        if k < NSTG + NPARK:
            return s_w2P, 1, (k - NSTG) * 2048
        return s_w2M, 0, ((k - NSTG - NPARK) % NSTG) * 2048

    def w2_dma(self, k):
        sm, _, off = self.w2_slot(k)
        tag = 'w2_%d' % k
        return ['s_add_u32 m0, %s, %d' % (S(sm), off),
                's_add_u32 %s, %s, %d' % (S(s_d), S(s_w2O), k * 64 * 896),
                Ins('buffer_load_dwordx4 %s, %s, %s offen lds' % (V(self.vW2d[0]), S(sW2, 4), S(s_d)), tag),
                Ins('buffer_load_dwordx4 %s, %s, %s offen offset:1024 lds' % (V(self.vW2d[1]), S(sW2, 4), S(s_d)), tag)]

    def w2_reads(self, k):
        _, ai, off = self.w2_slot(k)
        out = [('wait_vm', 'w2_%d' % k)]
        for u in range(2):
            for sec in range(2):
                out.append(Ins('ds_read_b64_tr_b16 %s, %s offset:%d' %
                               (A(8 * k + 4 * u + 2 * sec, 2), V(self.aW2[ai][u]), off + sec * 1024), 'w2r_%d' % k))
        return out

    def extra_prefetch(self):
        a, R = self.a, self.R
        vL = self.vL
        jk = V(self.vJunk)
        self.vXr = R.alloc(8)
        self.vT, self.vT2 = R.alloc(), R.alloc()
        a('v_lshlrev_b32 %s, 7, %s' % (V(self.vT), V(vL)))
        a('s_add_u32 %s, %s, 1' % (S(s_t0), S(s_p)))
        a('s_and_b32 %s, %s, 6' % (S(s_t0), S(s_t0)))
        a('s_cmp_eq_u32 %s, 0' % S(s_t0))
        a('s_cselect_b32 %s, 0, 0x40000000' % S(s_t0))
        a('v_add_u32 %s, %s, %s' % (V(self.vT2), S(s_t0), V(self.vT)))
        a('s_lshr_b32 %s, %s, 2' % (S(s_t0), S(s_p)))
        self.lin(s_tl, [(s_rl, 2 * 1568 * 128), (s_t0, 1568 * 128)])
        a('s_mul_i32 %s, s2, %d' % (S(s_tm), 49 * 128))
        a('s_lshr_b32 %s, s2, 3' % S(s_to))
        a('s_mul_i32 %s, %s, %d' % (S(s_to), S(s_to), 98 * 128))
        self.touch = {}

        def tl(srd, v, sbase, off):
            return ['s_add_u32 %s, %s, %d' % (S(s_d), S(sbase), off),
                    nodep('buffer_load_dword %s, %s, %s, %s offen' % (jk, V(v), S(srd, 4), S(s_d)))]
        self.tlb = [nodep('buffer_load_dword %s, %s, %s, 0 offen' % (jk, V(self.vZero), S(x, 4)))
                    for x in (sWO, sW1, sW2, sWS, sOUT, sB1, sB2)] if self.o.get('tlb', 1) else []
        if self.o.get('mall', 1):
            m0 = self.o.get('mallit', 0)
            self.touch.setdefault(m0, []).extend([tl(sWO, self.vT, s_to, 0), tl(sWO, self.vT, s_to, 34 * 128),
                                                  tl(sW1, self.vT, s_tm, 0), tl(sW2, self.vT, s_tm, 0)])
        n = self.o.get('l2t', 24)
        l0 = self.o.get('l2it', 2)
        for k in range(n):
            self.touch.setdefault(l0 + k * (6 - l0) // n, []).append(tl(sW1, self.vT2, s_tl, k * 8192))

    def resid(self, i):
        a, R = self.a, self.R
        L = a.newlabel('Lres')
        a('s_cmp_lg_u32 %s, %d' % (S(s_ri), i))
        a('s_cbranch_scc1 %s' % L)
        t0, t1 = R.alloc(), R.alloc()
        keep = list(a.lgq)
        a('v_add_u32 %s, %d, %s' % (V(t0), (i % 3) * SLOT, V(self.aXr)))
        a('v_add_u32 %s, %d, %s' % (V(t1), (i % 3) * SLOT, V(self.aXr + 1)))
        a('ds_read_b64 %s, %s' % (V(self.vXr, 2), V(t0)))
        a('ds_read_b64 %s, %s' % (V(self.vXr + 2, 2), V(t1)))
        a('v_add_u32 %s, %d, %s' % (V(t0), (i % 3) * SLOT, V(self.aXr + 2)))
        a('v_add_u32 %s, %d, %s' % (V(t1), (i % 3) * SLOT, V(self.aXr + 3)))
        a('ds_read_b64 %s, %s' % (V(self.vXr + 4, 2), V(t0)))
        a('ds_read_b64 %s, %s' % (V(self.vXr + 6, 2), V(t1)))
        a.force_wait('lgkmcnt(0)')
        a.lgq = keep
        R.release(t0); R.release(t1)
        a.label(L)

    def p1(self):
        a, R = self.a, self.R
        self.late_setup()
        self.extra_prefetch()
        self.p1_setup()
        self.Q = [[R.alloc(4) for _ in range(2)] for _ in range(3)]
        self.K = [[R.alloc(4) for _ in range(2)] for _ in range(3)]
        self.Vv = [[R.alloc(4) for _ in range(2)] for _ in range(3)]
        self.XX = [R.alloc(4) for _ in range(3)]
        W = [[[R.alloc(4) for _ in range(2)] for _ in range(3)] for _ in range(2)]
        X = [[R.alloc(4) for _ in range(3)] for _ in range(2)]
        a('s_cmp_lg_u32 %s, 3' % S(s_w))
        a('s_cbranch_scc1 LroleA')
        st0 = (list(a.vmq), list(a.lgq), self.nts)
        a.vmq = []
        self.p1_loop(W, X, False)
        a('s_branch Ljoin1')
        a.label('LroleA')
        a.vmq, a.lgq, self.nts = st0
        self.p1_loop(W, X, True)
        a.label('Ljoin1')
        for s in range(2):
            for mat in range(3):
                for t in range(2):
                    R.release(W[s][mat][t], 4)
            for j in range(3):
                R.release(X[s][j], 4)
        for arr in (self.aW, self.aX0, self.aX1):
            for sl in range(3):
                for x in arr[sl]:
                    R.release(x)
        for r_ in self.vWd + self.vXd + [self.vWOd, self.vT, self.vT2]:
            R.release(r_)
        R.release(self.aXr, 4)
        self.stamp()
        self.p1_epilogue()

    def p1_loop(self, W, X, loader):
        a = self.a
        if loader:
            a.seq(self.p1_dma(1))
        else:
            a.seq(self.tlb)
            a.seq(self.touch.get(-1, []))
        D = self.o.get('defer', 8)
        defer = []
        for i in range(7):
            a.wait_vm('c%d' % i)
            if i == 6:
                a.wait_vm('woA')
            a.barrier()
            self.stamp(1 if i in (0, 6) else 2)
            r0 = self.p1_reads(i, 0, W[0], X[0])
            r1 = self.p1_reads(i, 1, W[1], X[1])
            m1 = self.p1_mfma(False, W[1], X[1])
            keep = 21 - D if i < 6 else 21
            mf = defer + self.p1_mfma(i == 0, W[0], X[0]) + m1[:keep]
            nd = len(defer)
            defer = m1[keep:]
            st = []
            if nd:
                a.seq(r0[:3])
                st.append((r0[3:], 0, nd))
            else:
                a.seq(r0)
                self.tag_finish()
            st.append((r1, nd, nd + 15))
            vm = []
            if i == 4:
                vm += self.wo_dma(0, 4, 'woA')
            if i + 2 < 7 and loader:
                d = self.p1_dma(i + 2)
                st.append((d[0], 0, 3))
                vm += d[1:]
            if not loader:
                vm += self.touch.get(i, [])
            if i == 5:
                vm += self.wo_dma(4, 10)
            if i == 6:
                vm += self.wo_dma(10, 14)
                st.append((self.wo_reads(0, 4), nd + 15, len(mf) - 4))
            st.append((vm, 3, len(mf)))
            a.slots(mf, st)
            self.resid(i)
        a.barrier()

    def p1_epilogue(self):
        a, R = self.a, self.R
        Q, K, Vv, XX = self.Q, self.K, self.Vv, self.XX
        aS_w, aS_t, aS_v = self.aS
        e = a
        grp = [self.w1_group(i) for i in range(7)]
        ng = self.o.get('w1e', 4)

        def burst():
            if grp and 7 - len(grp) < ng:
                a.seq(grp.pop(0))
        burst()
        su = [R.alloc() for _ in range(3)]
        sq = [R.alloc() for _ in range(3)]
        for dst, src in ((sq, XX), (su, [Vv[j][1] for j in range(3)])):
            for j in range(3):
                e('v_cndmask_b32 %s, %s, %s, %s' % (V(dst[j]), V(src[j]), V(src[j] + 1), S(s_M1, 2)))
                e('v_cndmask_b32 %s, %s, %s, %s' % (V(dst[j]), V(dst[j]), V(src[j] + 2), S(s_M2, 2)))
                e('v_cndmask_b32 %s, %s, %s, %s' % (V(dst[j]), V(dst[j]), V(src[j] + 3), S(s_M3, 2)))
        for row in range(3):
            for j in range(3):
                e('v_mov_b32_dpp %s, %s row_shr:%d row_mask:0x%x bank_mask:0xf' %
                  (V(sq[j]), V(sq[j]), 12 - 4 * row, 1 << row))
        for j in range(3):
            e('v_mul_f32 %s, %s, %s' % (V(su[j]), f32(-1.0 / 448), V(su[j])))
        for j in range(3):
            e('v_mul_f32 %s, %s, %s' % (V(sq[j]), f32(1.0 / 448), V(sq[j])))
        for j in range(3):
            e('v_fma_f32 %s, -%s, %s, %s' % (V(sq[j]), V(su[j]), V(su[j]), V(sq[j])))
        for j in range(3):
            e('v_max_f32 %s, 0, %s' % (V(sq[j]), V(sq[j])))
        for j in range(3):
            e('v_add_f32 %s, %s, %s' % (V(sq[j]), f32(1e-5), V(sq[j])))
        for j in range(3):
            e('v_rsq_f32 %s, %s' % (V(sq[j]), V(sq[j])))
        e('s_mov_b32 exec_lo, 0xf000f000')
        e('s_mov_b32 exec_hi, 0xf000f000')
        for j in range(3):
            e('ds_write2_b32 %s, %s, %s offset0:%d offset1:%d' % (V(aS_w), V(su[j]), V(sq[j]), j * 32, j * 32 + 16))
        e('s_mov_b64 exec, -1')
        for j in range(3):
            R.release(XX[j], 4)
        sT = [R.alloc(2) for _ in range(3)]
        mV = [R.alloc(4) for _ in range(3)]
        rV = [R.alloc(4) for _ in range(3)]
        for j in (1, 2, 0):
            e('ds_read2_b32 %s, %s offset0:%d offset1:%d' % (V(sT[j], 2), V(aS_t), j * 32, j * 32 + 16))
        for j in range(3):
            e('ds_read_b128 %s, %s offset:%d' % (V(mV[j], 4), V(aS_v), j * 128))
            e('ds_read_b128 %s, %s offset:%d' % (V(rV[j], 4), V(aS_v), j * 128 + 64))
        burst()
        cv = R.alloc(2)
        tm = R.alloc(2)
        for t in range(2):
            e('v_mov_b32 %s, %s' % (V(cv + t), V(Vv[0][t])))
            e('v_mov_b32 %s, %s' % (V(tm + t), V(Vv[0][t])))
        for t in range(2):
            e('v_permlane16_swap_b32 %s, %s' % (V(cv + t), V(tm + t)))
        for t in range(2):
            e('v_mov_b32 %s, %s' % (V(tm + t), V(cv + t)))
        dp = 'row_newbcast:0 row_mask:0xf bank_mask:0xf'
        Qf = [None, R.alloc(4), R.alloc(4)]
        Kf = [R.alloc(4) for _ in range(3)]
        Vf = [R.alloc(6, 2) for _ in range(2)]
        for j in (1, 2):
            for t in range(2):
                for r in range(4):
                    e('v_fmac_f32_dpp %s, %s, %s %s' % (V(Q[j][t] + r), V(Q[0][t] + r), V(sT[j]), dp))
            for t in range(2):
                for h in range(2):
                    e('v_cvt_pk_bf16_f32 %s, %s, %s' % (V(Qf[j] + 2 * t + h), V(Q[j][t] + 2 * h), V(Q[j][t] + 2 * h + 1)))
            for h in range(2):
                e('v_cndmask_b32 %s, %s, %s, %s' % (V(Qf[j] + 2 + h), V(Qf[j] + 2 + h), V(self.vZero), S(s_Q3, 2)))
        for t in range(2):
            e('v_permlane32_swap_b32 %s, %s' % (V(cv + t), V(tm + t)))
        burst()
        for j in (1, 2, 0):
            for t in range(2):
                for r in range(4):
                    e('v_fmac_f32_dpp %s, %s, %s %s' % (V(K[j][t] + r), V(K[0][t] + r), V(sT[j]), dp))
            for t in range(2):
                for h in range(2):
                    e('v_pk_mul_f32 %s, %s, %s op_sel:[0,1] op_sel_hi:[1,1]' %
                      (V(K[j][t] + 2 * h, 2), V(K[j][t] + 2 * h, 2), V(sT[j], 2)))
            for t in range(2):
                for h in range(2):
                    e('v_cvt_pk_bf16_f32 %s, %s, %s' % (V(Kf[j] + 2 * t + h), V(K[j][t] + 2 * h), V(K[j][t] + 2 * h + 1)))
        burst()
        for j in range(3):
            for t in range(2):
                for h in range(2):
                    e('v_pk_fma_f32 %s, %s, %s, %s op_sel:[0,%d,0] op_sel_hi:[1,%d,1]' %
                      (V(Vv[j][t] + 2 * h, 2), V(mV[j] + 2 * h, 2), V(cv, 2), V(Vv[j][t] + 2 * h, 2), t, t))
            for t in range(2):
                for h in range(2):
                    e('v_pk_mul_f32 %s, %s, %s' % (V(Vv[j][t] + 2 * h, 2), V(Vv[j][t] + 2 * h, 2), V(rV[j] + 2 * h, 2)))
        Sg = [None, [K[0][0], K[0][1]], [K[1][0], K[1][1]]]
        vc = []
        for j in range(3):
            for t in range(2):
                for h in range(2):
                    vc.append('v_cvt_pk_bf16_f32 %s, %s, %s' %
                              (V(Vf[t] + 2 * j + h), V(Vv[j][t] + 2 * h), V(Vv[j][t] + 2 * h + 1)))
        cs = (28 ** -0.5) * math.log2(math.e)
        mx = [None, su[0], su[1]]
        m2 = [None, sq[0], sq[1]]
        cq = [None, su[2], sq[2]]
        for j in (2, 1):
            vc.append('v_mul_f32 %s, %s, %s' % (V(cq[j]), f32(cs), V(sT[j] + 1)))
        a.slots([MF16 % (V(Sg[2][0], 4), V(Kf[1], 4), V(Qf[2], 4), V(self.vBp, 4)),
                 MF16 % (V(Sg[2][1], 4), V(Kf[2], 4), V(Qf[2], 4), V(self.vBc, 4)),
                 MF16 % (V(Sg[1][1], 4), V(Kf[1], 4), V(Qf[1], 4), V(self.vBc, 4)),
                 MF16 % (V(Sg[1][0], 4), V(Kf[0], 4), V(Qf[1], 4), V(self.vBp1, 4))], [(vc[:6], 0, 3), (vc[6:], 3, 4)])
        burst()
        for j in (2, 1):
            p, c = Sg[j]
            e('v_max3_f32 %s, %s, %s, %s' % (V(mx[j]), V(p), V(p + 1), V(p + 2)))
            e('v_max3_f32 %s, %s, %s, %s' % (V(m2[j]), V(p + 3), V(c), V(c + 1)))
            e('v_max3_f32 %s, %s, %s, %s' % (V(mx[j]), V(mx[j]), V(c + 2), V(c + 3)))
            e('v_max_f32 %s, %s, %s' % (V(mx[j]), V(mx[j]), V(m2[j])))
            e('v_mov_b32 %s, %s' % (V(m2[j]), V(mx[j])))
        for j in (2, 1):
            e('v_permlane16_swap_b32 %s, %s' % (V(mx[j]), V(m2[j])))
        for j in (2, 1):
            e('v_max_f32 %s, %s, %s' % (V(mx[j]), V(mx[j]), V(m2[j])))
            e('v_mov_b32 %s, %s' % (V(m2[j]), V(mx[j])))
        burst()
        for j in (2, 1):
            e('v_permlane32_swap_b32 %s, %s' % (V(mx[j]), V(m2[j])))
        for j in (2, 1):
            e('v_max_f32 %s, %s, %s' % (V(mx[j]), V(mx[j]), V(m2[j])))
        Pf = [None, Kf[0], Kf[1]]
        O = [None, [Q[0][0], Q[0][1], Q[1][0]], [Q[1][1], Q[2][0], Q[2][1]]]
        sm = {}
        for j in (2, 1):
            c = []
            c.append('v_mul_f32 %s, %s, %s' % (V(mx[j]), V(mx[j]), V(cq[j])))
            for x in Sg[j]:
                for r in range(4):
                    c.append('v_fma_f32 %s, %s, %s, -%s' % (V(x + r), V(x + r), V(cq[j]), V(mx[j])))
            for x in Sg[j]:
                for r in range(4):
                    c.append('v_exp_f32 %s, %s' % (V(x + r), V(x + r)))
            for k, x in enumerate(Sg[j]):
                for h in range(2):
                    c.append('v_cvt_pk_bf16_f32 %s, %s, %s' % (V(Pf[j] + 2 * k + h), V(x + 2 * h), V(x + 2 * h + 1)))
            sm[j] = c

        def pv(j):
            return [MF16 % (V(O[j][2], 4), V(self.vOnes, 4), V(Pf[j], 4), '0')] + \
                   [MF16 % (V(O[j][t], 4), V(Vf[t] + 2 * (j - 1), 4), V(Pf[j], 4), '0') for t in range(2)]
        Of = [None, Qf[1], Qf[2]]

        def fin(j):
            c = ['v_rcp_f32 %s, %s' % (V(O[j][2]), V(O[j][2]))]
            c.append('v_cndmask_b32 %s, %s, %s, %s' % (V(O[j][2] + 1), V(O[j][2]), V(self.vZero), S(s_Q3, 2)))
            for t in range(2):
                for r in range(4):
                    c.append('v_mul_f32 %s, %s, %s' % (V(O[j][t] + r), V(O[j][t] + r), V(O[j][2] + t)))
            for t in range(2):
                for h in range(2):
                    c.append('v_cvt_pk_bf16_f32 %s, %s, %s' %
                             (V(Of[j] + 2 * t + h), V(O[j][t] + 2 * h), V(O[j][t] + 2 * h + 1)))
            c.append(Ins('buffer_store_dwordx4 %s, %s, %s, %s offen @SC' %
                         (V(Of[j], 4), V(self.vL16), S(sWS, 4), S(s_oO2 if j == 2 else s_oO1)), 'pub'))
            return c
        a.seq(sm[2])
        burst()
        a.seq(sm[1][:2])
        a.slots(pv(2), [(sm[1][2:6], 0, 2), (sm[1][6:], 2, 3)])
        f2 = fin(2)
        a.seq(f2[:2])
        a.slots(pv(1), [(f2[2:6], 0, 2), (f2[6:], 2, 3)])
        a.seq(fin(1))
        self.w1_rest = grp
        for r_ in (aS_w, aS_t, aS_v) + tuple(su) + tuple(sq):
            R.release(r_)
        for j in range(3):
            R.release(sT[j], 2); R.release(mV[j], 4); R.release(rV[j], 4); R.release(Kf[j], 4)
            for t in range(2):
                R.release(Q[j][t], 4); R.release(K[j][t], 4); R.release(Vv[j][t], 4)
        R.release(cv, 2); R.release(tm, 2)
        for t in range(2):
            R.release(Vf[t], 6)
        for x in (self.vBp1, self.vBp, self.vBc):
            R.release(x, 4)
        self.Of = Of
        self.stamp()

    def h1_window(self):
        a, R = self.a, self.R
        vL, vL16 = self.vL, self.vL16
        a.wait_vm('wo')
        a.rawbar()
        wr = self.wo_reads(4, 16)
        nw = self.o.get('wor', 64)
        single = []
        for g_ in self.w1_rest:
            single += [g_[:3]] + g_[3:]
        a.seq(weave(wr[:nw], single))
        a.wait_vm('pub')
        a.rawbar()
        self.flag_store(s_f1)
        for j in (1, 2):
            R.release(self.Of[j], 4)
        self.stamp()
        a('s_cmp_eq_u32 %s, 7' % S(s_p))
        a('s_cbranch_scc1 Lfin')
        a.seq(wr[nw:])
        t0, t1 = R.alloc(), R.alloc()
        self.aW2 = [[R.alloc(), R.alloc()] for _ in range(2)]
        aW1 = [R.alloc(), R.alloc()]
        t2 = R.alloc()
        a('v_bfe_u32 %s, %s, 4, 1' % (V(t1), V(vL)))
        a('v_lshlrev_b32 %s, 5, %s' % (V(t2), V(t1)))
        a('v_and_b32 %s, 3, %s' % (V(t1), V(vL)))
        a('v_lshl_add_u32 %s, %s, 3, %s' % (V(t2), V(t1), V(t2)))
        a('v_bfe_u32 %s, %s, 2, 2' % (V(t0), V(vL)))
        a('v_lshrrev_b32 %s, 5, %s' % (V(t1), V(vL)))
        a('v_lshl_add_u32 %s, %s, 2, %s' % (V(t1), V(t1), V(t0)))
        a('v_xor_b32 %s, %s, %s' % (V(t0), S(s_w), V(t0)))
        a('v_lshl_add_u32 %s, %s, 6, %s' % (V(t0), V(t0), V(t2)))
        a('v_lshl_add_u32 %s, %s, 8, %s' % (V(aW1[0]), V(t1), V(t0)))
        a('v_add_u32 %s, %d, %s' % (V(aW1[1]), 224 * 256, V(aW1[0])))
        a('v_lshl_add_u32 %s, %s, 7, %s' % (V(t0), V(t1), V(t2)))
        a('v_bfe_u32 %s, %s, 3, 1' % (V(t1), V(vL)))
        a('v_lshl_add_u32 %s, %s, 6, %s' % (V(t0), V(t1), V(t0)))
        a('v_xor_b32 %s, 64, %s' % (V(t1), V(t0)))
        for k, sm in enumerate((s_w2M, s_w2P)):
            a('v_add_u32 %s, %s, %s' % (V(self.aW2[k][0]), S(sm), V(t0)))
            a('v_add_u32 %s, %s, %s' % (V(self.aW2[k][1]), S(sm), V(t1)))
        a.wait_vm('w1')
        a.barrier()
        self.stamp(2)
        self.W1 = [R.alloc(4) for _ in range(28)]
        rd = []
        for ks in range(28):
            row = 32 * (ks >> 1) + 8 * (ks & 1)
            hi = row >= 224
            off = (row - 224 * hi) * 256
            rd.append('ds_read_b64_tr_b16 %s, %s offset:%d' % (V(self.W1[ks], 2), V(aW1[hi]), off))
            rd.append('ds_read_b64_tr_b16 %s, %s offset:%d' % (V(self.W1[ks] + 2, 2), V(aW1[hi]), off + 16 * 256))
        a.seq(weave(rd, [self.w2_dma(k) for k in range(NSTG)]))
        self.vB1 = R.alloc()
        self.vB2 = R.alloc(4)
        a('v_and_b32 %s, 31, %s' % (V(t0), V(vL)))
        a('v_lshlrev_b32 %s, 1, %s' % (V(t0), V(t0)))
        a('v_and_b32 %s, 0x70, %s' % (V(t1), V(vL16)))
        self.lin(s_t0, [(s_j, 256), (s_w, 64)])
        a('s_lshl_b32 %s, %s, 7' % (S(s_t1), S(s_p)))
        a('buffer_load_ushort %s, %s, %s, %s offen' % (V(self.vB1), V(t0), S(sB1, 4), S(s_t0)))
        a('buffer_load_dwordx4 %s, %s, %s, %s offen' % (V(self.vB2, 4), V(t1), S(sB2, 4), S(s_t1)))
        a.barrier()
        self.stamp(2)
        self.w2i = NSTG + self.o.get('w2a', 2)
        cs = R.alloc(16)
        mf = [MF32 % (V(cs, 16), V(self.vOnes, 4), V(self.W1[ks], 4), '0' if ks == 0 else V(cs, 16))
              for ks in range(28)]
        a.slots(mf, [([self.w2_dma(k) for k in range(NSTG, self.w2i)], 0, 8), (self.p2_init(), 8, 24)],
                prewait=False)
        ex = R.alloc(4)
        a('v_lshlrev_b32 %s, 16, %s' % (V(self.vB1), V(self.vB1)))
        a('v_cvt_pk_bf16_f32 %s, %s, %s' % (V(t0), V(cs), V(cs)))
        a('v_lshlrev_b32 %s, 16, %s' % (V(t0), V(t0)))
        a('v_sub_f32 %s, %s, %s' % (V(t0), V(cs), V(t0)))
        a('v_cvt_pk_bf16_f32 %s, %s, %s' % (V(ex), V(cs), V(t0)))
        a('v_cvt_pk_bf16_f32 %s, %s, %s' % (V(ex + 1), V(cs), V(self.vB1)))
        a('v_cvt_pk_bf16_f32 %s, %s, %s' % (V(ex + 2), V(self.vB1), V(self.vZero)))
        a('v_mov_b32 %s, 0' % V(ex + 3))
        for i in range(3):
            a('v_cndmask_b32 %s, %s, %s, %s' % (V(ex + i), V(ex + i), V(self.vZero), S(s_hi, 2)))
        self.vEx = ex
        R.release(cs, 16)
        R.release(self.vB1)
        for sec in range(2):
            for t in range(4):
                R.release(self.aWO[sec][t])
        for r_ in [t0, t1, t2] + aW1 + self.vW1d:
            R.release(r_)

    def p2_init(self):
        R = self.R
        vL = self.vL
        c = []
        self.p2acc = acc = [R.alloc(4) for _ in range(4)]
        for t in range(4):
            for h in range(2):
                c.append('v_lshlrev_b32 %s, 16, %s' % (V(acc[t] + 2 * h), V(self.vXr + 2 * t + h)))
                c.append('v_and_b32 %s, 0xffff0000, %s' % (V(acc[t] + 2 * h + 1), V(self.vXr + 2 * t + h)))
        self.vHs, self.vSs = vHs, vSs = R.alloc(), R.alloc()
        c.append('v_and_b32 %s, 15, %s' % (V(vSs), V(vL)))
        c.append('v_lshlrev_b32 %s, 3, %s' % (V(vSs), V(vSs)))
        c.append('v_lshrrev_b32 %s, 4, %s' % (V(vHs), V(vL)))
        c.append('v_lshlrev_b32 %s, 9, %s' % (V(vHs), V(vHs)))
        c.append('v_lshl_add_u32 %s, %s, 1, %s' % (V(vHs), V(vSs), V(vHs)))
        return c

    def p2(self):
        a, R = self.a, self.R
        vL, vL16 = self.vL, self.vL16
        acc, vHs, vSs = self.p2acc, self.vHs, self.vSs
        self.stamp()
        self.poll(s_p1, self.vF1)
        self.stamp()
        of = [R.alloc(4) for _ in range(16)]
        for h in range(16):
            if h and h % 4 == 0:
                a('s_add_u32 %s, %s, 4096' % (S(s_oL), S(s_oL)))
            a('buffer_load_dwordx4 %s, %s, %s, %s offen offset:%d sc1' %
              (V(of[h], 4), V(vL16), S(sWS, 4), S(s_oL), (h % 4) * 1024))
        mf = [MF16 % (V(acc[t], 4), A(16 * h + 4 * t, 4), V(of[h], 4), V(acc[t], 4))
              for h in range(16) for t in range(4)]
        nb = min(self.w2i + self.o.get('w2b', 7), NSTG + NPARK)
        it = []
        for k in range(self.w2i, nb):
            d = self.w2_dma(k)
            it += [d[:3], d[3]]
        a.slots(mf, [(it, 4, 62)], prewait=False)
        self.w2i = nb
        Hf = self.vXr
        for t in range(4):
            for h in range(2):
                a('v_cvt_pk_bf16_f32 %s, %s, %s' % (V(Hf + 2 * t + h), V(acc[t] + 2 * h), V(acc[t] + 2 * h + 1)))
        ss, su = of[0], of[1]
        st = [Ins('buffer_store_dwordx4 %s, %s, %s, %s offen offset:%d @SC' %
                  (V(Hf + 4 * f, 4), V(vHs), S(sWS, 4), S(s_hS), f * 2048), 'pub') for f in range(2)]
        a.slots([MF16 % (V(ss, 4), V(Hf, 4), V(Hf, 4), '0'),
                 MF16 % (V(ss, 4), V(Hf + 4, 4), V(Hf + 4, 4), V(ss, 4)),
                 MF16 % (V(su, 4), V(self.vOnes, 4), V(Hf, 4), '0'),
                 MF16 % (V(su, 4), V(self.vOnes, 4), V(Hf + 4, 4), V(su, 4))], [(st, 3, 4)])
        a('v_cndmask_b32 %s, %s, %s, %s' % (V(ss), V(ss), V(ss + 1), S(s_M1, 2)))
        a('v_cndmask_b32 %s, %s, %s, %s' % (V(ss), V(ss), V(ss + 2), S(s_M2, 2)))
        a('v_cndmask_b32 %s, %s, %s, %s' % (V(su + 1), V(ss), V(ss + 3), S(s_M3, 2)))
        a('s_mov_b32 exec_lo, 0x00f0000f')
        a('s_mov_b32 exec_hi, 0xf0000f00')
        a('buffer_store_dwordx2 %s, %s, %s, %s offen @SC' % (V(su, 2), V(vSs), S(sWS, 4), S(s_stS)), 'pub')
        a('s_mov_b64 exec, -1')
        self.stamp()
        ne = self.w2i
        a.seq(weave([self.w2_reads(k) for k in range(ne)], [self.w2_dma(k) for k in range(ne, NSTG + NPARK)]))
        a.wait_vm('pub')
        a.rawbar()
        self.flag_store(s_f2)
        self.stamp()
        self.w2r = ne
        for x in of + acc:
            R.release(x, 4)
        for r_ in (vHs, vSs):
            R.release(r_)

    def h2_window(self):
        a = self.a
        NP = NSTG + NPARK
        a.wait_lg('w2r_%d' % (NSTG - 1))
        self.w2c = NP + self.o.get('w2c', NSTG)
        for k in range(NP, self.w2c):
            a.seq(self.w2_dma(k))
        for k in range(self.w2r, NP):
            a.seq(self.w2_reads(k))
        a.barrier()

    @staticmethod
    def gelu_code(acc, cst, tmp, pk=False):
        C1, C3, sd = cst, cst + 1, cst + 2
        code = []
        for b in range(0, 16, 4):
            x = acc + b
            t = tmp + (b & 4)
            if pk:
                P = lambda r, i: V(r + 2 * i, 2)
                for i in range(2):
                    code.append('v_pk_mul_f32 %s, %s, %s' % (P(t, i), P(x, i), P(x, i)))
                for i in range(2):
                    code.append('v_pk_fma_f32 %s, %s, %s, %s op_sel:[0,1,0] op_sel_hi:[1,1,0]' %
                                (P(t, i), P(t, i), V(cst, 2), V(cst, 2)))
                for i in range(2):
                    code.append('v_pk_mul_f32 %s, %s, %s' % (P(t, i), P(t, i), P(x, i)))
            else:
                for i in range(4):
                    code.append('v_mul_f32 %s, %s, %s' % (V(t + i), V(x + i), V(x + i)))
                for i in range(4):
                    code.append('v_fma_f32 %s, %s, %s, %s' % (V(t + i), V(t + i), V(C3), V(C1)))
                for i in range(4):
                    code.append('v_mul_f32 %s, %s, %s' % (V(t + i), V(t + i), V(x + i)))
            for i in range(4):
                code.append('v_exp_f32 %s, %s' % (V(t + i), V(t + i)))
            if pk:
                for i in range(2):
                    code.append('v_pk_fma_f32 %s, %s, %s, %s op_sel_hi:[1,0,0]' % (P(t, i), P(t, i), V(sd, 2), V(sd, 2)))
            else:
                for i in range(4):
                    code.append('v_fma_f32 %s, %s, %s, %s' % (V(t + i), V(t + i), V(sd), V(sd)))
            for i in range(4):
                code.append('v_rcp_f32 %s, %s' % (V(t + i), V(t + i)))
            if pk:
                for i in range(2):
                    code.append('v_pk_mul_f32 %s, %s, %s' % (P(t, i), P(t, i), P(x, i)))
            else:
                for i in range(4):
                    code.append('v_mul_f32 %s, %s, %s' % (V(t + i), V(t + i), V(x + i)))
            for h in range(2):
                code.append('v_cvt_pk_bf16_f32 %s, %s, %s' % (V(acc + b // 2 + h), V(t + 2 * h), V(t + 2 * h + 1)))
        return code

    def p3(self):
        a, R = self.a, self.R
        vL, vL16 = self.vL, self.vL16
        vS0, vS3, aE, aA = R.alloc(), R.alloc(), R.alloc(), R.alloc()
        t0 = R.alloc()
        a('v_lshlrev_b32 %s, 3, %s' % (V(vS0), V(vL)))
        a('v_mov_b32 %s, 0x40000000' % V(t0))
        a('v_cndmask_b32 %s, %s, %s, %s' % (V(vS3), V(vS0), V(t0), S(s_hi, 2)))
        a('v_and_b32 %s, 0x1f0, %s' % (V(aE), V(vL16)))
        a('v_add_u32 %s, %d, %s' % (V(aE), L_EX, V(aE)))
        a('s_lshl_b32 %s, %s, 10' % (S(s_t0), S(s_w)))
        a('v_add_u32 %s, %s, %s' % (V(t0), S(s_t0), V(aE)))
        a('v_add_u32 %s, %d, %s' % (V(aA), 57344, V(vL16)))
        order = [0, 2, 1, 3]
        NP = NSTG + NPARK

        def dma(n, part):
            rt = order[n]
            so, sm, cnt = (s_hL, s_aM, 4) if part == 0 else (s_hLb, s_aMb, 3)
            pre = ['s_add_u32 m0, %s, %d' % (S(sm), rt * 28672),
                   's_add_u32 %s, %s, %d' % (S(s_d), S(so), rt * 28672)]
            ld = [Ins('buffer_load_dwordx4 %s, %s, %s offen offset:%d sc1 lds' %
                      (V(vL16), S(sWS, 4), S(s_d), k * 1024), 'h%d%d' % (n, part)) for k in range(cnt)]
            return [pre + ld[:1]] + ld[1:]
        self.stamp()
        self.poll(s_p2, self.vF2)
        self.stamp()
        st = R.alloc(8)
        a.seq(dma(0, 0))
        for i in range(4):
            a('buffer_load_dwordx2 %s, %s, %s, %s offen offset:%d sc1' %
              (V(st + 2 * i, 2), V(vS3 if i == 3 else vS0), S(sWS, 4), S(s_stL), 512 * i))
        a.seq(dma(0, 1) + dma(1, 0) + dma(1, 1))
        bx = R.alloc(4)
        cc = R.alloc(4)
        C1, C3, sd = cc, cc + 1, cc + 2
        sc = []
        e = sc.append
        e('v_add_f32 %s, %s, %s' % (V(st), V(st), V(st + 2)))
        e('v_add_f32 %s, %s, %s' % (V(st + 1), V(st + 1), V(st + 3)))
        e('v_add_f32 %s, %s, %s' % (V(st + 4), V(st + 4), V(st + 6)))
        e('v_add_f32 %s, %s, %s' % (V(st + 5), V(st + 5), V(st + 7)))
        e('v_add_f32 %s, %s, %s' % (V(st), V(st), V(st + 4)))
        e('v_add_f32 %s, %s, %s' % (V(st + 1), V(st + 1), V(st + 5)))
        e('v_mov_b32 %s, %s' % (V(st + 2), V(st)))
        e('v_mov_b32 %s, %s' % (V(st + 3), V(st + 1)))
        e('v_mov_b32 %s, 0' % V(bx + 3))
        e('v_permlane32_swap_b32 %s, %s' % (V(st), V(st + 2)))
        e('v_permlane32_swap_b32 %s, %s' % (V(st + 1), V(st + 3)))
        e('v_add_f32 %s, %s, %s' % (V(st), V(st), V(st + 2)))
        e('v_add_f32 %s, %s, %s' % (V(st + 1), V(st + 1), V(st + 3)))
        e('v_mul_f32 %s, %s, %s' % (V(st), f32(-1.0 / 448), V(st)))
        e('v_mul_f32 %s, %s, %s' % (V(st + 1), f32(1.0 / 448), V(st + 1)))
        e('v_fma_f32 %s, -%s, %s, %s' % (V(st + 1), V(st), V(st), V(st + 1)))
        e('v_max_f32 %s, 0, %s' % (V(st + 1), V(st + 1)))
        e('v_add_f32 %s, %s, %s' % (V(st + 1), f32(1e-5), V(st + 1)))
        e('v_rsq_f32 %s, %s' % (V(st + 2), V(st + 1)))
        e('v_cvt_pk_bf16_f32 %s, %s, %s' % (V(bx), V(st), V(st)))
        e('v_mul_f32 %s, %s, %s' % (V(sd), V(st + 1), V(st + 2)))
        e('v_lshlrev_b32 %s, 16, %s' % (V(st + 3), V(bx)))
        e('v_sub_f32 %s, %s, %s' % (V(st + 3), V(st), V(st + 3)))
        e('v_cvt_pk_bf16_f32 %s, %s, %s' % (V(bx + 1), V(st + 3), V(sd)))
        e('v_and_b32 %s, 0xffff0000, %s' % (V(st + 3), V(bx + 1)))
        e('v_sub_f32 %s, %s, %s' % (V(st + 3), V(sd), V(st + 3)))
        e('v_cvt_pk_bf16_f32 %s, %s, %s' % (V(bx + 2), V(st + 3), V(self.vZero)))
        kk = 2 * math.sqrt(2 / math.pi) * math.log2(math.e)
        e('v_mul_f32 %s, %s, %s' % (V(C1), f32(-kk), V(st + 2)))
        e('v_mul_f32 %s, %s, %s' % (V(C3), V(st + 2), V(st + 2)))
        e('v_mul_f32 %s, %s, %s' % (V(C3), V(C3), V(C1)))
        e('v_mul_f32 %s, %s, %s' % (V(C3), f32(0.044715), V(C3)))
        xw = [Ins('ds_write_b128 %s, %s' % (V(t0), V(bx, 4)), 'xw'),
              Ins('ds_write_b128 %s, %s offset:512' % (V(t0), V(cc, 4)), 'xw')]
        NB = 4
        fr = [R.alloc(4) for _ in range(NB)]
        acc = [R.alloc(16) for _ in range(2)]
        bx2 = R.alloc(4)
        cc2 = [R.alloc(4), R.alloc(4)]
        tmp = R.alloc(8)

        def rd(q):
            n, ks = divmod(q, 28)
            off = order[n] * 28672 + ks * 1024
            hi = off >= 57344
            return 'ds_read_b128 %s, %s offset:%d' % (V(fr[q % NB], 4), V(aA if hi else vL16), off - 57344 * hi)

        def gelu(n, pk=False):
            c = self.gelu_code(acc[n & 1], cc2[n & 1], tmp, pk)
            h = len(c) // 2
            sts = [Ins('buffer_store_dwordx4 %s, %s, %s, %s offen offset:%d @SC' %
                       (V(acc[n & 1] + 4 * s, 4), V(vL16), S(sWS, 4), S(s_t0), s * 1024), 'pub%d' % n) for s in range(2)]
            return ['s_add_u32 %s, %s, %d' % (S(s_t0), S(s_h1S), order[n] * 112 * 1024)] + c[:h] + [sts[0]] + c[h:] + [sts[1]]
        a.wait_vm('h00')
        a.rawbar()
        self.stamp(3)
        PF = NB - 1
        for q in range(PF):
            a(rd(q))
        for n in range(4):
            mf = [MF32 % (V(acc[n & 1], 16), V(self.W1[ks], 4), V(fr[(28 * n + ks) % NB], 4),
                          '0' if ks == 0 else V(acc[n & 1], 16)) for ks in range(28)]
            mf.append(MF32 % (V(acc[n & 1], 16), V(self.vEx, 4), V(bx2, 4), V(acc[n & 1], 16)))
            reads = [rd(q) for q in range(28 * n + PF, min(28 * n + 28 + PF, 112))]
            st_ = [(reads, 0, len(reads))]
            at = {}
            xr = ['ds_read_b128 %s, %s offset:%d' % (V(bx2, 4), V(aE), order[n] * 1024),
                  'ds_read_b128 %s, %s offset:%d' % (V(cc2[n & 1], 4), V(aE), order[n] * 1024 + 512)]
            if n == 0:
                st_.append((sc, 0, 8))
                st_.append((xw, 9, 10))
                at[16 - PF] = [('wait_vm', 'h01'), ('wait_lg', 'xw'), ('rawbar',)]
                st_.append((dma(2, 0) + dma(2, 1), 6, 28))
                st_.append(([x for k in range(NP, self.w2c) for x in self.w2_reads(k)[1:]], 10, 24))
            else:
                st_.append((gelu(n - 1), 2, 28))
            if n == 1:
                st_.append((dma(3, 0) + dma(3, 1), 0, 16))
            if n == 2:
                it = []
                for k in range(self.w2c, 28):
                    d = self.w2_dma(k)
                    it += [d[:3], d[3]]
                assert 28 - self.w2c <= NSTG
                st_.append((it, 0, 12))
            st_.append((xr, 24, 26))
            if n < 3:
                at.setdefault(28 - PF, []).extend([('wait_vm', 'h%d1' % (n + 1)), ('rawbar',)])
            if n == 3:
                fs = self.o.get('f0slot', 20)
                at[fs] = [('wait_vm', 'pub1'), ('rawbar',)]
                st_.append(([self.flag_ins(s_f3)], fs, fs + 1))
            a.slots(mf, st_, at=at)
            self.stamp(3)
        self.stamp()
        a('s_add_u32 %s, %s, %d' % (S(s_f3), S(s_f3), 16 * FS))
        a.seq(gelu(3, True))
        self.stamp()
        for x in fr + self.W1 + [bx, cc, bx2, self.vEx] + cc2:
            R.release(x, 4)
        R.release(acc[0], 16)
        self.p3_live = acc[1]
        R.release(st, 8); R.release(tmp, 8)
        for r_ in (vS0, vS3, t0, aE, aA):
            R.release(r_)

    def p4(self):
        a, R = self.a, self.R
        vL, vL16 = self.vL, self.vL16
        a0 = R.alloc(32)
        acc = [[a0, a0 + 16], [R.alloc(16), R.alloc(16)]]
        NF = 28
        fr = sorted(R.alloc(4) for _ in range(NF))

        def load(n):
            mt, k = divmod(n, 28)
            return ['s_add_u32 %s, %s, %d' % (S(s_d), S(s_h1L), mt * 112 * 1024 + k * 4096),
                    'buffer_load_dwordx4 %s, %s, %s, %s offen sc1' % (V(fr[n % NF], 4), V(vL16), S(sWS, 4), S(s_d))]

        def mm(lo, hi):
            out = []
            for n in range(lo, hi):
                mt, k = divmod(n, 28)
                out += [MF32 % (V(acc[mt][u], 16), A(8 * k + 4 * u, 4), V(fr[n % NF], 4),
                                '0' if k == 0 else V(acc[mt][u], 16)) for u in range(2)]
            return out
        self.poll(s_p3, self.vF3)
        a.rawbar()
        self.flag_store(s_f3)
        R.release(self.p3_live, 16)
        self.stamp()
        NB0 = self.o.get('p4b', 14)
        for n in range(NB0):
            a.seq(load(n))
        for k in range(self.w2c, 28):
            a.seq(self.w2_reads(k))
        t0, t1 = R.alloc(), R.alloc()
        a('v_and_b32 %s, 15, %s' % (V(t0), V(vL)))
        a('v_mul_u32_u24 %s, 144, %s' % (V(t0), V(t0)))
        a('v_lshrrev_b32 %s, 4, %s' % (V(t1), V(vL)))
        a('v_lshl_add_u32 %s, %s, 3, %s' % (V(t0), V(t1), V(t0)))
        self.lin(s_t0, [(s_w, 16 * 144)], L_HT)
        a('v_add_u32 %s, %s, %s' % (V(t0), S(s_t0), V(t0)))
        for t in range(4):
            a('ds_write_b64 %s, %s offset:%d' % (V(t0), V(self.vXr + 2 * t, 2), 32 * t))
        aP, aR, aH, vO = R.alloc(), R.alloc(), R.alloc(), R.alloc()
        a('v_and_b32 %s, 31, %s' % (V(aP), V(vL)))
        a('v_mul_u32_u24 %s, %d, %s' % (V(aP), PITCH, V(aP)))
        a('v_lshrrev_b32 %s, 5, %s' % (V(t1), V(vL)))
        a('v_lshl_add_u32 %s, %s, 4, %s' % (V(aP), V(t1), V(aP)))
        a('s_mul_i32 %s, %s, %d' % (S(s_t0), S(s_w), 64 * PITCH))
        a('v_add_u32 %s, %s, %s' % (V(aP), S(s_t0), V(aP)))
        a('v_lshrrev_b32 %s, 3, v0' % V(vO))
        a('v_and_b32 %s, 7, v0' % V(t1))
        a('v_mul_u32_u24 %s, %d, %s' % (V(aR), PITCH, V(vO)))
        a('v_lshl_add_u32 %s, %s, 5, %s' % (V(aR), V(t1), V(aR)))
        a('v_mul_u32_u24 %s, 144, %s' % (V(aH), V(vO)))
        a('v_lshl_add_u32 %s, %s, 4, %s' % (V(aH), V(t1), V(aH)))
        a('v_add_u32 %s, %d, %s' % (V(aH), L_HT, V(aH)))
        a('v_mul_u32_u24 %s, 896, %s' % (V(vO), V(vO)))
        a('v_lshl_add_u32 %s, %s, 4, %s' % (V(vO), V(t1), V(vO)))
        self.lin(s_bX, [(s_r, 64 * 896), (s_p, 128)])
        a('s_add_u32 %s, %s, %d' % (S(s_bH), S(s_bX), 32 * 896))
        a('s_add_u32 %s, %s, %d' % (S(s_p3), S(s_p3), 16 * FS))
        bfl = R.alloc(8)
        for i in range(4):
            a('v_lshlrev_b32 %s, 16, %s' % (V(bfl + 2 * i), V(self.vB2 + i)))
            a('v_and_b32 %s, 0xffff0000, %s' % (V(bfl + 2 * i + 1), V(self.vB2 + i)))
        R.release(t0); R.release(t1)
        c1 = 28 - NB0
        pp = self.o.get('p4pp', 6)
        it = [load(n) for n in range(NB0, 28 - pp)] + [self.probe_ins(s_p3, self.vF3)] + \
             [load(n) for n in range(28 - pp, 28)]
        a.slots(mm(0, c1), [(it, 0, 2 * c1)], prewait=False)
        cp = 28 - pp
        a.slots(mm(c1, cp), prewait=False)
        self.check(s_p3, self.vF3)
        self.stamp()
        nq = self.o.get('p4q', 5)
        for n in range(28, 28 + nq):
            a.seq(load(n))
        cq = nq + (28 - cp)
        a.slots(mm(cp, 28), [([load(n) for n in range(28 + nq, 28 + cq)], 0, 2 * (28 - cp))], prewait=False)

        def pw(mt):
            return [Ins('ds_write_b128 %s, %s offset:%d' %
                        (V(aP), V(acc[mt][u] + 4 * gq, 4), mt * 32 * PITCH + u * 128 + gq * 32), 'pw')
                    for u in range(2) for gq in range(4)]

        def red(mt, regs, pk):
            pr = [[regs + 8 * w + 4 * k for k in range(2)] for w in range(4)]
            hr, hx = self.vXr, self.vXr + 4
            hx = [bflx, bflx + 4]
            rdl = ['ds_read_b128 %s, %s offset:%d' % (V(hr, 4), V(aH), mt * 32 * 144)]
            for w in range(4):
                for k in range(2):
                    rdl.append('ds_read_b128 %s, %s offset:%d' %
                               (V(pr[w][k], 4), V(aR), w * 64 * PITCH + mt * 32 * PITCH + k * 16))
            c = []

            def add(d, s):
                if pk:
                    for h in range(2):
                        c.append('v_pk_add_f32 %s, %s, %s' % (V(d + 2 * h, 2), V(d + 2 * h, 2), V(s + 2 * h, 2)))
                else:
                    for h in range(4):
                        c.append('v_add_f32 %s, %s, %s' % (V(d + h), V(d + h), V(s + h)))
            for k in range(2):
                for h in range(2):
                    c.append('v_lshlrev_b32 %s, 16, %s' % (V(hx[k] + 2 * h), V(hr + 2 * k + h)))
                    c.append('v_and_b32 %s, 0xffff0000, %s' % (V(hx[k] + 2 * h + 1), V(hr + 2 * k + h)))
                add(hx[k], bfl + 4 * k)
            npre = len(c)
            for w in range(4):
                for k in range(2):
                    add(hx[k], pr[w][k])
            for k in range(2):
                for h in range(2):
                    c.append('v_cvt_pk_bf16_f32 %s, %s, %s' %
                             (V(self.vXr + 4 + 2 * k + h), V(hx[k] + 2 * h), V(hx[k] + 2 * h + 1)))
            c.append('buffer_store_dwordx4 %s, %s, %s, %s offen sc1' %
                     (V(self.vXr + 4, 4), V(vO), S(sOUT, 4), S(s_bH if mt else s_bX)))
            return rdl, c[:npre], c[npre:]
        bflx = R.alloc(8)
        assert acc[0][1] == acc[0][0] + 16
        r0, c0a, c0b = red(0, acc[0][0], False)
        r1, c1a, c1b = red(1, acc[0][0], True)
        rest = [load(n) for n in range(28 + cq, 56)]
        a.slots(mm(28, 56), [(rest, 0, 2 * len(rest)), (pw(0), 2, 14), (r0, 20, 26), (c0a + c0b, 28, 44),
                             (r1[:1], 46, 47), ([x for x in red(1, acc[0][0], False)[1]], 49, 54)],
                prewait=False, at={18: [('wait_lg', 'pw'), ('rawbar',)]})
        self.stamp()
        a.seq(pw(1))
        a.barrier()
        a.seq(r1[1:])
        a.seq(c1b)
        self.stamp()

    def build(self):
        a = self.a
        self.prologue()
        self.p1()
        self.h1_window()
        self.p2()
        self.h2_window()
        self.p3()
        self.p4()
        a.label('Lfin')
        if self.o.get('ts'):
            a.fence()
        self.dump_stamps()
        a.label('Lend')
        a('s_endpgm')
        return self.wrap()

    def wrap(self):
        hdr = open('cdna_kernels/' + KNAME[:-7] + '.s.ref').read().split('\n')
        top = [l for l in hdr if l.startswith(';') and '@launch' not in l][:12]
        s = '\n'.join(top) + '\n'
        s += '; @launch grid=(256,1,1) block=(256,1,1) lds=%d\n' % LDS_BYTES
        s += '.amdgcn_target "amdgcn-amd-amdhsa--gfx950"\n.text\n.globl %s\n.p2align 8\n.type %s,@function\n%s:\n' % (
            KNAME, KNAME, KNAME)
        s += self.a.text()
        s += '.p2align 8\n.fill 4096, 4, 0xbf800000\n' if self.o.get('codepf', 1) else ''
        s += '''.section .rodata,"a"
.p2align 6
.amdhsa_kernel %s
  .amdhsa_next_free_vgpr 512
  .amdhsa_next_free_sgpr 102
  .amdhsa_accum_offset 256
  .amdhsa_group_segment_fixed_size 0
  .amdhsa_kernarg_size 88
  .amdhsa_user_sgpr_count 2
  .amdhsa_user_sgpr_kernarg_segment_ptr 1
  .amdhsa_system_sgpr_workgroup_id_x 1
.end_amdhsa_kernel
''' % KNAME
        return s


if __name__ == '__main__':
    opt = {}
    out = 'k.s'
    for arg in sys.argv[1:]:
        if '=' in arg:
            k, v = arg.split('=')
            opt[k] = int(v)
        else:
            out = arg
    g = Gen(opt)
    s = g.build()
    open(out, 'w').write(s)
    print('instructions', g.a.count(), 'nops', g.a.nnop, 'vgpr hi', g.R.hi, 'stamps', g.nts)
```

```python
import sys
import math
from asmlib import *
import gen3
from gen3 import *

WS_EX = 1408 * 1024
gen3.WS_TS = 1792 * 1024

L_WV = 0
L_RING = 57344
SL = 26640
XO = 16384
L_Q = 57344
QP = 136
L_K = L_Q + 64 * QP
L_STAT = 95616
L_VS = 96256
L_WO4 = 0
L_W1H = (106496, 57344)

s_ex = 47
s_oS = 48
s_kv = 83
s_G1, s_G2 = 78, 0
s_bV = 1
s_w2R = 0
FORD = [0, 1, 14, 15, 2, 3, 16, 17, 4, 5, 18, 19, 6, 20, 7, 21, 8, 9, 22, 23, 10, 11, 24, 25, 12, 13, 26, 27]
s_p0 = 101
FL0 = WS_FL + 2048
s_w2O1, s_hL1, s_hLb1, s_h1S1, s_h1L1, s_p31 = 74, 75, 76, 77, 80, 81
L_HT = 86016
NPRE = 14


def segments(c):
    lo, hi = 16 * c, 16 * c + 16
    out = []
    for h in range(16):
        a0, b0 = max(lo, 7 * h), min(hi, 7 * h + 7)
        if a0 < b0:
            kind = 'L' if 7 * h < lo else ('R' if 7 * h + 7 > hi else 'M')
            out.append((a0 - lo, b0 - lo, kind))
    return out


class Gen4(Gen):
    def prologue(self):
        a, R = self.a, self.R
        R.alloc()
        a('s_cmp_ge_u32 s2, 256')
        a('s_cbranch_scc1 Lend')
        a('s_load_dwordx4 %s, s[0:1], 0' % S(sPTR, 4))
        self.vJunk = R.alloc()
        a('s_getpc_b64 %s' % S(s_t2, 2))
        a('s_lshr_b32 %s, s2, 3' % S(s_t0))
        a('s_lshl_b32 %s, %s, 11' % (S(s_t1), S(s_t0)))
        a('v_lshrrev_b32 %s, 4, v0' % V(self.vJunk))
        a('v_lshl_add_u32 %s, %s, 7, %s' % (V(self.vJunk), V(self.vJunk), S(s_t1)))
        a.one(nodep('global_load_dword %s, %s, %s' % (V(self.vJunk), V(self.vJunk), S(s_t2, 2))))
        self.vL = vL = R.alloc()
        self.vL16 = R.alloc()
        self.vZero = R.alloc()
        self.vTag = R.alloc(2)
        if self.o.get('ts'):
            self.vTS = R.alloc()
            a('v_mov_b32 %s, 0' % V(self.vTS))
        t0, t1, t2, t3 = [R.alloc() for _ in range(4)]
        a('v_lshrrev_b32 %s, 6, v0' % V(t0))
        a('v_and_b32 %s, 63, v0' % V(vL))
        a('v_readfirstlane_b32 %s, %s' % (S(s_w), V(t0)))
        a('s_and_b32 %s, %s, 3' % (S(s_rl), S(s_t0)))
        a('s_lshr_b32 %s, %s, 2' % (S(s_p), S(s_t0)))
        a('s_and_b32 %s, s2, 7' % S(s_t1))
        a('s_lshl_b32 %s, %s, 2' % (S(s_r), S(s_t1)))
        a('s_add_u32 %s, %s, %s' % (S(s_r), S(s_r), S(s_rl)))
        self.vWd = [R.alloc(), R.alloc()]
        self.vXd = [R.alloc() for _ in range(3)]
        a('v_lshrrev_b32 %s, 3, %s' % (V(t0), V(vL)))
        a('v_and_b32 %s, 7, %s' % (V(t1), V(vL)))
        a('v_lshrrev_b32 %s, 4, %s' % (V(t2), V(vL)))
        u0, u1 = R.alloc(), R.alloc()
        a('v_and_b32 %s, 1, %s' % (V(u0), V(t2)))
        a('v_lshlrev_b32 %s, 1, %s' % (V(u0), V(u0)))
        a('v_xor_b32 %s, %s, %s' % (V(u0), V(u0), V(t1)))
        a('v_mul_u32_u24 %s, 2688, %s' % (V(u1), V(t0)))
        a('v_lshl_add_u32 %s, %s, 4, %s' % (V(self.vWd[0]), V(u0), V(u1)))
        a('v_xor_b32 %s, 4, %s' % (V(u0), V(u0)))
        a('v_add_u32 %s, %d, %s' % (V(u1), 8 * 2688 - 1024, V(u1)))
        a('v_lshl_add_u32 %s, %s, 4, %s' % (V(self.vWd[1]), V(u0), V(u1)))
        a('s_mul_i32 %s, %s, %d' % (S(s_t2), S(s_r), 64 * 896))
        a('s_sub_u32 %s, %s, %d' % (S(s_t2), S(s_t2), 16 * 896))
        a('s_and_b32 %s, %s, 1' % (S(s_t3), S(s_w)))
        a('s_lshl_b32 %s, %s, 2' % (S(s_t0), S(s_t3)))
        a('v_xor_b32 %s, %s, %s' % (V(u0), V(t2), V(t1)))
        a('v_xor_b32 %s, %s, %s' % (V(u0), S(s_t0), V(u0)))
        a('v_mul_u32_u24 %s, 896, %s' % (V(u1), V(t0)))
        a('v_lshl_add_u32 %s, %s, 4, %s' % (V(t3), V(u0), V(u1)))
        a('s_mul_i32 %s, %s, 7168' % (S(s_t0), S(s_w)))
        a('s_add_u32 %s, %s, %s' % (S(s_t0), S(s_t0), S(s_t2)))
        a('s_max_i32 %s, %s, 0' % (S(s_t1), S(s_t0)))
        a('v_add_u32 %s, %s, %s' % (V(self.vXd[0]), S(s_t1), V(t3)))
        a('s_add_u32 %s, %s, %d' % (S(s_t1), S(s_t0), 4 * 7168))
        a('v_add_u32 %s, %s, %s' % (V(self.vXd[1]), S(s_t1), V(t3)))
        a('s_mul_i32 %s, %s, 7168' % (S(s_t0), S(s_t3)))
        a('s_add_u32 %s, %s, %s' % (S(s_t0), S(s_t0), S(s_t2)))
        a('s_add_u32 %s, %s, %d' % (S(s_t0), S(s_t0), 8 * 7168))
        a('v_add_u32 %s, %s, %s' % (V(self.vXd[2]), S(s_t0), V(t3)))
        a('s_lshl_b32 %s, %s, 10' % (S(s_oH), S(s_t3)))
        a('s_mul_i32 %s, %s, %d' % (S(s_bW), S(s_w), 16 * 2688))
        a('s_lshl_b32 %s, %s, 7' % (S(s_t0), S(s_p)))
        a('s_add_u32 %s, %s, %s' % (S(s_bW), S(s_bW), S(s_t0)))
        a('s_lshl_b32 %s, %s, 12' % (S(s_m0W), S(s_w)))
        a('s_lshl_b32 %s, %s, 10' % (S(s_m0X), S(s_w)))
        a('s_lshl_b32 %s, %s, 1' % (S(s_kc), S(s_rl)))
        a('s_add_u32 %s, %s, %s' % (S(s_kc), S(s_kc), S(s_p)))
        a('s_cmp_ge_u32 %s, 7' % S(s_kc))
        a('s_cselect_b32 %s, 7, 0' % S(s_t0))
        a('s_sub_u32 %s, %s, %s' % (S(s_kc), S(s_kc), S(s_t0)))
        for r_ in (t0, t1, t2, t3, u0, u1):
            R.release(r_)
        a('s_mov_b32 %s, %d' % (S(sX + 2), 2048 * 896))
        a('s_mov_b32 %s, 0x20000' % S(sX + 3))
        a('s_mov_b32 %s, %d' % (S(sWQ + 2), 448 * 2688))
        a('s_mov_b32 %s, 0x20000' % S(sWQ + 3))
        d0 = self.p1_dma(0)
        a.seq(d0[0])
        a.wait_lg()
        a('s_mov_b64 %s, %s' % (S(sX, 2), S(sPTR, 2)))
        a('s_mov_b64 %s, %s' % (S(sWQ, 2), S(sPTR + 2, 2)))
        self.stamp()
        a('s_load_dwordx4 %s, s[0:1], 16' % S(sPTR + 4, 4))
        a('s_load_dwordx8 %s, s[0:1], 32' % S(sPTR + 8, 8))
        a('s_load_dwordx2 %s, s[0:1], 64' % S(60, 2))
        a('s_load_dwordx2 %s, s[0:1], 80' % S(62, 2))
        a('s_cmp_eq_u32 %s, 7' % S(s_p))
        a('s_cbranch_scc1 Lhelper')
        self.st_helper = (list(a.vmq), list(a.lgq), self.nts)
        a.seq(d0[1:])
        a.seq(self.p1_dma(1))

    def srds(self):
        a = self.a
        a('v_lshlrev_b32 %s, 4, %s' % (V(self.vL16), V(self.vL)))
        a('v_mov_b32 %s, 0' % V(self.vZero))
        self.srd(sWO, sPTR + 4, 448 * 896)
        self.srd(sW1, sPTR + 8, 448 * 3584)
        self.srd(sB1, sPTR + 10, 1792 * 2)
        self.srd(sW2, sPTR + 12, 1792 * 896)
        self.srd(sB2, sPTR + 14, 448 * 2)
        self.srd(sOUT, 60, 2048 * 896)
        a('s_and_b32 %s, s2, 7' % S(s_t0))
        a('s_lshl_b32 %s, %s, 21' % (S(s_t0), S(s_t0)))
        a('s_add_u32 %s, s62, %s' % (S(sWS), S(s_t0)))
        a('s_addc_u32 %s, s63, 0' % S(sWS + 1))
        a('s_mov_b32 %s, %d' % (S(sWS + 2), 2 << 20))
        a('s_mov_b32 %s, 0x20000' % S(sWS + 3))

    def helper(self):
        a, R = self.a, self.R
        a.label('Lhelper')
        a.vmq, a.lgq, nts = self.st_helper
        keep = self.nts
        self.nts = nts
        jk = V(self.vJunk)
        t0, t1 = 20, 21
        self.srds()
        a('v_mul_u32_u24 %s, 37, %s' % (V(t0), V(self.vL)))
        a('v_lshrrev_b32 %s, 8, %s' % (V(t0), V(t0)))
        a('v_mul_u32_u24 %s, %d, %s' % (V(t1), 2688 - 7 * 128, V(t0)))
        a('v_lshl_add_u32 %s, %s, 7, %s' % (V(t1), V(self.vL), V(t1)))
        a('v_lshlrev_b32 %s, 7, %s' % (V(t0), V(self.vL)))
        self.lin(s_t1, [(s_rl, 4), (s_w, 1)])
        a('s_and_b32 %s, s2, 7' % S(s_t0))
        self.lin(s_t2, [(s_t1, 8), (s_t0, 1)])

        def tl(srd, sbase, off):
            a('s_add_u32 %s, %s, %d' % (S(s_d), S(sbase), off))
            if len(a.vmq) > 56:
                a._wait(vm=40)
            a.one(nodep('buffer_load_dword %s, %s, %s, %s offen' % (jk, V(t0), S(srd, 4), S(s_d))))

        def ws(base, nbytes):
            a('s_mov_b64 exec, -1')
            a('s_lshl_b32 %s, %s, 13' % (S(s_t0), S(s_t1)))
            for i in range((nbytes + 131071) // 131072):
                tl(sWS, s_t0, base + i * 131072)

        def wv_l2():
            a('s_mov_b32 exec_hi, 0x1ffff')
            a('s_and_b32 %s, s2, 1' % S(s_t0))
            a('s_lshl_b32 %s, %s, 5' % (S(s_t0), S(s_t0)))
            a('s_add_u32 %s, %s, %s' % (S(s_t0), S(s_t0), S(s_t1)))
            for i in range(4):
                a('s_add_u32 %s, %s, %d' % (S(s_d), S(s_t0), 16 * i))
                a('s_and_b32 %s, %s, 63' % (S(s_d), S(s_d)))
                a('s_mul_i32 %s, %s, %d' % (S(s_d), S(s_d), 7 * 2688))
                a.one(nodep('buffer_load_dword %s, %s, %s, %s offen offset:1792' % (jk, V(t1), S(sWQ, 4), S(s_d))))

        def wv_chip():
            a('s_mov_b32 exec_hi, 0x1ffff')
            a('s_lshr_b32 %s, %s, 1' % (S(s_d), S(s_t2)))
            a('s_mul_i32 %s, %s, %d' % (S(s_d), S(s_d), 7 * 2688))
            a.one(nodep('buffer_load_dword %s, %s, %s, %s offen offset:1792' % (jk, V(t1), S(sWQ, 4), S(s_d))))

        def chip(srd):
            a('s_mov_b32 exec_hi, 0x1ffff')
            if srd == sWO:
                a('s_lshr_b32 %s, %s, 1' % (S(s_t0), S(s_t2)))
                a('s_mul_i32 %s, %s, %d' % (S(s_t0), S(s_t0), 49 * 128))
                tl(sWO, s_t0, 0)
            else:
                a('s_mul_i32 %s, %s, %d' % (S(s_t0), S(s_t2), 98 * 128))
                tl(srd, s_t0, 0)
                tl(srd, s_t0, 49 * 128)

        def l2(srd, n0, n):
            a('s_mov_b32 exec_hi, 0x1ffff')
            a('s_mul_i32 %s, %s, %d' % (S(s_t0), S(s_t1), 49 * 128))
            for i in range(n0, n):
                tl(srd, s_t0, i * 16 * 49 * 128)
        for x in (sOUT, sB1, sB2):
            a.one(nodep('buffer_load_dword %s, %s, %s, 0 offen' % (jk, V(t0), S(x, 4))))
        def fl():
            a('s_mov_b64 exec, -1')
            a('s_and_b32 %s, %s, 1' % (S(s_t0), S(s_t1)))
            a('s_lshl_b32 %s, %s, 13' % (S(s_t0), S(s_t0)))
            tl(sWS, s_t0, WS_FL)
        steps = {'f': fl, 'e': lambda: ws(WS_EX, 196608), 'o': lambda: ws(WS_O, 262144), 'h': lambda: ws(WS_H, 262144),
                 'g': lambda: ws(WS_H1, 917504), 'V': wv_l2, 'v': wv_chip, '0': lambda: chip(sWO),
                 '1': lambda: chip(sW1), '2': lambda: chip(sW2), 'O': lambda: l2(sWO, 0, 4),
                 'A': lambda: l2(sW1, 0, 4), 'B': lambda: l2(sW1, 4, 8), 'C': lambda: l2(sW1, 8, 12),
                 'D': lambda: l2(sW1, 12, 16), 'P': lambda: l2(sW2, 0, 4), 'Q': lambda: l2(sW2, 4, 8),
                 'R': lambda: l2(sW2, 8, 12), 'S': lambda: l2(sW2, 12, 16), '.': self.stamp}
        for ch in self.o.get('hp', 'fV102OPQRS'):
            steps[ch]()
        a('s_mov_b64 exec, -1')
        a('s_branch Lfin')
        self.nts = keep

    def late_setup(self):
        a, R = self.a, self.R
        self.srds()
        a('s_lshr_b32 %s, %s, 1' % (S(s_t1), S(s_rl)))
        self.lin(s_p3, [(s_t1, 64 * FS)], FL3)
        a('s_add_u32 %s, %s, %d' % (S(s_t0), S(s_p3), 48 * FS))
        a('s_buffer_load_dwordx2 %s, %s, %s' % (S(s_tag, 2), S(sWS, 4), S(s_t0)))
        a('s_and_b32 %s, %s, 1' % (S(s_j), S(s_rl)))
        a('s_mul_i32 %s, %s, 7' % (S(s_j), S(s_j)))
        a('s_add_u32 %s, %s, %s' % (S(s_j), S(s_j), S(s_p)))
        self.lin(s_p2, [(s_t1, 16 * FS)], FL2)
        self.lin(s_p0, [(s_t1, 16 * FS)], FL0)
        self.lin(s_p1, [(s_rl, 8 * FS)], FL1)
        self.lin(s_f1, [(s_p, FS), (s_p1, 1)])
        a('s_add_u32 %s, %s, %d' % (S(s_f2), S(s_f1), FL2 - FL1))
        self.lin(s_woO, [(s_w, 7168), (s_p, 128)])
        self.lin(s_woM, [(s_w, 1024)], L_WO4)
        self.lin(s_w1O, [(s_w, 56 * 3584), (s_j, 256)])
        self.lin(s_w1M, [(s_w, 14336)])
        self.lin(s_w2O, [(s_w, 16 * 896), (s_p, 128)])
        self.lin(s_w2M, [(s_w, STG_W)], L_STG)
        self.lin(s_w2P, [(s_w, NPARK * 2048)])
        self.lin(s_w2R, [(s_w, 7168)])
        self.lin(s_oL, [(s_rl, 4 * 14336), (s_w, 14336)], WS_O)
        self.lin(s_oS, [(s_p, 2048), (s_oL, 1)])
        self.lin(s_ex, [(s_rl, 49152), (s_w, 1024)], WS_EX)
        self.lin(s_hL, [(s_t1, 4 * 28 * 1024), (s_w, 4096)], WS_H)
        self.lin(s_hLb, [(s_t1, 4 * 28 * 1024), (s_w, 3072)], WS_H + 16384)
        self.lin(s_aM, [(s_w, 4096)])
        self.lin(s_aMb, [(s_w, 3072)], 16384)
        self.lin(s_stL, [(s_t1, 4 * 2048)], WS_ST)
        self.lin(s_h1S, [(s_t1, 4 * 112 * 1024), (s_j, 8192), (s_w, 2048)], WS_H1)
        self.lin(s_h1L, [(s_rl, 2 * 112 * 1024), (s_w, 1024)], WS_H1)
        a('s_lshr_b32 %s, %s, 1' % (S(s_t1), S(s_w)))
        a('s_and_b32 %s, %s, 1' % (S(s_t2), S(s_w)))
        self.lin(s_hS, [(s_rl, 2 * 28 * 1024), (s_t1, 28 * 1024), (s_p, 4096), (s_t2, 256)], WS_H)
        self.lin(s_stS, [(s_rl, 4096), (s_t1, 2048), (s_p, 256), (s_t2, 128)], WS_ST)
        a('s_lshl_b32 %s, %s, 11' % (S(s_kv), S(s_w)))
        a('s_add_u32 %s, %s, 1792' % (S(s_bV), S(s_bW)))
        for sm, k in ((s_M1, 1), (s_M2, 2), (s_M3, 3)):
            m = sum(1 << l for l in range(32) if (l & 3) == k)
            a('s_mov_b32 %s, 0x%x' % (S(sm), m))
            a('s_mov_b32 %s, 0x%x' % (S(sm + 1), m))
        a('s_mov_b32 %s, 0' % S(s_Q3))
        a('s_mov_b32 %s, 0xffff0000' % S(s_Q3 + 1))
        a('s_mov_b32 %s, 0' % S(s_hi))
        a('s_mov_b32 %s, -1' % S(s_hi + 1))
        a('s_mov_b32 %s, 0xffff0000' % S(s_G1))
        a('s_mov_b32 %s, -1' % S(s_G1 + 1))
        self.vF1, self.vF2, self.vF3 = R.alloc(), R.alloc(), R.alloc()
        self.vFs = R.alloc()
        self.vPl = R.alloc(2)
        a('v_min_u32 %s, 6, %s' % (V(self.vF1), V(self.vL)))
        a('v_and_b32 %s, 7, %s' % (V(self.vF2), V(self.vL)))
        a('v_min_u32 %s, 6, %s' % (V(self.vF2), V(self.vF2)))
        a('v_and_or_b32 %s, %s, 8, %s' % (V(self.vF2), V(self.vL), V(self.vF2)))
        a('v_min_u32 %s, 13, %s' % (V(self.vF3), V(self.vL)))
        for x in (self.vF1, self.vF2, self.vF3):
            a('v_mul_u32_u24 %s, %d, %s' % (V(x), FS, V(x)))
        a('v_min_u32 %s, 1, v0' % V(self.vFs))
        a('v_lshlrev_b32 %s, 30, %s' % (V(self.vFs), V(self.vFs)))

    def tag_finish(self):
        a = self.a
        Gen.tag_finish(self)
        a('s_getreg_b32 %s, hwreg(HW_REG_XCC_ID, 0, 4)' % S(s_t1))
        a('s_xor_b32 %s, %s, %s' % (S(s_t1), S(s_t1), S(s_tag + 1)))
        a('v_mov_b32 %s, %s' % (V(self.vPl), S(s_tag)))
        a('v_mov_b32 %s, %s' % (V(self.vPl + 1), S(s_t1)))
        self.lin(s_t0, [(s_j, FS), (s_p0, 1)])
        a('buffer_store_dwordx2 %s, %s, %s, %s offen sc1' % (V(self.vPl, 2), V(self.vFs), S(sWS, 4), S(s_t0)))

    def decide(self):
        a, R = self.a, self.R
        Lk, L = a.newlabel('Lok'), a.newlabel('Lpoll')
        t = R.alloc()

        def test():
            a('v_xor_b32 %s, %s, %s' % (V(t), S(s_tag + 1), V(self.vPl + 1)))
            a('v_cmp_ne_u32 vcc, %s, %s' % (S(s_tag), V(self.vPl)))
            a('v_cmp_lt_u32 %s, 15, %s' % (S(s_ts, 2), V(t)))
            a('s_or_b64 vcc, vcc, %s' % S(s_ts, 2))
        test()
        a('s_cbranch_scc0 %s' % Lk)
        keep = list(a.vmq)
        a('s_mov_b32 %s, 0' % S(s_cnt))
        a.label(L)
        a(self.probe_ins(s_p0, self.vF3))
        a('s_add_u32 %s, %s, 1' % (S(s_cnt), S(s_cnt)))
        a('s_cmp_gt_u32 %s, 0x40000' % S(s_cnt))
        a.force_wait('vmcnt(0)')
        a('s_cbranch_scc1 %s' % Lk)
        test()
        a('s_cbranch_scc1 %s' % L)
        a.vmq = keep
        a.label(Lk)
        a('s_getreg_b32 %s, hwreg(HW_REG_XCC_ID, 0, 4)' % S(s_t0))
        a('v_cmp_ne_u32 vcc, %s, %s' % (S(s_t0), V(t)))
        a('s_cmp_eq_u64 vcc, 0')
        if self.o.get('nolocal'):
            a('s_cmp_eq_u32 0, 1')
        a('s_cselect_b32 %s, 0, 0x40000000' % S(s_t0))
        a('s_xor_b32 %s, %s, 0x40000000' % (S(s_t1), S(s_t0)))
        self.vFsL = self.vF3
        a('v_or_b32 %s, %s, %s' % (V(self.vFsL), S(s_t0), V(self.vFs)))
        a('v_or_b32 %s, %s, %s' % (V(self.vFs), S(s_t1), V(self.vFs)))
        R.release(t)

    def flag2(self, soff, off=0):
        return ['buffer_store_dwordx2 %s, %s, %s, %s offen offset:%d' %
                (V(self.vTag, 2), V(self.vFsL), S(sWS, 4), S(soff), off),
                'buffer_store_dwordx2 %s, %s, %s, %s offen offset:%d sc1' %
                (V(self.vTag, 2), V(self.vFs), S(sWS, 4), S(soff), off)]

    def flag_store(self, soff):
        self.a.seq(self.flag2(soff))

    def kc_next(self):
        return ['s_add_u32 %s, %s, 1' % (S(s_kc), S(s_kc)),
                ['s_cmp_eq_u32 %s, 7' % S(s_kc),
                 's_cselect_b32 %s, 0, %s' % (S(s_kc), S(s_kc))]]

    def p1_dma(self, i):
        sl = L_RING + (i % 3) * SL
        tag = 'c%d' % i
        pre = ['s_mul_i32 %s, %s, %d' % (S(s_oW), S(s_kc), 64 * 2688),
               's_add_u32 %s, %s, %s' % (S(s_oW), S(s_oW), S(s_bW)),
               's_lshl_b32 %s, %s, 7' % (S(s_oX), S(s_kc))] + self.kc_next()
        out = [pre]

        def xd(k):
            m = 's_add_u32 m0, %s, %d' % ((S(s_m0X), sl + XO + 4096 * k) if k < 2 else (S(s_oH), sl + XO + 8192))
            return [m, Ins('buffer_load_dwordx4 %s, %s, %s offen lds' % (V(self.vXd[k]), S(sX, 4), S(s_oX)), tag)]
        out.append(xd(0))
        for mat in range(2):
            out.append(['s_add_u32 m0, %s, %d' % (S(s_m0W), sl + mat * (2048 - 896)),
                        Ins('buffer_load_dwordx4 %s, %s, %s offen offset:%d lds' %
                            (V(self.vWd[0]), S(sWQ, 4), S(s_oW), mat * 896), tag)])
            out.append(Ins('buffer_load_dwordx4 %s, %s, %s offen offset:%d lds' %
                           (V(self.vWd[1]), S(sWQ, 4), S(s_oW), 1024 + mat * 896), tag))
            out.append(xd(1 + mat))
        return out

    def wv_dma(self, i):
        return [['s_mul_i32 %s, %s, %d' % (S(s_oW), S(s_kc), 64 * 2688),
                 's_add_u32 %s, %s, %s' % (S(s_oW), S(s_oW), S(s_bV)),
                 's_add_u32 m0, %s, %d' % (S(s_kv), L_WV + i * 8192),
                 Ins('buffer_load_dwordx4 %s, %s, %s offen lds' % (V(self.vWd[0]), S(sWQ, 4), S(s_oW)), 'wv')],
                ['s_add_u32 %s, %s, 1' % (S(s_kc), S(s_kc)),
                 's_cmp_eq_u32 %s, 7' % S(s_kc),
                 's_cselect_b32 %s, 0, %s' % (S(s_kc), S(s_kc)),
                 Ins('buffer_load_dwordx4 %s, %s, %s offen offset:1024 lds' %
                     (V(self.vWd[1]), S(sWQ, 4), S(s_oW)), 'wv')]]

    def p1_setup(self):
        a, R = self.a, self.R
        vL, vL16 = self.vL, self.vL16
        t0, t1, t2, t3, t4 = [R.alloc() for _ in range(5)]
        self.vOnes = vOnes = R.alloc(4)
        for i in range(4):
            a('v_mov_b32 %s, 0x3f803f80' % V(vOnes + i))
        a('v_mov_b32 %s, %d' % (V(t4), L_RING + 26624))
        for sl in range(3):
            a('ds_write_b128 %s, %s offset:%d' % (V(t4), V(vOnes, 4), sl * SL))
        self.aW, self.aWv = R.alloc(), R.alloc()
        a('v_bfe_u32 %s, %s, 2, 2' % (V(t0), V(vL)))
        a('v_bfe_u32 %s, %s, 4, 1' % (V(t1), V(vL)))
        a('v_lshl_add_u32 %s, %s, 3, %s' % (V(t2), V(t1), V(t0)))
        a('v_lshlrev_b32 %s, 7, %s' % (V(t2), V(t2)))
        a('v_bfe_u32 %s, %s, 3, 1' % (V(t0), V(vL)))
        a('v_lshl_or_b32 %s, %s, 1, %s' % (V(t0), V(t1), V(t0)))
        a('v_xor_b32 %s, %s, %s' % (V(t0), S(s_w), V(t0)))
        a('v_lshl_add_u32 %s, %s, 5, %s' % (V(t2), V(t0), V(t2)))
        a('v_and_b32 %s, 3, %s' % (V(t1), V(vL)))
        a('v_lshl_add_u32 %s, %s, 3, %s' % (V(t2), V(t1), V(t2)))
        a('v_lshrrev_b32 %s, 5, %s' % (V(t3), V(vL)))
        a('v_lshl_add_u32 %s, %s, 11, %s' % (V(self.aWv), V(t3), V(t2)))
        a('v_lshl_add_u32 %s, %s, 12, %s' % (V(self.aW), V(t3), V(t2)))
        a('v_add_u32 %s, %d, %s' % (V(self.aW), L_RING, V(self.aW)))
        self.aX = [R.alloc(), R.alloc()]
        self.aXh = [R.alloc(), R.alloc()]
        self.aXo = [R.alloc(), R.alloc()]
        a('v_and_b32 %s, 15, %s' % (V(t0), V(vL)))
        a('v_lshrrev_b32 %s, 4, %s' % (V(t1), V(vL)))
        a('v_lshrrev_b32 %s, 1, %s' % (V(t2), V(t0)))
        a('v_xor_b32 %s, %s, %s' % (V(t1), V(t1), V(t2)))
        a('v_lshlrev_b32 %s, 4, %s' % (V(t1), V(t1)))
        a('v_lshl_add_u32 %s, %s, 7, %s' % (V(t1), V(t0), V(t1)))
        a('v_add_u32 %s, %d, %s' % (V(self.aX[0]), L_RING + XO, V(t1)))
        a('v_xor_b32 %s, 64, %s' % (V(self.aX[1]), V(self.aX[0])))
        a('v_cmp_eq_u32 vcc, 0, %s' % V(t0))
        a('s_add_u32 %s, %s, 2048' % (S(s_t0), S(s_kv)))
        for s in range(2):
            a('v_cndmask_b32 %s, %s, %s, vcc' % (V(self.aXh[s]), V(self.aX[s]), V(t4)))
            a('v_add_u32 %s, %s, %s' % (V(self.aXo[s]), S(s_t0), V(self.aX[s])))
        self.vBp, self.vBc, self.vMP = R.alloc(4), R.alloc(4), R.alloc(4)
        a('v_lshrrev_b32 %s, 4, %s' % (V(t1), V(vL)))
        a('v_lshlrev_b32 %s, 2, %s' % (V(t1), V(t1)))
        a('v_sub_u32 %s, %s, %s' % (V(t1), V(t0), V(t1)))
        a('v_mov_b32 %s, %s' % (V(t4), f32(-1e30)))
        for k, (base, add) in enumerate(((self.vBp, 16), (self.vBc, 0))):
            for r in range(4):
                mp = self.vMP + 2 * k + (r >> 1)
                a('v_add_u32 %s, %d, %s' % (V(t2), add - r, V(t1)))
                a('v_and_b32 %s, 0xfffffff1, %s' % (V(t2), V(t2)))
                a('v_mov_b32 %s, 0x%x' % (V(t3), 0xffff0000 if r & 1 else 0xffff))
                a('v_cmp_eq_u32 vcc, 0, %s' % V(t2))
                a('v_cndmask_b32 %s, %s, %s, vcc' % (V(base + r), V(t4), V(self.vZero)))
                a('v_cndmask_b32 %s, %s, %s, vcc' % (V(mp), V(mp if r & 1 else self.vZero), V(t3)))
        a('s_or_b32 %s, %s, %s' % (S(s_t0), S(s_w), S(s_r)))
        a('s_cmp_eq_u32 %s, 0' % S(s_t0))
        a('s_cselect_b32 %s, %s, 0' % (S(s_t0), f32(-1e30)))
        for r in range(4):
            a('v_min_f32 %s, %s, %s' % (V(self.vBp + r), S(s_t0), V(self.vBp + r)))
        self.aSt, self.aSo, self.aSv, self.aQw, self.aQr, self.aVw, self.aVr = [R.alloc() for _ in range(7)]
        a('v_lshlrev_b32 %s, 2, %s' % (V(t1), V(t0)))
        a('v_add_u32 %s, %d, %s' % (V(self.aSt), L_STAT, V(t1)))
        self.lin(s_t0, [(s_w, 64)], 64)
        a('v_add_u32 %s, %s, %s' % (V(self.aSo), S(s_t0), V(self.aSt)))
        a('v_and_b32 %s, 0x30, %s' % (V(t1), V(vL)))
        a('v_add_u32 %s, %d, %s' % (V(self.aSv), L_STAT, V(t1)))
        a('v_lshrrev_b32 %s, 1, %s' % (V(t1), V(t1)))
        a('v_mul_u32_u24 %s, %d, %s' % (V(t2), QP, V(t0)))
        a('v_add3_u32 %s, %s, %s, %s' % (V(t1), V(t1), V(t2), self.sconst(L_Q, s_t0)))
        a('s_lshl_b32 %s, %s, 5' % (S(s_t0), S(s_w)))
        a('v_add_u32 %s, %s, %s' % (V(self.aQw), S(s_t0), V(t1)))
        a('s_mul_i32 %s, %s, %d' % (S(s_t0), S(s_w), 16 * QP))
        a('v_add_u32 %s, %s, %s' % (V(self.aQr), S(s_t0), V(t1)))
        a('v_lshlrev_b32 %s, 3, %s' % (V(t1), V(vL)))
        self.lin(s_t0, [(s_w, 2560)], L_VS)
        a('v_add_u32 %s, %s, %s' % (V(self.aVw), S(s_t0), V(t1)))
        self.lin(s_t0, [(s_w, 512)], L_VS)
        a('v_add_u32 %s, %s, %s' % (V(self.aVr), S(s_t0), V(t1)))
        self.vXr = R.alloc(8)
        self.aXr = R.alloc(4)
        a('v_lshrrev_b32 %s, 5, %s' % (V(t1), V(vL)))
        a('v_lshrrev_b32 %s, 1, %s' % (V(t2), V(t0)))
        a('v_xor_b32 %s, %s, %s' % (V(t1), V(t1), V(t2)))
        a('v_lshlrev_b32 %s, 4, %s' % (V(t1), V(t1)))
        a('v_bfe_u32 %s, %s, 4, 1' % (V(t2), V(vL)))
        a('v_lshl_add_u32 %s, %s, 3, %s' % (V(t1), V(t2), V(t1)))
        a('v_lshl_add_u32 %s, %s, 7, %s' % (V(t1), V(t0), V(t1)))
        a('s_add_u32 %s, %s, %d' % (S(s_t0), S(s_kv), L_RING + XO + 2048))
        for t in range(4):
            a('v_xor_b32 %s, %d, %s' % (V(t2), 32 * t, V(t1)))
            a('v_add_u32 %s, %s, %s' % (V(self.aXr + t), S(s_t0), V(t2)))
        self.vWOd = R.alloc()
        a('v_lshrrev_b32 %s, 4, %s' % (V(t0), V(vL)))
        a('v_lshlrev_b32 %s, 5, %s' % (V(t1), V(t0)))
        a('v_and_b32 %s, 0x70, %s' % (V(t2), V(vL16)))
        a('v_xor_b32 %s, %s, %s' % (V(t1), V(t1), V(t2)))
        a('v_lshrrev_b32 %s, 3, %s' % (V(t3), V(vL)))
        a('v_mul_u32_u24 %s, 896, %s' % (V(t3), V(t3)))
        a('v_add_u32 %s, %s, %s' % (V(self.vWOd), V(t1), V(t3)))
        self.vW2d = [R.alloc(), R.alloc()]
        a('v_and_b32 %s, 1, %s' % (V(t1), V(t0)))
        a('v_lshlrev_b32 %s, 6, %s' % (V(t1), V(t1)))
        a('v_xor_b32 %s, %s, %s' % (V(t1), V(t1), V(t2)))
        a('v_add_u32 %s, %s, %s' % (V(self.vW2d[0]), V(t1), V(t3)))
        a('v_add_u32 %s, %d, %s' % (V(self.vW2d[1]), 8 * 896 - 1024, V(self.vW2d[0])))
        self.vW1d = [R.alloc() for _ in range(4)]
        a('v_lshlrev_b32 %s, 6, %s' % (V(t1), V(t0)))
        a('v_and_b32 %s, 0xf0, %s' % (V(t2), V(vL16)))
        a('v_xor_b32 %s, %s, %s' % (V(t1), V(t1), V(t2)))
        a('v_mul_u32_u24 %s, 3584, %s' % (V(t0), V(t0)))
        a('v_add_u32 %s, %s, %s' % (V(self.vW1d[0]), V(t0), V(t1)))
        for i in range(1, 4):
            a('v_add_u32 %s, %d, %s' % (V(self.vW1d[i]), i * (4 * 3584 - 1024), V(self.vW1d[0])))
        self.aWO = [R.alloc() for _ in range(4)]
        a('v_lshrrev_b32 %s, 2, %s' % (V(t0), V(vL)))
        a('v_bfe_u32 %s, %s, 3, 2' % (V(t1), V(vL)))
        a('v_lshlrev_b32 %s, 5, %s' % (V(t1), V(t1)))
        a('v_and_b32 %s, 3, %s' % (V(t2), V(vL)))
        a('v_lshl_or_b32 %s, %s, 3, %s' % (V(t1), V(t2), V(t1)))
        a('v_lshl_add_u32 %s, %s, 7, %s' % (V(t0), V(t0), V(t1)))
        a('v_add_u32 %s, %d, %s' % (V(t0), L_WO4, V(t0)))
        for t in range(4):
            a('v_xor_b32 %s, %d, %s' % (V(self.aWO[t]), 32 * t, V(t0)))
        for r_ in (t0, t1, t2, t3, t4):
            R.release(r_)

    def XF(self, n, j):
        k = 5 * n + j
        return A(4 * k, 4) if k < 64 else V(self.xv + 4 * (k - 64), 4)

    def p1_reads(self, i, s, W, Xo):
        sl = (i % 3) * SL
        n = 2 * i + s
        out = ['ds_read_b128 %s, %s offset:%d' % (V(Xo, 4), V(self.aXo[s]), sl),
               'ds_read_b128 %s, %s offset:%d' % (self.XF(n, 0), V(self.aXh[s]), sl)]

        def w(mat):
            off = sl + s * 8192 + mat * 2048
            return ['ds_read_b64_tr_b16 %s, %s offset:%d' % (V(W[mat] + 2 * h, 2), V(self.aW), off + 512 * h)
                    for h in range(2)]
        out += w(0)
        for j in range(1, 5):
            out.append('ds_read_b128 %s, %s offset:%d' % (self.XF(n, j), V(self.aX[s]), sl + 2048 * j))
        out += w(1)
        return out

    def p1_mfma(self, n, W, Xo):
        def mm(d, x, y):
            return MF16 % (V(d, 4), x, y, '0' if n == 0 else V(d, 4))
        out = [mm(self.XXo, V(Xo, 4), V(Xo, 4)),
               mm(self.RS, V(self.vOnes, 4), V(Xo, 4)),
               mm(self.XXh, self.XF(n, 0), self.XF(n, 0))]
        for j in range(5):
            out.append(mm(self.Q[j], V(W[0], 4), self.XF(n, j)))
        for j in range(5):
            out.append(mm(self.K[j], V(W[1], 4), self.XF(n, j)))
        return out

    def w2_slot(self, k):
        k = FORD.index(k)
        if k < NPRE - NSTG:
            return s_w2P, 1, k * 2048
        if k < NPRE:
            return s_w2M, 0, (k - NPRE + NSTG) * 2048
        if k < NPRE + NSTG:
            return s_w2M, 0, (k - NPRE) * 2048
        n, i = divmod(k - NPRE - NSTG, 3)
        return s_w2R, 2, n * 28672 + i * 2048

    @staticmethod
    def kq(k):
        cls, i = divmod(k, 14)
        return cls, 4 * (i >> 1) + (i & 1)

    def w2_dma(self, k):
        sm, _, off = self.w2_slot(k)
        tag = 'w2_%d' % k
        cls, q = self.kq(k)
        return ['s_add_u32 m0, %s, %d' % (S(sm), off),
                's_add_u32 %s, %s, %d' % (S(s_d), S(s_w2O1 if cls else s_w2O), q * 64 * 896),
                Ins('buffer_load_dwordx4 %s, %s, %s offen lds' % (V(self.vW2d[0]), S(sW2, 4), S(s_d)), tag),
                Ins('buffer_load_dwordx4 %s, %s, %s offen offset:1024 lds' % (V(self.vW2d[1]), S(sW2, 4), S(s_d)), tag)]

    def flag3(self, s):
        return self.flag2(s_f3, s * 16 * FS)

    def probe3(self, s):
        return 'buffer_load_dwordx2 %s, %s, %s, %s offen offset:%d sc1' % (
            V(self.vPl, 2), V(self.vF1), S(sWS, 4), S(s_p31 if s & 1 else s_p3), s * 16 * FS)

    def check3(self, s):
        a = self.a
        Lk, L = a.newlabel('Lok'), a.newlabel('Lpoll')
        a('v_cmp_ne_u64 vcc, %s, %s' % (S(s_tag, 2), V(self.vPl, 2)))
        a('s_nop 1')
        a('s_cbranch_vccz %s' % Lk)
        keep = list(a.vmq)
        a('s_mov_b32 %s, 0' % S(s_cnt))
        a.label(L)
        a(self.probe3(s))
        a('s_add_u32 %s, %s, 1' % (S(s_cnt), S(s_cnt)))
        a('s_cmp_gt_u32 %s, 0x40000' % S(s_cnt))
        a.force_wait('vmcnt(0)')
        a('s_cbranch_scc1 %s' % Lk)
        a('v_cmp_ne_u64 vcc, %s, %s' % (S(s_tag, 2), V(self.vPl, 2)))
        a('s_nop 1')
        a('s_cbranch_vccnz %s' % L)
        if self.o.get('ts'):
            a('v_writelane_b32 %s, %s, %d' % (V(self.vTS), S(s_cnt), 60 + s))
        a.vmq = keep
        a.label(Lk)
        self.stamp(4)

    def w1_pieces(self, half):
        out = []
        for i in range(14):
            d = Ins('buffer_load_dwordx4 %s, %s, %s offen offset:%d lds' %
                    (V(self.vW1d[i & 3]), S(sW1, 4), S(s_d), (i & 3) * 1024), 'w1')
            if i & 3 == 0:
                out.append(['s_add_u32 m0, %s, %d' % (S(s_w1M), L_W1H[half] + i * 1024),
                            's_add_u32 %s, %s, %d' % (S(s_d), S(s_w1O), (224 * half + 4 * i) * 3584), d])
            else:
                out.append(d)
        return out

    def wo_reads(self, lo, hi):
        return ['ds_read_b64_tr_b16 %s, %s offset:%d' %
                (A(16 * ks + 4 * t + 2 * sec, 2), V(self.aWO[t]), ks * 4096 + sec * 2048)
                for ks in range(lo, hi) for t in range(4) for sec in range(2)]

    def resid(self, i):
        a = self.a
        rls = [rl for rl in range(4) if (-2 * rl) % 7 == i]
        if not rls:
            return
        L = a.newlabel('Lres')
        a('s_cmp_lg_u32 %s, %d' % (S(s_rl), rls[0]))
        a('s_cbranch_scc1 %s' % L)
        keep = list(a.lgq)
        for t in range(4):
            a('ds_read_b64 %s, %s offset:%d' % (V(self.vXr + 2 * t, 2), V(self.aXr + t), (i % 3) * SL))
        a.force_wait('lgkmcnt(0)')
        a.lgq = keep
        a.label(L)

    def p1(self):
        a, R = self.a, self.R
        self.late_setup()
        self.p1_setup()
        self.addr2()
        self.Q = [R.alloc(4) for _ in range(5)]
        self.K = [R.alloc(4) for _ in range(5)]
        self.XXo, self.XXh, self.RS = R.alloc(4), R.alloc(4), R.alloc(4)
        self.xv = R.alloc(24)
        W = [[R.alloc(4) for _ in range(2)] for _ in range(2)]
        Xo = [R.alloc(4), R.alloc(4)]
        if self.o.get('iw', 1):
            a('s_mov_b64 exec, 0')
            for k in range(3):
                a('s_cmp_eq_u32 %s, %d' % (S(s_w), k))
                a('s_cbranch_scc1 Lch%d' % k)
            for c in range(1, 7):
                a('s_cmp_eq_u32 %s, %d' % (S(s_p), c))
                a('s_cbranch_scc1 Lvar%d' % c)
            a('s_branch Lvar0')
            a.raw('.p2align 12')
            a.label('Lback')
            a('s_mov_b64 exec, -1')
        D = self.o.get('defer', 6)
        defer = []
        wv = [x for i in range(7) for x in self.wv_dma(i)]
        for i in range(7):
            a.wait_vm('c%d' % i)
            a.barrier()
            self.stamp(1 if i in (0, 6) else 2)
            r0 = self.p1_reads(i, 0, W[0], Xo[0])
            r1 = self.p1_reads(i, 1, W[1], Xo[1])
            m1 = self.p1_mfma(2 * i + 1, W[1], Xo[1])
            keep = 13 - D if i < 6 else 13
            mf = defer + self.p1_mfma(2 * i, W[0], Xo[0]) + m1[:keep]
            nd = len(defer)
            defer = m1[keep:]
            st = []
            if nd:
                a.seq(r0[:2])
                st.append((r0[2:], 0, nd))
            else:
                a.seq(r0)
                self.tag_finish()
            st.append((r1, nd, nd + 10))
            if i + 2 < 7:
                d = self.p1_dma(i + 2)
                st.append((d[0], 0, 3))
                st.append((d[1:], 3, len(mf)))
            else:
                st.append((wv[:6] if i == 5 else wv[6:] + [self.tch[x] for x in self.o.get('t6', 'b')], 0, len(mf)))
            a.slots(mf, st)
            self.resid(i)
        for x in W[1] + Xo:
            R.release(x, 4)
        for r_ in self.vWd + self.vXd + self.aX + self.aXh + self.aXo + [self.aW]:
            R.release(r_)
        R.release(self.aXr, 4)
        self.stamp()
        self.epi1()
        for x in W[0] + self.Q + [self.XXo, self.XXh, self.RS]:
            R.release(x, 4)
        for r_ in (self.aSt, self.aSo, self.aQw):
            R.release(r_)
        for c in range(1, 7):
            a('s_cmp_eq_u32 %s, %d' % (S(s_p), c))
            a('s_cbranch_scc1 Lvar%d' % c)
        self.Of = R.alloc(8)
        st0 = (list(a.vmq), list(a.lgq), self.nts, set(R.free))
        ends = []
        for c in range(7):
            a.label('Lvar%d' % c)
            a.vmq, a.lgq, self.nts, R.free = list(st0[0]), list(st0[1]), st0[2], set(st0[3])
            self.attn(c)
            ends.append([o.tag for o in a.vmq])
            if c < 6:
                a('s_branch Ljoin')
        a.label('Ljoin')
        a.fence()
        assert all(e[-2:] == ['pub', 'pub'] for e in ends)
        R.free = set(st0[3])
        for x in self.K + [self.vBp, self.vBc, self.vMP]:
            R.release(x, 4)
        R.release(self.xv, 24)
        for r_ in (self.aSv, self.aQr, self.aVw, self.aVr, self.aWv, self.vWOd, self.cq, self.vT1, self.vT2):
            R.release(r_)
        self.stamp()

    def epi1(self):
        a, R = self.a, self.R
        Q, K = self.Q, self.K
        e = a
        so, sh = R.alloc(2), R.alloc(2)
        bc = R.alloc(4)

        def sel(dst, src):
            e('v_cndmask_b32 %s, %s, %s, %s' % (V(dst), V(src), V(src + 1), S(s_M1, 2)))
            e('v_cndmask_b32 %s, %s, %s, %s' % (V(dst), V(dst), V(src + 2), S(s_M2, 2)))
            e('v_cndmask_b32 %s, %s, %s, %s' % (V(dst), V(dst), V(src + 3), S(s_M3, 2)))
        sel(so + 1, self.XXo)
        e('v_mul_f32 %s, %s, %s' % (V(so), f32(-1.0 / 448), V(self.RS)))
        for r in range(4):
            e('v_mov_b32_dpp %s, %s row_newbcast:0 row_mask:0xf bank_mask:0xf' % (V(bc + r), V(self.XXh + r)))
        sel(sh + 1, self.XXh)
        sel(sh, bc)
        e('v_mul_f32 %s, %s, %s' % (V(sh), f32(-1.0 / 448), V(sh)))
        for x in (so, sh):
            e('v_mul_f32 %s, %s, %s' % (V(x + 1), f32(1.0 / 448), V(x + 1)))
            e('v_fma_f32 %s, -%s, %s, %s' % (V(x + 1), V(x), V(x), V(x + 1)))
            e('v_max_f32 %s, 0, %s' % (V(x + 1), V(x + 1)))
            e('v_add_f32 %s, %s, %s' % (V(x + 1), f32(1e-5), V(x + 1)))
            e('v_rsq_f32 %s, %s' % (V(x + 1), V(x + 1)))
        e('s_mov_b32 exec_lo, 0x00f0000f')
        e('s_mov_b32 exec_hi, 0xf0000f00')
        e('ds_write2_b32 %s, %s, %s offset0:0 offset1:80' % (V(self.aSo), V(so), V(so + 1)))
        e('ds_write2_b32 %s, %s, %s offset0:0 offset1:80' % (V(self.aSt), V(sh), V(sh + 1)))
        e('s_mov_b64 exec, -1')
        a.barrier()
        sT = [R.alloc(2) for _ in range(5)]
        self.cq = R.alloc()
        for j in (1, 2, 3, 4, 0):
            e('ds_read2_b32 %s, %s offset0:%d offset1:%d' % (V(sT[j], 2), V(self.aSt), 16 * j, 80 + 16 * j))
        e('ds_read_b32 %s, %s offset:320' % (V(self.cq), V(self.aSo)))
        dp = 'row_newbcast:0 row_mask:0xf bank_mask:0xf'
        for j in range(1, 5):
            for r in range(4):
                e('v_fmac_f32_dpp %s, %s, %s %s' % (V(Q[j] + r), V(Q[0] + r), V(sT[j]), dp))
            for h in range(2):
                e('v_cvt_pk_bf16_f32 %s, %s, %s' % (V(Q[j] + h), V(Q[j] + 2 * h), V(Q[j] + 2 * h + 1)))
        for j in range(1, 5):
            e('ds_write_b64 %s, %s offset:%d' % (V(self.aQw), V(Q[j], 2), (j - 1) * 16 * QP))
        for j in (1, 2, 3, 4, 0):
            for r in range(4):
                e('v_fmac_f32_dpp %s, %s, %s %s' % (V(K[j] + r), V(K[0] + r), V(sT[j]), dp))
            for h in range(2):
                e('v_pk_mul_f32 %s, %s, %s op_sel:[0,1] op_sel_hi:[1,1]' %
                  (V(K[j] + 2 * h, 2), V(K[j] + 2 * h, 2), V(sT[j], 2)))
            for h in range(2):
                e('v_cvt_pk_bf16_f32 %s, %s, %s' % (V(K[j] + h), V(K[j] + 2 * h), V(K[j] + 2 * h + 1)))
        for j in (1, 2, 3, 4, 0):
            e('ds_write_b64 %s, %s offset:%d' % (V(self.aQw), V(K[j], 2), L_K - L_Q + j * 16 * QP))
        cs = (28 ** -0.5) * math.log2(math.e)
        e('v_mul_f32 %s, %s, %s' % (V(self.cq), f32(cs), V(self.cq)))
        a.barrier()
        self.stamp(2)
        R.release(so, 2); R.release(sh, 2); R.release(bc, 4)
        for x in sT:
            R.release(x, 2)

    def attn(self, c):
        a, R = self.a, self.R
        segs = segments(c)
        vL16, cq = self.vL16, self.cq
        GE = {1: s_G1, 2: s_hi, 3: s_Q3}

        class SG:
            pass
        sg = []
        for (g0, g1, kind) in segs:
            s = SG()
            s.g0, s.g1, s.kind = g0, g1, kind
            s.w0 = min(g0, 8)
            s.q, s.kp, s.kc = R.alloc(4), R.alloc(4), R.alloc(4)
            s.sp, s.sc = R.alloc(4), R.alloc(4)
            s.v = R.alloc(4)
            s.P = s.q
            sg.append(s)

        def reads(s):
            o = s.w0
            kb = (L_K - L_Q) // 8
            out = []
            out.append('ds_read2_b64 %s, %s offset0:%d offset1:%d' % (V(s.q, 4), V(self.aQr), o, o + 4))
            out.append('ds_read2_b64 %s, %s offset0:%d offset1:%d' % (V(s.kp, 4), V(aKp), o, o + 4))
            out.append('ds_read2_b64 %s, %s offset0:%d offset1:%d' % (V(s.kc, 4), V(aKc), o, o + 4))
            return out

        def qmask(s):
            out = []
            for h in range(2):
                b = s.w0 + 4 * h
                lo, hi = max(s.g0 - b, 0), min(s.g1 - b, 4)
                for k in range(2):
                    r = V(s.q + 2 * h + k)
                    if lo >= hi:
                        out.append('v_mov_b32 %s, 0' % r)
                    else:
                        assert lo == 0 or hi == 4
                        if lo > 0:
                            out.append('v_cndmask_b32 %s, %s, %s, %s' % (r, V(self.vZero), r, S(GE[lo], 2)))
                        elif hi < 4:
                            out.append('v_cndmask_b32 %s, %s, %s, %s' % (r, r, V(self.vZero), S(GE[hi], 2)))
            return out

        def logits(s):
            return [MF16 % (V(s.sp, 4), V(s.kp, 4), V(s.q, 4), V(self.vBp, 4)),
                    MF16 % (V(s.sc, 4), V(s.kc, 4), V(s.q, 4), V(self.vBc, 4))]

        def compact(s):
            return ['v_max3_f32 %s, %s, %s, %s' % (V(s.v), V(s.sp), V(s.sp + 1), V(s.sc)),
                    'v_max3_f32 %s, %s, %s, %s' % (V(s.v + 2), V(s.sp + 2), V(s.sp + 3), V(s.sc + 2)),
                    'v_max_f32 %s, %s, %s' % (V(s.v), V(s.v), V(s.sc + 1)),
                    'v_max_f32 %s, %s, %s' % (V(s.v + 2), V(s.v + 2), V(s.sc + 3))]

        def allred(op, x, y):
            if len(x) == 2:
                p, q_ = x
                return ['v_permlane16_swap_b32 %s, %s' % (V(p), V(q_)),
                        '%s %s, %s, %s' % (op, V(p), V(p), V(q_)),
                        'v_mov_b32 %s, %s' % (V(q_), V(p)),
                        'v_permlane32_swap_b32 %s, %s' % (V(p), V(q_)),
                        '%s %s, %s, %s' % (op, V(p), V(p), V(q_)),
                        'v_mov_b32 %s, %s' % (V(q_), V(p)),
                        'v_permlane16_swap_b32 %s, %s' % (V(p), V(q_))]
            p = x[0]
            return ['v_mov_b32 %s, %s' % (V(y), V(p)),
                    'v_permlane16_swap_b32 %s, %s' % (V(p), V(y)),
                    '%s %s, %s, %s' % (op, V(p), V(p), V(y)),
                    'v_mov_b32 %s, %s' % (V(y), V(p)),
                    'v_permlane32_swap_b32 %s, %s' % (V(p), V(y)),
                    '%s %s, %s, %s' % (op, V(p), V(p), V(y))]

        def softmax(ss):
            out = []
            m = [s.sp for s in ss]
            for s in ss:
                out.append('v_max_f32 %s, %s, %s' % (V(s.sp), V(s.v), V(s.v + 2)))
            out += allred('v_max_f32', m, ss[0].sp + 1)
            for s in ss:
                out.append('v_mul_f32 %s, %s, %s' % (V(s.sp), V(s.sp), V(cq)))
                for k in (0, 2):
                    out.append('v_fma_f32 %s, %s, %s, -%s' % (V(s.v + k), V(s.v + k), V(cq), V(s.sp)))
            for s in ss:
                for k in (0, 2):
                    out.append('v_exp_f32 %s, %s' % (V(s.v + k), V(s.v + k)))
            for s in ss:
                out.append('v_add_f32 %s, %s, %s' % (V(s.sp), V(s.v), V(s.v + 2)))
            out += allred('v_add_f32', m, ss[0].sp + 1)
            for s in ss:
                out.append('v_rcp_f32 %s, %s' % (V(s.sp), V(s.sp)))
            for s in ss:
                for k in (0, 2):
                    out.append('v_mul_f32 %s, %s, %s' % (V(s.v + k), V(s.v + k), V(s.sp)))
                for k in (0, 2):
                    out.append('v_cvt_pk_bf16_f32 %s, %s, %s' % (V(s.v + k), V(s.v + k), V(s.v + k)))
                for k in range(4):
                    out.append('v_and_b32 %s, %s, %s' % (V(s.P + k), V(s.v + 2 * (k & 1)), V(self.vMP + k)))
            return out
        edge = [s for s in sg if s.kind != 'M']
        mid = [s for s in sg if s.kind == 'M']
        aKp, aKc = R.alloc(), R.alloc()
        a('v_add_u32 %s, %d, %s' % (V(aKp), L_K - L_Q, V(self.aQr)))
        a('v_add_u32 %s, %d, %s' % (V(aKc), L_K - L_Q + 16 * QP, V(self.aQr)))
        for s in edge + mid:
            a.seq(reads(s))
        NB = 4
        wb = [R.alloc(4) for _ in range(NB)]

        def wrd(n):
            return ['ds_read_b64_tr_b16 %s, %s offset:%d' % (V(wb[n % NB] + 2 * h, 2), V(self.aWv), n * 4096 + 512 * h)
                    for h in range(2)]
        for s in edge:
            a('v_mov_b32 %s, %s' % (V(s.v + 1), S(s_tag)))
            a('v_mov_b32 %s, %s' % (V(s.v + 3), S(s_tag + 1)))
        for s in edge:
            a.seq(qmask(s))
        Vv = self.K

        def vm(n):
            return [MF16 % (V(Vv[j], 4), self.XF(n, j), V(wb[n % NB], 4), '0' if n == 0 else V(Vv[j], 4))
                    for j in range(5)]

        def exoff(s, mine):
            b = c - 1 if s.kind == 'L' else c
            side = (s.kind == 'L') == mine
            return (2 * b + side) * 4096
        ne = 2 * len(edge)
        mf = []
        for n in range(14):
            mf += vm(n)
        pub = []
        for s in edge:
            pub += compact(s)
        for k, s in enumerate(edge):
            pub.append(['s_add_u32 %s, %s, %d' % (S(s_t0 + 3 * k), S(s_ex), exoff(s, True)),
                        Ins('buffer_store_dwordx4 %s, %s, %s, %s offen @SC' %
                            (V(s.v, 4), V(vL16), S(sWS, 4), S(s_t0 + 3 * k)), 'ex')])
        pool = [s.kc for s in sg] + [s.sc for s in sg] + [s.kp for s in mid]
        while len(pool) < 10:
            pool.append(R.alloc(4))
        mV, rV = pool[:5], pool[5:10]
        srd_ = []
        for j in range(5):
            srd_.append('ds_read_b128 %s, %s offset:%d' % (V(mV[j], 4), V(self.aSv), 64 * j))
            srd_.append('ds_read_b128 %s, %s offset:%d' % (V(rV[j], 4), V(self.aSv), 320 + 64 * j))

        def probe(s, k):
            return ['s_add_u32 %s, %s, %d' % (S(s_t1 + k), S(s_ex), exoff(s, False)),
                    'buffer_load_dwordx4 %s, %s, %s, %s offen sc1' % (V(s.kp, 4), V(vL16), S(sWS, 4), S(s_t1 + k))]
        lg = [x for s in edge + mid for x in logits(s)]
        a.slots(lg, [([x for s in mid for x in qmask(s)], 0, ne)])
        for k, x in enumerate(pub):
            if isinstance(x, list):
                a(x[0])
        a.seq([x if not isinstance(x, list) else x[1] for x in pub])
        self.stamp(2)
        a.wait_vm('wv')
        a.rawbar()
        for n in range(NB - 1):
            a.seq(wrd(n))
        a.seq([x for s in mid for x in compact(s)])
        wreads = [wrd(n) for n in range(NB - 1, 14)]
        n_ = len(mf)
        st = [(wreads, 0, 55),
              (softmax(mid), 0, 50),
              ([self.tch[x] for x in self.o.get('tp', '')] + self.w1_pieces(0), 0, self.o.get('woend', 56)),
              (srd_, 53, 63),
              (self.scalar2(), 0, 60),
              (self.bias, 58, 62),
              ([self.probe_ins(s_p0, self.vF3)] + [probe(s, k) for k, s in enumerate(edge)], n_ - 4, n_ - 1)]
        a.slots(mf, st)
        self.stamp(2)
        cv = R.alloc(2)
        tm = cv + 1
        a('v_mov_b32 %s, %s' % (V(cv), V(Vv[0])))
        a('v_mov_b32 %s, %s' % (V(tm), V(Vv[0])))
        a('v_permlane16_swap_b32 %s, %s' % (V(cv), V(tm)))
        a('v_mov_b32 %s, %s' % (V(tm), V(cv)))
        a('v_permlane32_swap_b32 %s, %s' % (V(cv), V(tm)))
        for j in range(5):
            for h in range(2):
                a('v_pk_fma_f32 %s, %s, %s, %s op_sel_hi:[1,0,1]' %
                  (V(Vv[j] + 2 * h, 2), V(mV[j] + 2 * h, 2), V(cv, 2), V(Vv[j] + 2 * h, 2)))
            for h in range(2):
                a('v_pk_mul_f32 %s, %s, %s' % (V(Vv[j] + 2 * h, 2), V(Vv[j] + 2 * h, 2), V(rV[j] + 2 * h, 2)))
            for h in range(2):
                a('v_cvt_pk_bf16_f32 %s, %s, %s' % (V(Vv[j] + h), V(Vv[j] + 2 * h), V(Vv[j] + 2 * h + 1)))
        for j in range(5):
            a('ds_write_b64 %s, %s offset:%d' % (V(self.aVw), V(Vv[j], 2), 512 * j))
        a.barrier()
        Vf = mV[:4]
        for t in range(4):
            a('ds_read2st64_b64 %s, %s offset0:%d offset1:%d' % (V(Vf[t], 4), V(self.aVr), 5 * t, 5 * t + 1))
        wo = self.wo_dma(0, 14)
        a.seq(wo[:5])
        self.stamp(2)
        ng = self.o.get('woe', 14)
        Lk, Lp, Ld = a.newlabel('Lxk'), a.newlabel('Lxp'), a.newlabel('Lxd')

        def test():
            for k, s in enumerate(edge):
                a('v_cmp_ne_u32 %s, %s, %s' % ('vcc' if k == 0 else S(s_ts, 2), S(s_tag), V(s.kp + 1)))
                a('v_cmp_ne_u32 %s, %s, %s' % (S(s_ts + 2, 2), S(s_tag + 1), V(s.kp + 3)))
                if k:
                    a('s_or_b64 vcc, vcc, %s' % S(s_ts, 2))
                a('s_or_b64 vcc, vcc, %s' % S(s_ts + 2, 2))
        test()
        a('s_cbranch_scc0 %s' % Lk)
        keep = list(a.vmq)
        a('s_mov_b32 %s, 0' % S(s_cnt))
        a.label(Lp)
        for k, s in enumerate(edge):
            a(probe(s, k)[1])
        a('s_add_u32 %s, %s, 1' % (S(s_cnt), S(s_cnt)))
        a('s_cmp_gt_u32 %s, 0x40000' % S(s_cnt))
        a.force_wait('vmcnt(0)')
        a('s_cbranch_scc1 %s' % Lk)
        test()
        a('s_cbranch_scc1 %s' % Lp)
        if self.o.get('ts'):
            a('v_writelane_b32 %s, %s, 59' % (V(self.vTS), S(s_cnt)))
        a.vmq = keep
        a.label(Lk)
        self.stamp(2)
        a.seq([self.tch[x] for x in self.o.get('tf', '')])
        a.seq(wo[5:9])
        for s in edge:
            a('v_add_f32 %s, %s, %s' % (V(s.v), V(s.v), V(s.kp)))
            a('v_add_f32 %s, %s, %s' % (V(s.v + 2), V(s.v + 2), V(s.kp + 2)))
        prods = []
        free = [rV[j] for j in range(5)] + [mV[4]] + wb
        for t in range(4):
            for s in sg:
                if s.g0 < 4 * t + 4 and s.g1 > 4 * t:
                    prods.append((t, s, free.pop()))
        pm = lambda p: MF16 % (V(p[2], 4), V(Vf[p[0]], 4), V(p[1].P, 4), '0')
        early = [p for p in prods if p[1].kind == 'M']
        late = [p for p in prods if p[1].kind != 'M']
        sm = softmax(edge)
        k2 = 2 * (len(early) - 1)
        a.slots([pm(p) for p in early], [(sm[:k2], 0, len(early) - 1), (sm[k2:], len(early) - 1, len(early))])
        a.seq(wo[9:ng])

        def pack(p):
            t, s, r = p
            first = s.g0 <= 4 * t
            d = self.Of + 2 * t if first else r
            return ['v_cvt_pk_bf16_f32 %s, %s, %s' % (V(d + h), V(r + 2 * h), V(r + 2 * h + 1)) for h in range(2)]
        a.slots([pm(p) for p in late], [([x for p in early for x in pack(p)], 0, len(late))])
        for p in late:
            a.seq(pack(p))
        for f in range(2):
            for (t, s, r) in prods:
                if t >> 1 == f and s.g0 > 4 * t:
                    for h in range(2):
                        d = V(self.Of + 2 * t + h)
                        a('v_cndmask_b32 %s, %s, %s, %s' % (d, d, V(r + h), S(GE[s.g0 - 4 * t], 2)))
        for f in range(2):
            a('buffer_store_dwordx4 %s, %s, %s, %s offen offset:%d @SC' %
              (V(self.Of + 4 * f, 4), V(vL16), S(sWS, 4), S(s_oS), f * 1024), 'pub')
        self.wo_rest = wo[ng:]
        a.wait_lg()

    def scalar2(self):
        real, out = self.a, []
        a = self.a = out.append
        a('s_and_b32 %s, %s, 1' % (S(s_t0), S(s_j)))
        a('s_xor_b32 %s, %s, 1' % (S(s_t1), S(s_t0)))
        for b0, b1, stride in ((s_hL, s_hL1, 57344), (s_hLb, s_hLb1, 57344), (s_h1S, s_h1S1, 224 * 1024)):
            self.lin(b1, [(s_t1, stride), (b0, 1)])
            a('s_mul_i32 %s, %s, %d' % (S(s_t2), S(s_t0), stride))
            a('s_add_u32 %s, %s, %s' % (S(b0), S(b0), S(s_t2)))
        a('s_lshr_b32 %s, %s, 1' % (S(s_t2), S(s_j)))
        self.lin(s_f3, [(s_t0, 8 * FS), (s_t2, FS), (s_p3, 1)])
        a('s_xor_b32 %s, %s, %s' % (S(s_t0), S(s_t0), S(s_w)))
        a('s_and_b32 %s, %s, 1' % (S(s_t0), S(s_t0)))
        a('s_lshr_b32 %s, %s, 1' % (S(s_t2), S(s_w)))
        self.lin(s_t1, [(s_t0, 4096), (s_t2, 2048)])
        a('s_add_u32 %s, %s, %s' % (S(s_stL), S(s_stL), S(s_t1)))
        a('s_and_b32 %s, %s, 1' % (S(s_t0), S(s_rl)))
        for b0, b1, stride in ((s_w2O, s_w2O1, 128 * 896), (s_h1L, s_h1L1, 8192), (s_p3, s_p31, 8 * FS)):
            a('s_mul_i32 %s, %s, %d' % (S(s_t2), S(s_t0), stride))
            a('s_sub_u32 %s, %s, %s' % (S(b1), S(b0), S(s_t2)))
            a('s_add_u32 %s, %s, %d' % (S(b1), S(b1), stride))
            a('s_add_u32 %s, %s, %s' % (S(b0), S(b0), S(s_t2)))
        self.a = real
        return out

    def addr2(self):
        a, R = self.a, self.R
        vL, vL16 = self.vL, self.vL16
        t0, t1 = R.alloc(), R.alloc()
        self.aW2 = [[R.alloc(), R.alloc()] for _ in range(3)]
        aW1 = [R.alloc(), R.alloc()]
        t2 = R.alloc()
        a('v_bfe_u32 %s, %s, 4, 1' % (V(t1), V(vL)))
        a('v_lshlrev_b32 %s, 5, %s' % (V(t2), V(t1)))
        a('v_and_b32 %s, 3, %s' % (V(t1), V(vL)))
        a('v_lshl_add_u32 %s, %s, 3, %s' % (V(t2), V(t1), V(t2)))
        a('v_bfe_u32 %s, %s, 2, 2' % (V(t0), V(vL)))
        a('v_lshrrev_b32 %s, 5, %s' % (V(t1), V(vL)))
        a('v_lshl_add_u32 %s, %s, 2, %s' % (V(t1), V(t1), V(t0)))
        a('v_xor_b32 %s, %s, %s' % (V(t0), S(s_w), V(t0)))
        a('v_lshl_add_u32 %s, %s, 6, %s' % (V(t0), V(t0), V(t2)))
        a('v_lshl_add_u32 %s, %s, 8, %s' % (V(aW1[0]), V(t1), V(t0)))
        a('v_add_u32 %s, %d, %s' % (V(aW1[1]), L_W1H[1], V(aW1[0])))
        a('v_add_u32 %s, %d, %s' % (V(aW1[0]), L_W1H[0], V(aW1[0])))
        a('v_lshl_add_u32 %s, %s, 7, %s' % (V(t0), V(t1), V(t2)))
        a('v_bfe_u32 %s, %s, 3, 1' % (V(t1), V(vL)))
        a('v_lshl_add_u32 %s, %s, 6, %s' % (V(t0), V(t1), V(t0)))
        a('v_xor_b32 %s, 64, %s' % (V(t1), V(t0)))
        for k, sm in enumerate((s_w2M, s_w2P, s_w2R)):
            a('v_add_u32 %s, %s, %s' % (V(self.aW2[k][0]), S(sm), V(t0)))
            a('v_add_u32 %s, %s, %s' % (V(self.aW2[k][1]), S(sm), V(t1)))
        self.aW1 = aW1
        self.vB1 = R.alloc()
        self.vB2 = R.alloc(4)
        self.lin(s_t0, [(s_j, 256), (s_w, 64)])
        a('v_and_b32 %s, 31, %s' % (V(t0), V(vL)))
        a('v_lshl_add_u32 %s, %s, 1, %s' % (V(self.vB1), V(t0), S(s_t0)))
        a('s_lshl_b32 %s, %s, 7' % (S(s_t1), S(s_p)))
        a('v_and_b32 %s, 0x70, %s' % (V(t1), V(vL16)))
        a('v_add_u32 %s, %s, %s' % (V(self.vB2), S(s_t1), V(t1)))
        self.vT1, self.vT2 = R.alloc(), R.alloc()
        a('v_min_u32 %s, 55, %s' % (V(t0), V(vL)))
        a('s_lshr_b32 %s, %s, 1' % (S(s_t1), S(s_rl)))
        self.lin(s_t0, [(s_t1, 112 * 3584), (s_w, 28 * 3584), (s_j, 256)])
        a('v_lshrrev_b32 %s, 1, %s' % (V(t1), V(t0)))
        a('v_mul_u32_u24 %s, 3584, %s' % (V(t1), V(t1)))
        a('v_and_b32 %s, 1, %s' % (V(t2), V(t0)))
        a('v_lshlrev_b32 %s, 7, %s' % (V(t2), V(t2)))
        a('v_add3_u32 %s, %s, %s, %s' % (V(self.vT1), V(t1), V(t2), S(s_t0)))
        self.lin(s_t0, [(s_rl, 224 * 896), (s_w, 56 * 896), (s_p, 128)])
        a('v_mul_u32_u24 %s, 896, %s' % (V(t1), V(t0)))
        a('v_add_u32 %s, %s, %s' % (V(self.vT2), S(s_t0), V(t1)))
        jk = V(self.vJunk)
        self.tch = {
            'a': [nodep('buffer_load_dword %s, %s, %s, 0 offen' % (jk, V(self.vT1), S(sW1, 4)))],
            'b': ['s_mov_b32 %s, %d' % (S(s_cnt), 224 * 3584),
                  nodep('buffer_load_dword %s, %s, %s, %s offen' % (jk, V(self.vT1), S(sW1, 4), S(s_cnt)))],
            'c': [nodep('buffer_load_dword %s, %s, %s, 0 offen' % (jk, V(self.vT2), S(sW2, 4)))]}
        self.bias = ['buffer_load_ushort %s, %s, %s, 0 offen' % (V(self.vB1), V(self.vB1), S(sB1, 4)),
                     'buffer_load_dwordx4 %s, %s, %s, 0 offen' % (V(self.vB2, 4), V(self.vB2), S(sB2, 4))]
        for r_ in (t0, t1, t2):
            R.release(r_)

    def h1_window(self):
        a, R = self.a, self.R
        aW1 = self.aW1
        a.seq(self.wo_rest)
        self.W1 = [R.alloc(4) for _ in range(28)]
        self.w1rd = []
        for ks in range(28):
            row = 32 * (ks >> 1) + 8 * (ks & 1)
            hi = row >= 224
            off = (row - 224 * hi) * 256
            self.w1rd.append('ds_read_b64_tr_b16 %s, %s offset:%d' % (V(self.W1[ks], 2), V(aW1[hi]), off))
            self.w1rd.append('ds_read_b64_tr_b16 %s, %s offset:%d' % (V(self.W1[ks] + 2, 2), V(aW1[hi]), off + 4096))
        self.aW1 = aW1
        a.rawbar()
        wb = self.w1_pieces(1)
        nb0 = self.o.get('w1x', 14)
        a.seq(weave(self.w1rd[:28], wb[:min(4, nb0)]))
        self.decide()
        a.wait_vm('wo')
        a.barrier()
        wr = self.wo_reads(0, 14)
        n1, n2 = self.o.get('wor1', 40), self.o.get('wor2', 72)
        a.seq(weave(wr[:n1], wb[4:nb0]))
        a.wait_vm('pub')
        a.rawbar()
        self.flag_store(s_f1)
        R.release(self.Of, 8)
        self.stamp()
        a.seq(wr[n1:n2])
        a.seq(self.p2_init())
        self.wo_late = wr[n2:]
        assert nb0 == 14

    def colsum(self, streams):
        a, R = self.a, self.R
        cs = R.alloc(16)
        t0 = R.alloc()
        mf = [MF32 % (V(cs, 16), V(self.vOnes, 4), V(self.W1[ks], 4), '0' if ks == 0 else V(cs, 16))
              for ks in range(28)]
        a.slots(mf, streams, prewait=False)
        a.wait_vm('pub')
        a.rawbar()
        self.flag_store(s_f2)
        self.stamp()
        ex = R.alloc(4)
        a('v_lshlrev_b32 %s, 16, %s' % (V(self.vB1), V(self.vB1)))
        a('v_cvt_pk_bf16_f32 %s, %s, %s' % (V(t0), V(cs), V(cs)))
        a('v_lshlrev_b32 %s, 16, %s' % (V(t0), V(t0)))
        a('v_sub_f32 %s, %s, %s' % (V(t0), V(cs), V(t0)))
        a('v_cvt_pk_bf16_f32 %s, %s, %s' % (V(ex), V(cs), V(t0)))
        a('v_cvt_pk_bf16_f32 %s, %s, %s' % (V(ex + 1), V(cs), V(self.vB1)))
        a('v_cvt_pk_bf16_f32 %s, %s, %s' % (V(ex + 2), V(self.vB1), V(self.vZero)))
        a('v_mov_b32 %s, 0' % V(ex + 3))
        for i in range(3):
            a('v_cndmask_b32 %s, %s, %s, %s' % (V(ex + i), V(ex + i), V(self.vZero), S(s_hi, 2)))
        self.vEx = ex
        R.release(cs, 16)
        R.release(t0)
        R.release(self.vB1)

    def split(self, lo, hi):
        it = []
        for k in FORD[lo:hi]:
            d = self.w2_dma(k)
            it += [d[:3], d[3]]
        return it

    def p2(self):
        a, R = self.a, self.R
        vL16 = self.vL16
        acc, vHs, vSs = self.p2acc, self.vHs, self.vSs
        NP = NSTG + NPARK
        self.stamp()
        self.poll(s_p1, self.vF1)
        self.stamp()
        of = [R.alloc(4) for _ in range(14)]
        late = self.wo_late + self.w1rd[28:]
        for h in range(14):
            if h and h % 4 == 0:
                a('s_add_u32 %s, %s, 4096' % (S(s_oL), S(s_oL)))
            a('buffer_load_dwordx4 %s, %s, %s, %s offen offset:%d sc1' %
              (V(of[h], 4), V(vL16), S(sWS, 4), S(s_oL), (h % 4) * 1024))
            if h == 4:
                a.rawbar()
            if h > 4:
                k = len(late) // 9 + 1
                a.seq(late[(h - 5) * k:(h - 4) * k])
        for r_ in self.vW1d + self.aWO:
            R.release(r_)
        mf = [MF16 % (V(acc[t], 4), A(16 * h + 4 * t, 4), V(of[h], 4), V(acc[t], 4))
              for h in range(14) for t in range(4)]
        nb = self.o.get('w2b', 7)
        a.barrier()
        self.stamp(5)
        a.slots(mf, [(self.split(0, nb), 0, 54)], prewait=False, at={0: [('call', self.stamp, 5)]})
        self.stamp(5)
        Hf = self.vXr
        for t in range(4):
            for h in range(2):
                a('v_cvt_pk_bf16_f32 %s, %s, %s' % (V(Hf + 2 * t + h), V(acc[t] + 2 * h), V(acc[t] + 2 * h + 1)))
        ss, su = of[0], of[1]
        st = [Ins('buffer_store_dwordx4 %s, %s, %s, %s offen offset:%d @SC' %
                  (V(Hf + 4 * f, 4), V(vHs), S(sWS, 4), S(s_hS), f * 2048), 'pub') for f in range(2)]
        a.slots([MF16 % (V(ss, 4), V(Hf, 4), V(Hf, 4), '0'),
                 MF16 % (V(ss, 4), V(Hf + 4, 4), V(Hf + 4, 4), V(ss, 4)),
                 MF16 % (V(su, 4), V(self.vOnes, 4), V(Hf, 4), '0'),
                 MF16 % (V(su, 4), V(self.vOnes, 4), V(Hf + 4, 4), V(su, 4))], [(st, 3, 4)])
        a('v_cndmask_b32 %s, %s, %s, %s' % (V(ss), V(ss), V(ss + 1), S(s_M1, 2)))
        a('v_cndmask_b32 %s, %s, %s, %s' % (V(ss), V(ss), V(ss + 2), S(s_M2, 2)))
        a('v_cndmask_b32 %s, %s, %s, %s' % (V(su + 1), V(ss), V(ss + 3), S(s_M3, 2)))
        a('s_mov_b32 exec_lo, 0x00f0000f')
        a('s_mov_b32 exec_hi, 0xf0000f00')
        a('buffer_store_dwordx2 %s, %s, %s, %s offen @SC' % (V(su, 2), V(vSs), S(sWS, 4), S(s_stS)), 'pub')
        a('s_mov_b64 exec, -1')
        self.stamp()
        for x in of + acc:
            R.release(x, 4)
        for r_ in [vHs, vSs] + self.aW1:
            R.release(r_)
        self.w2i = nc = min(nb + self.o.get('w2d', 7), NPRE)
        nr = self.o.get('w2r', 5)
        self.colsum([(self.split(nb, nc), 0, 26), ([x for k in FORD[:nr] for x in self.w2_reads(k)], 4, 24)])
        for k in FORD[nr:NPRE - NSTG]:
            a.seq(self.w2_reads(k))
        assert nc >= NPRE - NSTG

    def h2_window(self):
        a, R = self.a, self.R
        a.barrier()
        R.release(self.aW2[1][0]); R.release(self.aW2[1][1])

    def p3(self):
        a, R = self.a, self.R
        vL, vL16 = self.vL, self.vL16
        vS0, vS3, aE, aA = R.alloc(), R.alloc(), R.alloc(), R.alloc()
        t0 = R.alloc()
        a('v_lshlrev_b32 %s, 3, %s' % (V(vS0), V(vL)))
        a('v_mov_b32 %s, 0x40000000' % V(t0))
        a('v_cndmask_b32 %s, %s, %s, %s' % (V(vS3), V(vS0), V(t0), S(s_hi, 2)))
        a('v_and_b32 %s, 0x1f0, %s' % (V(aE), V(vL16)))
        a('v_add_u32 %s, %d, %s' % (V(aE), L_EX, V(aE)))
        a('s_lshl_b32 %s, %s, 10' % (S(s_t0), S(s_w)))
        a('v_add_u32 %s, %s, %s' % (V(t0), S(s_t0), V(aE)))
        a('v_add_u32 %s, %d, %s' % (V(aA), 57344, V(vL16)))

        def dma(n, part):
            so, sm, cnt = ((s_hL, s_hL1), s_aM, 4) if part == 0 else ((s_hLb, s_hLb1), s_aMb, 3)
            pre = ['s_add_u32 m0, %s, %d' % (S(sm), n * 28672),
                   's_add_u32 %s, %s, %d' % (S(s_d), S(so[n & 1]), (n >> 1) * 28672)]
            ld = [Ins('buffer_load_dwordx4 %s, %s, %s offen offset:%d sc1 lds' %
                      (V(vL16), S(sWS, 4), S(s_d), k * 1024), 'h%d%d' % (n, part)) for k in range(cnt)]
            return [pre + ld[:1]] + ld[1:]
        self.stamp()
        self.poll(s_p2, self.vF2)
        self.stamp()
        st = R.alloc(8)
        a.seq(dma(0, 0))
        for i in range(4):
            a('buffer_load_dwordx2 %s, %s, %s, %s offen offset:%d sc1' %
              (V(st + 2 * i, 2), V(vS3 if i == 3 else vS0), S(sWS, 4), S(s_stL), 512 * i))
        a.seq(dma(0, 1) + dma(1, 0) + dma(1, 1))
        bx = R.alloc(4)
        cc = R.alloc(4)
        C1, C3, sd = cc, cc + 1, cc + 2
        sc = []
        e = sc.append
        e('v_add_f32 %s, %s, %s' % (V(st), V(st), V(st + 2)))
        e('v_add_f32 %s, %s, %s' % (V(st + 1), V(st + 1), V(st + 3)))
        e('v_add_f32 %s, %s, %s' % (V(st + 4), V(st + 4), V(st + 6)))
        e('v_add_f32 %s, %s, %s' % (V(st + 5), V(st + 5), V(st + 7)))
        e('v_add_f32 %s, %s, %s' % (V(st), V(st), V(st + 4)))
        e('v_add_f32 %s, %s, %s' % (V(st + 1), V(st + 1), V(st + 5)))
        e('v_mov_b32 %s, %s' % (V(st + 2), V(st)))
        e('v_mov_b32 %s, %s' % (V(st + 3), V(st + 1)))
        e('v_mov_b32 %s, 0' % V(bx + 3))
        e('v_permlane32_swap_b32 %s, %s' % (V(st), V(st + 2)))
        e('v_permlane32_swap_b32 %s, %s' % (V(st + 1), V(st + 3)))
        e('v_add_f32 %s, %s, %s' % (V(st), V(st), V(st + 2)))
        e('v_add_f32 %s, %s, %s' % (V(st + 1), V(st + 1), V(st + 3)))
        e('v_mul_f32 %s, %s, %s' % (V(st), f32(-1.0 / 448), V(st)))
        e('v_mul_f32 %s, %s, %s' % (V(st + 1), f32(1.0 / 448), V(st + 1)))
        e('v_fma_f32 %s, -%s, %s, %s' % (V(st + 1), V(st), V(st), V(st + 1)))
        e('v_max_f32 %s, 0, %s' % (V(st + 1), V(st + 1)))
        e('v_add_f32 %s, %s, %s' % (V(st + 1), f32(1e-5), V(st + 1)))
        e('v_rsq_f32 %s, %s' % (V(st + 2), V(st + 1)))
        e('v_cvt_pk_bf16_f32 %s, %s, %s' % (V(bx), V(st), V(st)))
        e('v_mul_f32 %s, %s, %s' % (V(sd), V(st + 1), V(st + 2)))
        e('v_lshlrev_b32 %s, 16, %s' % (V(st + 3), V(bx)))
        e('v_sub_f32 %s, %s, %s' % (V(st + 3), V(st), V(st + 3)))
        e('v_cvt_pk_bf16_f32 %s, %s, %s' % (V(bx + 1), V(st + 3), V(sd)))
        e('v_and_b32 %s, 0xffff0000, %s' % (V(st + 3), V(bx + 1)))
        e('v_sub_f32 %s, %s, %s' % (V(st + 3), V(sd), V(st + 3)))
        e('v_cvt_pk_bf16_f32 %s, %s, %s' % (V(bx + 2), V(st + 3), V(self.vZero)))
        kk = 2 * math.sqrt(2 / math.pi) * math.log2(math.e)
        e('v_mul_f32 %s, %s, %s' % (V(C1), f32(-kk), V(st + 2)))
        e('v_mul_f32 %s, %s, %s' % (V(C3), V(st + 2), V(st + 2)))
        e('v_mul_f32 %s, %s, %s' % (V(C3), V(C3), V(C1)))
        e('v_mul_f32 %s, %s, %s' % (V(C3), f32(0.044715), V(C3)))
        xw = [Ins('ds_write_b128 %s, %s' % (V(t0), V(bx, 4)), 'xw'),
              Ins('ds_write_b128 %s, %s offset:512' % (V(t0), V(cc, 4)), 'xw')]
        NB = 4
        fr = [R.alloc(4) for _ in range(NB)]
        acc = [R.alloc(16) for _ in range(2)]
        bx2 = R.alloc(4)
        cc2 = [R.alloc(4), R.alloc(4)]
        tmp = R.alloc(8)

        def rd(q):
            n, ks = divmod(q, 28)
            off = n * 28672 + ks * 1024
            hi = off >= 57344
            return 'ds_read_b128 %s, %s offset:%d' % (V(fr[q % NB], 4), V(aA if hi else vL16), off - 57344 * hi)

        def gelu(n, pk=False):
            c = self.gelu_code(acc[n & 1], cc2[n & 1], tmp, pk)
            h = len(c) // 2
            sts = [Ins('buffer_store_dwordx4 %s, %s, %s, %s offen offset:%d sc1' %
                       (V(acc[n & 1] + 4 * s, 4), V(vL16), S(sWS, 4), S(s_t0), s * 1024), 'pub%d' % n) for s in range(2)]
            return ['s_add_u32 %s, %s, %d' % (S(s_t0), S(s_h1S1 if n & 1 else s_h1S), (n >> 1) * 112 * 1024)] + c[:h] + [sts[0]] + c[h:] + [sts[1]]
        self.stamp(5)
        a.wait_vm('h00')
        a.rawbar()
        self.stamp(3)
        self.stamp(5)
        PF = NB - 1
        for q in range(PF):
            a(rd(q))
        for n in range(4):
            mf = [MF32 % (V(acc[n & 1], 16), V(self.W1[ks], 4), V(fr[(28 * n + ks) % NB], 4),
                          '0' if ks == 0 else V(acc[n & 1], 16)) for ks in range(28)]
            mf.append(MF32 % (V(acc[n & 1], 16), V(self.vEx, 4), V(bx2, 4), V(acc[n & 1], 16)))
            reads = [rd(q) for q in range(28 * n + PF, min(28 * n + 28 + PF, 112))]
            st_ = [(reads, 0, len(reads))]
            at = {}
            xr = ['ds_read_b128 %s, %s offset:%d' % (V(bx2, 4), V(aE), n * 1024),
                  'ds_read_b128 %s, %s offset:%d' % (V(cc2[n & 1], 4), V(aE), n * 1024 + 512)]
            if n == 0:
                st_.append((sc, 0, 8))
                st_.append((xw, 9, 10))
                at[16 - PF] = [('wait_vm', 'h01'), ('wait_lg', 'xw'), ('rawbar',)]
                st_.append((dma(2, 0) + dma(2, 1), 6, 28))
                assert self.w2i == NPRE
                st_.append(([x for k in FORD[NPRE - NSTG:NPRE] for x in self.w2_reads(k)], 10, 24))
            else:
                st_.append((gelu(n - 1), 2, self.o.get('ge', 28)))
            if n == 1:
                st_.append((dma(3, 0) + dma(3, 1) + self.split(NPRE, NPRE + 3), 0, 28))
            if n == 2:
                at[1] = [('rawbar',)]
                st_.append((self.split(NPRE + 3, NPRE + 10), 0, 28))
            if n == 3:
                at[1] = [('rawbar',)]
                st_.append((self.split(NPRE + 10, 28), 0, 16))
                pb = self.o.get('pb0', 8)
                st_.append(([self.probe3(0)], pb, pb + 1))
            st_.append((xr, 24, 26))
            if n < 3:
                at.setdefault(28 - PF, []).extend([('wait_vm', 'h%d1' % (n + 1)), ('rawbar',)])
            if n >= 2:
                fs = self.o.get('fs', 25)
                if fs in at:
                    at[fs].insert(0, ('wait_vm', 'pub%d' % (n - 2)))
                else:
                    at[fs] = [('wait_vm', 'pub%d' % (n - 2)), ('rawbar',)]
                st_.append(([self.flag3(n - 2)], fs, fs + 1))
            if n == 0:
                for k in at:
                    at[k] = [('call', self.stamp, 5)] + at[k] + [('call', self.stamp, 5)]
            a.slots(mf, st_, at=at)
            self.stamp(3)
            if n == 0:
                self.stamp(5)
        self.stamp()
        self.g3 = gelu(3, True)
        for x in fr + self.W1 + [bx, cc, bx2, self.vEx, cc2[0]]:
            R.release(x, 4)
        R.release(st, 8)
        for r_ in (vS0, vS3, t0, aE, aA):
            R.release(r_)
        self.p3_live = [(acc[0], 16), (acc[1], 16), (cc2[1], 4), (tmp, 8)]

    def p4(self):
        a, R = self.a, self.R
        vL, vL16 = self.vL, self.vL16
        NF = 30
        fr = [V(R.alloc(4), 4) for _ in range(NF - 8)] + [A(224 + 4 * i, 4) for i in range(8)]
        a0 = R.alloc(32)

        def load(n):
            mt, k = divmod(n, 28)
            cls, q = self.kq(k)
            return ['s_add_u32 %s, %s, %d' % (S(s_d), S(s_h1L1 if cls else s_h1L), mt * 112 * 1024 + q * 4096),
                    'buffer_load_dwordx4 %s, %s, %s, %s offen sc1' % (fr[n % NF], V(vL16), S(sWS, 4), S(s_d))]

        def mm(lo, hi):
            out = []
            for n in range(lo, hi):
                mt, k = divmod(n, 28)
                out += [MF32 % (V(acc[mt][u], 16), A(8 * k + 4 * u, 4), fr[n % NF],
                                '0' if k == 0 else V(acc[mt][u], 16)) for u in range(2)]
            return out
        self.check3(0)
        g3 = self.g3
        pq = self.o.get('pq1', 4)
        ld0 = [load(n) for n in range(pq)] + [self.probe3(1)] + [load(n) for n in range(pq, 14)]
        a.seq(ld0[:5])
        q = len(g3) // 3
        a.seq(g3[:q]); a.seq(ld0[5:8]); a.seq(g3[q:2 * q]); a.seq(ld0[8:11]); a.seq(g3[2 * q:]); a.seq(ld0[11:])
        self.stamp()
        for b, n in self.p3_live:
            R.release(b, n)
        acc = [[a0, a0 + 16], [R.alloc(16), R.alloc(16)]]
        real, setup = a, []
        a = setup.append
        t0, t1 = R.alloc(), R.alloc()
        a('v_and_b32 %s, 15, %s' % (V(t0), V(vL)))
        a('v_mul_u32_u24 %s, 144, %s' % (V(t0), V(t0)))
        a('v_lshrrev_b32 %s, 4, %s' % (V(t1), V(vL)))
        a('v_lshl_add_u32 %s, %s, 3, %s' % (V(t0), V(t1), V(t0)))
        self.lin(s_t0, [(s_w, 16 * 144)], L_HT)
        self.lin(s_t1, [(s_w, 64 * PITCH)])
        a('v_add_u32 %s, %s, %s' % (V(t0), S(s_t0), V(t0)))
        hw = ['ds_write_b64 %s, %s offset:%d' % (V(t0), V(self.vXr + 2 * t, 2), 32 * t) for t in range(4)]
        aP, aR, aH, vO = R.alloc(), R.alloc(), R.alloc(), R.alloc()
        a('v_and_b32 %s, 31, %s' % (V(aP), V(vL)))
        a('v_mul_u32_u24 %s, %d, %s' % (V(aP), PITCH, V(aP)))
        a('v_lshrrev_b32 %s, 5, %s' % (V(t1), V(vL)))
        a('v_lshl_add_u32 %s, %s, 4, %s' % (V(aP), V(t1), V(aP)))
        a('v_add_u32 %s, %s, %s' % (V(aP), S(s_t1), V(aP)))
        a('v_lshrrev_b32 %s, 3, v0' % V(vO))
        a('v_and_b32 %s, 7, v0' % V(t1))
        a('v_mul_u32_u24 %s, %d, %s' % (V(aR), PITCH, V(vO)))
        a('v_lshl_add_u32 %s, %s, 5, %s' % (V(aR), V(t1), V(aR)))
        a('v_mul_u32_u24 %s, 144, %s' % (V(aH), V(vO)))
        a('v_lshl_add_u32 %s, %s, 4, %s' % (V(aH), V(t1), V(aH)))
        a('v_add_u32 %s, %d, %s' % (V(aH), L_HT, V(aH)))
        a('v_mul_u32_u24 %s, 896, %s' % (V(vO), V(vO)))
        a('v_lshl_add_u32 %s, %s, 4, %s' % (V(vO), V(t1), V(vO)))
        self.lin(s_bX, [(s_r, 64 * 896), (s_p, 128)])
        a('s_add_u32 %s, %s, %d' % (S(s_bH), S(s_bX), 32 * 896))
        bfl = R.alloc(8)
        for i in range(4):
            a('v_lshlrev_b32 %s, 16, %s' % (V(bfl + 2 * i), V(self.vB2 + i)))
            a('v_and_b32 %s, 0xffff0000, %s' % (V(bfl + 2 * i + 1), V(self.vB2 + i)))
        a = real

        def pw(mt):
            return [Ins('ds_write_b128 %s, %s offset:%d' %
                        (V(aP), V(acc[mt][u] + 4 * gq, 4), mt * 32 * PITCH + u * 128 + gq * 32), 'pw')
                    for u in range(2) for gq in range(4)]

        def red(mt, regs, pk):
            pr = [[regs + 8 * w + 4 * k for k in range(2)] for w in range(4)]
            hr, hx = self.vXr, self.vXr + 4
            hx = [bflx, bflx + 4]
            rdl = ['ds_read_b128 %s, %s offset:%d' % (V(hr, 4), V(aH), mt * 32 * 144)]
            for w in range(4):
                for k in range(2):
                    rdl.append('ds_read_b128 %s, %s offset:%d' %
                               (V(pr[w][k], 4), V(aR), w * 64 * PITCH + mt * 32 * PITCH + k * 16))
            c = []

            def add(d, s):
                if pk:
                    for h in range(2):
                        c.append('v_pk_add_f32 %s, %s, %s' % (V(d + 2 * h, 2), V(d + 2 * h, 2), V(s + 2 * h, 2)))
                else:
                    for h in range(4):
                        c.append('v_add_f32 %s, %s, %s' % (V(d + h), V(d + h), V(s + h)))
            for k in range(2):
                for h in range(2):
                    c.append('v_lshlrev_b32 %s, 16, %s' % (V(hx[k] + 2 * h), V(hr + 2 * k + h)))
                    c.append('v_and_b32 %s, 0xffff0000, %s' % (V(hx[k] + 2 * h + 1), V(hr + 2 * k + h)))
                add(hx[k], bfl + 4 * k)
            npre = len(c)
            for w in range(4):
                for k in range(2):
                    add(hx[k], pr[w][k])
            for k in range(2):
                for h in range(2):
                    c.append('v_cvt_pk_bf16_f32 %s, %s, %s' %
                             (V(self.vXr + 4 + 2 * k + h), V(hx[k] + 2 * h), V(hx[k] + 2 * h + 1)))
            c.append('buffer_store_dwordx4 %s, %s, %s, %s offen sc1' %
                     (V(self.vXr + 4, 4), V(vO), S(sOUT, 4), S(s_bH if mt else s_bX)))
            return rdl, c[:npre], c[npre:]
        bflx = R.alloc(8)
        assert acc[0][1] == acc[0][0] + 16
        r0, c0a, c0b = red(0, acc[0][0], False)
        r1, c1a, c1b = red(1, acc[0][0], True)
        o = self.o.get
        f2, f3 = o('f2', 2), o('f3', 16)
        c = [None, o('c1', 6), o('c2', 34), o('c3', 62)]
        pq = [None, None, o('pq2', 4), o('pq3', 4)]
        at = {f2: [('wait_vm', 'pub2'), ('rawbar',)], f3: [('wait_vm', 'pub3'), ('rawbar',)],
              57: [('rawbar',)], 74: [('wait_lg', 'pw'), ('rawbar',)]}
        st = [([self.flag3(2)], f2, f2 + 1), ([self.flag3(3)], f3, f3 + 1),
              ([x for k in range(7, 14) for x in self.w2_reads(k)], 0, 13),
              ([x for k in range(21, 28) for x in self.w2_reads(k)], 13, 30), (setup, 0, 28), (hw, 30, 34),
              (pw(0), 58, 70), (r0, 76, 82), (c0a + c0b, 84, 100),
              (r1[:1], 102, 103), ([x for x in red(1, acc[0][0], False)[1]], 105, 110)]
        for s in (1, 2, 3):
            at.setdefault(c[s], []).append(('call', self.check3, s))
            it = [load(n) for n in range(14 * s, 14 * s + 14)]
            if s < 3:
                it.insert(pq[s + 1], self.probe3(s + 1))
            st.append((it[:4], c[s], c[s] + 4))
            st.append((it[4:], c[s] + 4, c[s] + 4 + o('lsp', 22)))
            assert 2 * (14 * s + 13 - NF) + 1 < c[s] + 4 + o('lsp', 22) - 1 and 2 * (14 * s + 3 - NF) + 1 < c[s]
        a.slots(mm(0, 56), st, prewait=False, at=at)
        self.stamp()
        a.seq(pw(1))
        a.barrier()
        a.seq(r1[1:])
        a.seq(c1b)
        self.stamp()

    def build(self):
        a = self.a
        self.prologue()
        self.p1()
        self.h1_window()
        self.p2()
        self.h2_window()
        self.p3()
        self.p4()
        a.label('Lfin')
        if self.o.get('ts'):
            a.fence()
        self.dump_stamps()
        a.label('Lend')
        a('s_endpgm')
        self.helper()
        if self.o.get('iw', 1):
            self.add_stubs()
        return self.wrap().replace('.fill 4096, 4', '.fill 8192, 4')

    def add_stubs(self):
        import subprocess
        a = self.a
        tmp = '.amdgcn_target "amdgcn-amd-amdhsa--gfx950"\n.text\n' + \
            a.text().replace('.p2align 12', '') + 'Lch0:\nLch1:\nLch2:\n'
        open('_t.s', 'w').write(tmp)
        subprocess.check_call(['clang', '-x', 'assembler', '-target', 'amdgcn-amd-amdhsa',
                               '-mcpu=gfx950', '-c', '_t.s', '-o', '_t.o'])
        dis = subprocess.check_output(['llvm-objdump', '-d', '--mcpu=gfx950', '_t.o'], text=True)
        sizes = [4 * len(l.split('//')[1].split(':')[1].split('<')[0].split()) for l in dis.split('\n')
                 if l.startswith('\t') and '//' in l]
        assert len(sizes) == a.count(), (len(sizes), a.count())
        out, k, addr, region = [], 0, None, 'main'
        stubs = {}
        page = 1

        def stub():
            ins = Ins('s_cbranch_execz Lback')
            lab = 'Lst%d' % sum(len(v) for v in stubs.values())
            stubs.setdefault(region, []).append((lab, ins))
            out.append(lab + ':')
            out.append(ins)
        for o in a.out:
            if isinstance(o, str):
                out.append(o)
                if o == 'Lback:':
                    addr = 0
                elif o.startswith('Lvar') or o == 'Ljoin:':
                    region = o[:-1] if o.startswith('Lvar') else 'main'
                    stub()
                    addr += 4
                elif o == 'Lfin:':
                    addr = None
                continue
            if addr is not None:
                if addr >= page * 4096:
                    page += 1
                    stub()
                    addr += 4
                addr += sizes[k]
            out.append(o)
            k += 1
        chains = [v for r, v in stubs.items() if r != 'main']
        m = stubs['main']
        for i in range(3):
            ch = m[i::3]
            out[out.index(ch[0][0] + ':')] = ch[0][0] + ':\nLch%d:' % i
            chains.append(ch)
        for ch in chains:
            for (l0, i0), (l1, i1) in zip(ch, ch[1:]):
                i0.text = 's_cbranch_execz ' + l1
        a.out = out


if __name__ == '__main__':
    opt = {}
    out = 'k.s'
    for arg in sys.argv[1:]:
        if '=' in arg:
            k, v = arg.split('=')
            opt[k] = v if k in ('hp', 't6', 'tp', 'tf') else int(v)
        else:
            out = arg
    if opt.get('local'):
        Ins.SC = ''
    g = Gen4(opt)
    s = g.build()
    if not opt.get('final'):
        s += '; opts: nts=%d %s\n' % (g.nts, ' '.join(x for x in sys.argv[1:] if '=' in x))
    open(out, 'w').write(s)
    print('instructions', g.a.count(), 'nops', g.a.nnop, 'vgpr hi', g.R.hi, 'stamps', g.nts)
```

```python
import re

REG_RE = re.compile(r'(?<![\w.])(-?\|?)([vas])(\d+|\[(\d+):(\d+)\])(?![\w])')


def regs_of(op):
    out = set()
    op = op.strip()
    if op in ('vcc',):
        return {('s', 'vcc')}
    if op in ('vcc_lo', 'vcc_hi'):
        return {('s', 'vcc')}
    if op in ('exec', 'exec_lo', 'exec_hi'):
        return {('s', 'exec')}
    if op == 'm0':
        return {('s', 'm0')}
    for m in REG_RE.finditer(op):
        k = m.group(2)
        if m.group(4) is not None:
            for i in range(int(m.group(4)), int(m.group(5)) + 1):
                out.add((k, i))
        else:
            out.add((k, int(m.group(3))))
    return out


TRANS = ('v_exp_f32', 'v_log_f32', 'v_rcp_f32', 'v_rsq_f32', 'v_sqrt_f32', 'v_sin_f32', 'v_cos_f32')
NODST_S = ('s_cmp', 's_waitcnt', 's_nop', 's_barrier', 's_branch', 's_cbranch', 's_endpgm', 's_sleep',
           's_setprio', 's_bitcmp', 's_setpc')


class Ins:
    __slots__ = ('text', 'mn', 'ops', 'dst', 'src', 'kind', 'passes', 'srcC', 'srcAB', 'dpp', 'tag', 'ws',
                 'stdata', 'sdwa')

    SC = 'sc1'

    def __init__(self, text, tag=None):
        text = text.replace(' @SC', ' ' + Ins.SC).rstrip()
        self.text = text
        self.tag = tag
        t = text.split(';')[0].strip()
        parts = t.split(None, 1)
        self.mn = mn = parts[0]
        rest = parts[1] if len(parts) > 1 else ''
        ops, depth, cur = [], 0, ''
        for ch in rest:
            if ch in '[(':
                depth += 1
            if ch in '])':
                depth -= 1
            if ch == ',' and depth == 0:
                ops.append(cur.strip())
                cur = ''
            else:
                cur += ch
        if cur.strip():
            ops.append(cur.strip())
        mods = ''
        if ops:
            sp = ops[-1].split(None, 1)
            ops[-1] = sp[0]
            mods = sp[1] if len(sp) > 1 else ''
        self.ops = ops
        self.dst, self.src = set(), set()
        self.passes = 0
        self.srcC, self.srcAB, self.stdata = set(), set(), set()
        self.dpp = ('_dpp' in mn) or ('row_' in mods) or ('quad_perm' in mods)
        self.sdwa = '_sdwa' in mn
        self.ws = 1
        R = [regs_of(o) for o in ops]
        allr = set().union(*R) if R else set()
        if mn.startswith('v_mfma'):
            self.kind = 'mfma'
            self.passes = 8 if '32x32x16' in mn else 4
            assert '32x32x16' in mn or '16x16x32' in mn
            self.dst = R[0]
            self.srcAB = R[1] | R[2]
            self.srcC = R[3]
            self.src = self.srcAB | self.srcC
        elif mn.startswith('ds_'):
            self.kind = 'ds'
            if mn.startswith('ds_write') or mn.startswith('ds_add'):
                self.src = allr
            else:
                self.dst = R[0]
                self.src = set().union(*R[1:])
        elif mn.startswith('buffer_') or mn.startswith('global_'):
            self.kind = 'vm'
            if mn in ('buffer_wbl2', 'buffer_inv'):
                pass
            elif ' lds' in (' ' + mods) or '_lds_' in mn:
                self.src = allr | {('s', 'm0')}
                self.kind = 'dma'
            elif '_load' in mn:
                self.dst = R[0]
                self.src = set().union(*R[1:])
            elif '_store' in mn:
                self.src = allr
                d = R[0] if mn.startswith('buffer_') else R[1]
                if 'x4' in mn or 'x3' in mn:
                    self.stdata = d
            elif '_atomic' in mn:
                self.src = allr
                if 'sc0' in mods:
                    self.dst = R[0]
            else:
                raise ValueError(text)
        elif mn.startswith('s_load') or mn.startswith('s_buffer_load') or mn in ('s_memtime', 's_memrealtime'):
            self.kind = 'smem'
            self.dst = R[0]
            self.src = set().union(*R[1:]) if len(R) > 1 else set()
        elif mn.startswith('s_'):
            self.kind = 'salu'
            if mn == 's_nop':
                self.ws = int(ops[0], 0) + 1
            if any(mn.startswith(p) for p in NODST_S):
                self.src = allr
            else:
                self.dst = R[0]
                self.src = set().union(*R[1:]) if len(R) > 1 else set()
                if 'saveexec' in mn:
                    self.dst = self.dst | {('s', 'exec')}
        elif mn.startswith('v_'):
            self.kind = 'valu'
            if mn.startswith('v_permlane') and 'swap' in mn:
                self.dst = allr
                self.src = allr
            else:
                self.dst = R[0]
                self.src = set().union(*R[1:]) if len(R) > 1 else set()
                if mn.startswith('v_fmac') or mn.startswith('v_dot2c') or mn.startswith('v_pk_fmac') or self.dpp \
                        or mn.startswith('v_writelane') or self.sdwa:
                    self.src = self.src | R[0]
                if '_co_' in mn:
                    self.dst = R[0] | R[1]
                    self.src = set().union(*R[2:])
        else:
            raise ValueError('unknown instr: ' + text)

    def is_trans(self):
        return any(self.mn.startswith(t) for t in TRANS)


def vonly(s):
    return {r for r in s if r[0] in 'va'}


def sonly(s):
    return {r for r in s if r[0] == 's'}


def need_states(p, c):
    n = 0
    pv = vonly(p.dst)
    if p.kind == 'valu':
        if c.kind == 'mfma' and pv & c.src:
            n = max(n, 2)
        if c.kind == 'valu':
            if p.is_trans() and not c.is_trans() and pv & c.src:
                n = max(n, 1)
            if (c.mn.startswith('v_permlane') or c.dpp) and pv & c.src:
                n = max(n, 2)
            if (c.mn.startswith('v_readlane') or c.mn.startswith('v_readfirstlane')) and pv & c.src:
                n = max(n, 1)
            if p.sdwa and pv & (c.src | c.dst):
                n = max(n, 1)
            if p.mn.startswith('v_dot') and pv & (c.src | c.dst) and c.mn != p.mn:
                n = max(n, 3)
        ps = sonly(p.dst)
        if ps:
            if c.kind == 'valu' and ps & c.src:
                n = max(n, 4 if (c.mn.startswith('v_readlane') or c.mn.startswith('v_writelane')) else 2)
            if c.kind in ('vm', 'dma') and ps & c.src:
                n = max(n, 5)
            if c.kind in ('salu', 'smem') and ps & c.src:
                n = max(n, 1)
    if p.kind == 'mfma':
        big = 12 if p.passes == 8 else 8
        if c.kind == 'mfma':
            if p.dst & c.srcAB:
                n = max(n, big)
            if p.dst & c.srcC:
                if not (c.srcC == p.dst and c.passes == p.passes):
                    n = max(n, big - 2)
            elif p.dst & c.dst:
                n = max(n, big - 2)
        elif c.kind in ('valu', 'vm', 'dma', 'ds'):
            if p.dst & (c.src | c.dst):
                n = max(n, big)
            if c.kind == 'valu' and vonly(p.srcC) & c.dst:
                n = max(n, 7 if p.passes == 8 else 3)
    if p.kind == 'salu' and ('s', 'm0') in p.dst and c.kind == 'dma':
        n = max(n, 1)
    if p.stdata and p.stdata & c.dst:
        n = max(n, 2)
    return n


class Asm:
    def __init__(self):
        self.out = []
        self.vmq = []
        self.lgq = []
        self.nnop = 0
        self.uid = 0

    def raw(self, s):
        self.out.append(s)

    def label(self, name):
        self.out.append(name + ':')

    def newlabel(self, base):
        self.uid += 1
        return '%s_%d' % (base, self.uid)

    def comment(self, s):
        self.out.append('    ; ' + s)

    def _emit(self, ins):
        dist = 0
        need = 0
        for p in reversed(self.out):
            if isinstance(p, str):
                continue
            if dist >= 12:
                break
            k = need_states(p, ins) - dist
            if k > need:
                need = k
            dist += p.ws
        while need > 0:
            k = min(need, 16)
            self.out.append(Ins('s_nop %d' % (k - 1)))
            self.nnop += 1
            need -= k
        self.out.append(ins)

    def _wait(self, vm=None, lg=None):
        parts = []
        if vm is not None:
            vm = min(vm, 63)
            if vm < len(self.vmq):
                parts.append('vmcnt(%d)' % vm)
                self.vmq = self.vmq[len(self.vmq) - vm:] if vm else []
        if lg is not None:
            if any(o.kind == 'smem' for o in self.lgq):
                lg = 0
            lg = min(lg, 15)
            if lg < len(self.lgq):
                parts.append('lgkmcnt(%d)' % lg)
                self.lgq = self.lgq[len(self.lgq) - lg:] if lg else []
        if parts:
            self._emit(Ins('s_waitcnt ' + ' '.join(parts)))

    def __call__(self, text, tag=None):
        for line in text.split('\n'):
            line = line.strip()
            if not line or line.startswith(';'):
                continue
            self.one(Ins(line, tag))

    def one(self, ins):
        if isinstance(ins, tuple):
            getattr(self, ins[0])(*ins[1:])
            return
        if isinstance(ins, str):
            ins = Ins(ins)
        assert ins.mn != 's_waitcnt', 'use wait helpers'
        touch = ins.src | ins.dst
        vm = lg = None
        for i, o in enumerate(self.vmq):
            if o.dst & touch:
                vm = len(self.vmq) - 1 - i
        for i, o in enumerate(self.lgq):
            if o.dst & touch:
                lg = len(self.lgq) - 1 - i
        self._wait(vm, lg)
        self._emit(ins)
        if ins.kind in ('vm', 'dma'):
            self.vmq.append(ins)
            assert len(self.vmq) <= 63, 'vmcnt overflow'
        elif ins.kind in ('ds', 'smem') and ins.tag != 'sprobe':
            self.lgq.append(ins)

    def need(self, ins):
        if isinstance(ins, str):
            ins = Ins(ins)
        touch = ins.src | ins.dst
        vm = lg = None
        for i, o in enumerate(self.vmq):
            if o.dst & touch:
                vm = len(self.vmq) - 1 - i
        for i, o in enumerate(self.lgq):
            if o.dst & touch:
                lg = len(self.lgq) - 1 - i
        self._wait(vm, lg)

    def call(self, fn, *args):
        fn(*args)

    def rawbar(self):
        self._emit(Ins('s_barrier'))

    def slots(self, mf, streams=(), prewait=True, at=None):
        n = len(mf)
        per = [[] for _ in range(n)]
        def cost(it):
            c = 0
            for x in (it if isinstance(it, list) else [it]):
                if isinstance(x, tuple):
                    continue
                x = x if isinstance(x, Ins) else Ins(x)
                c += 8 if (x.kind in ('vm', 'dma') or x.is_trans()) else (2 if x.kind == 'salu' else 4)
            return c

        def isvalu(items):
            k = sum(1 for it in items if not isinstance(it, (list, tuple)) and
                    (it if isinstance(it, Ins) else Ins(it)).kind == 'valu')
            return 2 * k > len(items)
        used = [0] * n
        for items, lo, hi in [t for t in streams if not isvalu(t[0])]:
            hi = min(hi, n)
            k = 0
            for i in range(lo, hi):
                tgt = ((i - lo + 1) * len(items) + (hi - lo) - 1) // (hi - lo)
                while k < tgt:
                    per[i].append(items[k])
                    used[i] += cost(items[k])
                    k += 1
            assert k == len(items)
        for items, lo, hi in [t for t in streams if isvalu(t[0])]:
            hi = min(hi, n)
            B = 4
            while True:
                k = 0
                put = []
                carry = 0
                for i in range(lo, hi):
                    room = B - used[i] + carry
                    while k < len(items) and cost(items[k]) <= room:
                        room -= cost(items[k])
                        put.append((i, items[k]))
                        k += 1
                    carry = room % 4 if room > 0 else 0
                if k == len(items):
                    break
                B += 1
            for i, it in put:
                per[i].append(it)
                used[i] += cost(it)
        mk = lambda x: x if isinstance(x, (Ins, tuple)) else Ins(x)
        isvm = lambda x: isinstance(x, Ins) and x.kind in ('vm', 'dma')
        sal = [[] for _ in range(n + 1)]
        vmg = [[] for _ in range(n + 1)]
        dsl = [[] for _ in range(n + 1)]
        val = [[] for _ in range(n + 1)]
        for i in range(n):
            written = set()
            moved = set()
            movedvm = False
            for it in per[i]:
                grp = [mk(x) for x in (it if isinstance(it, list) else [it])]
                if any(isvm(x) for x in grp):
                    setup = []
                    for x in grp:
                        if isvm(x):
                            late = bool(x.src & written) or movedvm
                            if late:
                                moved |= x.src
                                movedvm = True
                            vmg[i + late].append((setup, x))
                            setup = []
                        else:
                            assert x.kind == 'salu', x.text
                            setup.append(x)
                    assert not setup
                    continue
                for x in grp:
                    if isinstance(x, tuple):
                        dsl[i].append(x)
                    elif x.kind in ('salu', 'smem'):
                        sal[i].append(x)
                    elif x.kind == 'ds':
                        late = bool((x.src | x.dst) & written)
                        if late:
                            moved |= x.src | x.dst
                        dsl[i + late].append(x)
                    else:
                        assert not (x.dst & moved), x.text
                        val[i].append(x)
                        written |= x.dst | vonly(x.src)
        if vmg[0]:
            self.seq(vmg[0][0][0])
        for i in range(n + 1):
            if i < n:
                self.one(mf[i])
                if prewait == 2:
                    if i % 2 == 0 and i + 1 < n:
                        self.need(mf[min(i + 2, n - 1)])
                        self.need(mf[i + 1])
                elif prewait and i + 1 < n:
                    self.need(mf[i + 1])
                if at and i in at:
                    self.seq(at[i])
            self.seq(sal[i])
            nxt = vmg[i + 1][0][0] if i < n and vmg[i + 1] else []
            for k, (setup, x) in enumerate(vmg[i]):
                if k:
                    self.seq(setup)
                self.one(x)
            self.seq(nxt)
            self.seq(dsl[i])
            self.seq(val[i])

    def seq(self, lst):
        for x in lst:
            if isinstance(x, list):
                self.seq(x)
            else:
                self.one(x)

    def wait_vm(self, tag=None):
        if tag is None:
            self._wait(vm=0)
            return
        n = None
        for i, o in enumerate(self.vmq):
            if o.tag == tag:
                n = len(self.vmq) - 1 - i
        if n is not None:
            self._wait(vm=n)

    def wait_lg(self, tag=None):
        if tag is None:
            self._wait(lg=0)
            return
        n = None
        for i, o in enumerate(self.lgq):
            if o.tag == tag:
                n = len(self.lgq) - 1 - i
        if n is not None:
            self._wait(lg=n)

    def force_wait(self, s):
        self._emit(Ins('s_waitcnt ' + s))
        if 'vmcnt(0)' in s:
            self.vmq = []
        if 'lgkmcnt(0)' in s:
            self.lgq = []

    def barrier(self):
        self._wait(lg=0)
        self._emit(Ins('s_barrier'))

    def fence(self):
        self._emit(Ins('s_nop 11'))

    def text(self):
        lines = []
        for o in self.out:
            lines.append(o if isinstance(o, str) else '    ' + o.text)
        return '\n'.join(lines) + '\n'

    def count(self):
        return sum(1 for o in self.out if not isinstance(o, str))


class Regs:
    def __init__(self, n, first=0):
        self.free = set(range(first, n))
        self.n = n
        self.hi = 0

    def alloc(self, cnt=1, align=None):
        if align is None:
            align = 1 if cnt == 1 else (2 if cnt < 4 else 4)
        for b in range(0, self.n - cnt + 1, align):
            if all((b + i) in self.free for i in range(cnt)):
                for i in range(cnt):
                    self.free.discard(b + i)
                self.hi = max(self.hi, b + cnt)
                return b
        raise RuntimeError('out of registers (%d)' % cnt)

    def release(self, b, cnt=1):
        for i in range(cnt):
            assert (b + i) not in self.free
            self.free.add(b + i)


def rng(k, b, n):
    return '%s%d' % (k, b) if n == 1 else '%s[%d:%d]' % (k, b, b + n - 1)


def V(b, n=1):
    return rng('v', b, n)


def A(b, n=1):
    return rng('a', b, n)


def S(b, n=1):
    return rng('s', b, n)


def weave(main, fill, start=0, end=None):
    if end is None:
        end = len(main)
    out = list(main[:start])
    n = end - start
    k = 0
    for i in range(n):
        out.append(main[start + i])
        tgt = ((i + 1) * len(fill)) // n
        while k < tgt:
            f = fill[k]
            if isinstance(f, list):
                out.extend(f)
            else:
                out.append(f)
            k += 1
    out.extend(main[end:])
    return out
```

```python
import sys
import math
from asmlib import *
import gen3
from gen3 import *

WS_EX = 1408 * 1024
gen3.WS_TS = 1792 * 1024

L_WV = 0
L_RING = 57344
SL = 26640
XO = 16384
L_Q = 57344
QP = 136
L_K = L_Q + 64 * QP
L_STAT = 95616
L_VS = 96256
L_WO4 = 0
DX6 = 63536
L_W1H = (106496, 57344)

s_ex = 47
s_oS = 48
s_kv = 83
s_G1, s_G2 = 78, 0
s_bV = 1
s_w2R = 0
FORD = [0, 1, 14, 15, 2, 3, 16, 17, 4, 5, 18, 19, 6, 20, 7, 21, 8, 9, 22, 23, 10, 11, 24, 25, 12, 13, 26, 27]
s_p0 = 101
FL0 = WS_FL + 2048
s_w2O1, s_hL1, s_hLb1, s_h1S1, s_h1L1, s_p31 = 74, 75, 76, 77, 80, 81
L_HT = 86016
NPRE = 14


def segments(c):
    lo, hi = 16 * c, 16 * c + 16
    out = []
    for h in range(16):
        a0, b0 = max(lo, 7 * h), min(hi, 7 * h + 7)
        if a0 < b0:
            kind = 'L' if 7 * h < lo else ('R' if 7 * h + 7 > hi else 'M')
            out.append((a0 - lo, b0 - lo, kind))
    return out


class Gen4(Gen):
    def prologue(self):
        a, R = self.a, self.R
        R.alloc()
        a('s_cmp_ge_u32 s2, 256')
        a('s_cbranch_scc1 Lend')
        a('s_load_dwordx4 %s, s[0:1], 0' % S(sPTR, 4))
        self.vJunk = R.alloc()
        a('s_getpc_b64 %s' % S(s_t2, 2))
        a('s_lshr_b32 %s, s2, 3' % S(s_t0))
        a('s_lshl_b32 %s, %s, 11' % (S(s_t1), S(s_t0)))
        a('v_lshrrev_b32 %s, 4, v0' % V(self.vJunk))
        a('v_lshl_add_u32 %s, %s, 7, %s' % (V(self.vJunk), V(self.vJunk), S(s_t1)))
        a.one(nodep('global_load_dword %s, %s, %s' % (V(self.vJunk), V(self.vJunk), S(s_t2, 2))))
        self.vL = vL = R.alloc()
        self.vL16 = R.alloc()
        self.vZero = R.alloc()
        self.vTag = R.alloc(2)
        if self.o.get('ts'):
            self.vTS = R.alloc()
            a('v_mov_b32 %s, 0' % V(self.vTS))
        t0, t1, t2, t3 = [R.alloc() for _ in range(4)]
        a('v_lshrrev_b32 %s, 6, v0' % V(t0))
        a('v_and_b32 %s, 63, v0' % V(vL))
        a('v_readfirstlane_b32 %s, %s' % (S(s_w), V(t0)))
        a('s_and_b32 %s, %s, 3' % (S(s_rl), S(s_t0)))
        a('s_lshr_b32 %s, %s, 2' % (S(s_p), S(s_t0)))
        a('s_and_b32 %s, s2, 7' % S(s_t1))
        a('s_lshl_b32 %s, %s, 2' % (S(s_r), S(s_t1)))
        a('s_add_u32 %s, %s, %s' % (S(s_r), S(s_r), S(s_rl)))
        self.vWd = [R.alloc(), R.alloc()]
        self.vXd = [R.alloc() for _ in range(3)]
        a('v_lshrrev_b32 %s, 3, %s' % (V(t0), V(vL)))
        a('v_and_b32 %s, 7, %s' % (V(t1), V(vL)))
        a('v_lshrrev_b32 %s, 4, %s' % (V(t2), V(vL)))
        u0, u1 = R.alloc(), R.alloc()
        a('v_and_b32 %s, 1, %s' % (V(u0), V(t2)))
        a('v_lshlrev_b32 %s, 1, %s' % (V(u0), V(u0)))
        a('v_xor_b32 %s, %s, %s' % (V(u0), V(u0), V(t1)))
        a('v_mul_u32_u24 %s, 2688, %s' % (V(u1), V(t0)))
        a('v_lshl_add_u32 %s, %s, 4, %s' % (V(self.vWd[0]), V(u0), V(u1)))
        a('v_xor_b32 %s, 4, %s' % (V(u0), V(u0)))
        a('v_add_u32 %s, %d, %s' % (V(u1), 8 * 2688 - 1024, V(u1)))
        a('v_lshl_add_u32 %s, %s, 4, %s' % (V(self.vWd[1]), V(u0), V(u1)))
        a('s_mul_i32 %s, %s, %d' % (S(s_t2), S(s_r), 64 * 896))
        a('s_sub_u32 %s, %s, %d' % (S(s_t2), S(s_t2), 16 * 896))
        a('s_and_b32 %s, %s, 1' % (S(s_t3), S(s_w)))
        a('s_lshl_b32 %s, %s, 2' % (S(s_t0), S(s_t3)))
        a('v_xor_b32 %s, %s, %s' % (V(u0), V(t2), V(t1)))
        a('v_xor_b32 %s, %s, %s' % (V(u0), S(s_t0), V(u0)))
        a('v_mul_u32_u24 %s, 896, %s' % (V(u1), V(t0)))
        a('v_lshl_add_u32 %s, %s, 4, %s' % (V(t3), V(u0), V(u1)))
        a('s_mul_i32 %s, %s, 7168' % (S(s_t0), S(s_w)))
        a('s_add_u32 %s, %s, %s' % (S(s_t0), S(s_t0), S(s_t2)))
        a('s_max_i32 %s, %s, 0' % (S(s_t1), S(s_t0)))
        a('v_add_u32 %s, %s, %s' % (V(self.vXd[0]), S(s_t1), V(t3)))
        a('s_add_u32 %s, %s, %d' % (S(s_t1), S(s_t0), 4 * 7168))
        a('v_add_u32 %s, %s, %s' % (V(self.vXd[1]), S(s_t1), V(t3)))
        a('s_mul_i32 %s, %s, 7168' % (S(s_t0), S(s_t3)))
        a('s_add_u32 %s, %s, %s' % (S(s_t0), S(s_t0), S(s_t2)))
        a('s_add_u32 %s, %s, %d' % (S(s_t0), S(s_t0), 8 * 7168))
        a('v_add_u32 %s, %s, %s' % (V(self.vXd[2]), S(s_t0), V(t3)))
        a('s_lshl_b32 %s, %s, 10' % (S(s_oH), S(s_t3)))
        a('s_mul_i32 %s, %s, %d' % (S(s_bW), S(s_w), 16 * 2688))
        a('s_lshl_b32 %s, %s, 7' % (S(s_t0), S(s_p)))
        a('s_add_u32 %s, %s, %s' % (S(s_bW), S(s_bW), S(s_t0)))
        a('s_lshl_b32 %s, %s, 12' % (S(s_m0W), S(s_w)))
        a('s_lshl_b32 %s, %s, 10' % (S(s_m0X), S(s_w)))
        a('s_lshl_b32 %s, %s, 1' % (S(s_kc), S(s_rl)))
        a('s_add_u32 %s, %s, %s' % (S(s_kc), S(s_kc), S(s_p)))
        a('s_cmp_ge_u32 %s, 7' % S(s_kc))
        a('s_cselect_b32 %s, 7, 0' % S(s_t0))
        a('s_sub_u32 %s, %s, %s' % (S(s_kc), S(s_kc), S(s_t0)))
        for r_ in (t0, t1, t2, t3, u0, u1):
            R.release(r_)
        a('s_mov_b32 %s, %d' % (S(sX + 2), 2048 * 896))
        a('s_mov_b32 %s, 0x20000' % S(sX + 3))
        a('s_mov_b32 %s, %d' % (S(sWQ + 2), 448 * 2688))
        a('s_mov_b32 %s, 0x20000' % S(sWQ + 3))
        d0 = self.p1_dma(0)
        a.seq(d0[0])
        a.wait_lg()
        a('s_mov_b64 %s, %s' % (S(sX, 2), S(sPTR, 2)))
        a('s_mov_b64 %s, %s' % (S(sWQ, 2), S(sPTR + 2, 2)))
        self.stamp()
        a('s_load_dwordx4 %s, s[0:1], 16' % S(sPTR + 4, 4))
        a('s_load_dwordx8 %s, s[0:1], 32' % S(sPTR + 8, 8))
        a('s_load_dwordx2 %s, s[0:1], 64' % S(60, 2))
        a('s_load_dwordx2 %s, s[0:1], 80' % S(62, 2))
        a('s_cmp_eq_u32 %s, 7' % S(s_p))
        a('s_cbranch_scc1 Lhelper')
        self.st_helper = (list(a.vmq), list(a.lgq), self.nts)
        d1 = self.p1_dma(1)
        self.pend = d0[1:] + [d1[0] + d1[1]] + d1[2:]
        self.hook = 0
        self.more()

    def more(self):
        plan = [int(x, 16) for x in self.o.get('plan', '70000340')]
        n = plan[self.hook] if self.hook < len(plan) - 1 else 99
        self.hook += 1
        self.a.seq(self.pend[:n])
        self.pend = self.pend[n:]

    def srds(self):
        a = self.a
        a('v_lshlrev_b32 %s, 4, %s' % (V(self.vL16), V(self.vL)))
        a('v_mov_b32 %s, 0' % V(self.vZero))
        fk = self.o.get('fake', 0)
        self.srd(sWO, sPTR + 4, 0 if fk & 1 else 448 * 896)
        self.srd(sW1, sPTR + 8, 0 if fk & 2 else 448 * 3584)
        self.srd(sB1, sPTR + 10, 1792 * 2)
        self.srd(sW2, sPTR + 12, 0 if fk & 4 else 1792 * 896)
        self.srd(sB2, sPTR + 14, 448 * 2)
        self.srd(sOUT, 60, 2048 * 896)
        a('s_and_b32 %s, s2, 7' % S(s_t0))
        a('s_lshl_b32 %s, %s, 21' % (S(s_t0), S(s_t0)))
        a('s_add_u32 %s, s62, %s' % (S(sWS), S(s_t0)))
        a('s_addc_u32 %s, s63, 0' % S(sWS + 1))
        a('s_mov_b32 %s, %d' % (S(sWS + 2), 2 << 20))
        a('s_mov_b32 %s, 0x20000' % S(sWS + 3))

    def helper(self):
        a, R = self.a, self.R
        a.label('Lhelper')
        a.vmq, a.lgq, nts = self.st_helper
        keep = self.nts
        self.nts = nts
        jk = V(self.vJunk)
        t0, t1 = 20, 21
        self.srds()
        a('v_mul_u32_u24 %s, 37, %s' % (V(t0), V(self.vL)))
        a('v_lshrrev_b32 %s, 8, %s' % (V(t0), V(t0)))
        a('v_mul_u32_u24 %s, %d, %s' % (V(t1), 2688 - 7 * 128, V(t0)))
        a('v_lshl_add_u32 %s, %s, 7, %s' % (V(t1), V(self.vL), V(t1)))
        a('v_lshlrev_b32 %s, 7, %s' % (V(t0), V(self.vL)))
        self.lin(s_t1, [(s_rl, 4), (s_w, 1)])
        a('s_and_b32 %s, s2, 7' % S(s_t0))
        self.lin(s_t2, [(s_t1, 8), (s_t0, 1)])

        def tl(srd, sbase, off):
            a('s_add_u32 %s, %s, %d' % (S(s_d), S(sbase), off))
            if len(a.vmq) > 56:
                a._wait(vm=40)
            a.one(nodep('buffer_load_dword %s, %s, %s, %s offen' % (jk, V(t0), S(srd, 4), S(s_d))))

        def ws(base, nbytes):
            a('s_mov_b64 exec, -1')
            a('s_lshl_b32 %s, %s, 13' % (S(s_t0), S(s_t1)))
            for i in range((nbytes + 131071) // 131072):
                tl(sWS, s_t0, base + i * 131072)

        def wv_l2():
            a('s_mov_b32 exec_hi, 0x1ffff')
            a('s_and_b32 %s, s2, 1' % S(s_t0))
            a('s_lshl_b32 %s, %s, 5' % (S(s_t0), S(s_t0)))
            a('s_add_u32 %s, %s, %s' % (S(s_t0), S(s_t0), S(s_t1)))
            for i in range(4):
                a('s_add_u32 %s, %s, %d' % (S(s_d), S(s_t0), 16 * i))
                a('s_and_b32 %s, %s, 63' % (S(s_d), S(s_d)))
                a('s_mul_i32 %s, %s, %d' % (S(s_d), S(s_d), 7 * 2688))
                a.one(nodep('buffer_load_dword %s, %s, %s, %s offen offset:1792' % (jk, V(t1), S(sWQ, 4), S(s_d))))

        def wv_chip():
            a('s_mov_b32 exec_hi, 0x1ffff')
            a('s_lshr_b32 %s, %s, 1' % (S(s_d), S(s_t2)))
            a('s_mul_i32 %s, %s, %d' % (S(s_d), S(s_d), 7 * 2688))
            a.one(nodep('buffer_load_dword %s, %s, %s, %s offen offset:1792' % (jk, V(t1), S(sWQ, 4), S(s_d))))

        def chip(srd):
            a('s_mov_b32 exec_hi, 0x1ffff')
            if srd == sWO:
                a('s_lshr_b32 %s, %s, 1' % (S(s_t0), S(s_t2)))
                a('s_mul_i32 %s, %s, %d' % (S(s_t0), S(s_t0), 49 * 128))
                tl(sWO, s_t0, 0)
            else:
                a('s_mul_i32 %s, %s, %d' % (S(s_t0), S(s_t2), 98 * 128))
                tl(srd, s_t0, 0)
                tl(srd, s_t0, 49 * 128)

        def l2(srd, n0, n):
            a('s_mov_b32 exec_hi, 0x1ffff')
            a('s_mul_i32 %s, %s, %d' % (S(s_t0), S(s_t1), 49 * 128))
            for i in range(n0, n):
                tl(srd, s_t0, i * 16 * 49 * 128)
        for x in (sOUT, sB1, sB2):
            a.one(nodep('buffer_load_dword %s, %s, %s, 0 offen' % (jk, V(t0), S(x, 4))))
        def fl():
            a('s_mov_b64 exec, -1')
            a('s_and_b32 %s, %s, 1' % (S(s_t0), S(s_t1)))
            a('s_lshl_b32 %s, %s, 13' % (S(s_t0), S(s_t0)))
            tl(sWS, s_t0, WS_FL)
        def g2():
            a('s_mov_b64 exec, -1')
            a('s_mul_i32 %s, %s, 7168' % (S(s_t0), S(s_t1)))
            a('s_mov_b32 exec_hi, 0xffffff')
            for i in range(4):
                tl(sWS, s_t0, WS_H1 + (2 * i + 1) * 114688)

        def wb():
            a('s_mov_b64 exec, -1')
            a('s_cmp_lg_u32 %s, 0' % S(s_t1))
            a('s_cbranch_scc1 Lfin')
            a('s_memrealtime s[4:5]')
            a.force_wait('vmcnt(0) lgkmcnt(0)')
            a('s_add_u32 s6, s4, %d' % self.o.get('wbd', 300))
            a.label('Lwbd')
            a('s_memrealtime s[4:5]')
            a.force_wait('lgkmcnt(0)')
            a('s_sub_u32 s7, s6, s4')
            a('s_cmp_gt_i32 s7, 0')
            a('s_cbranch_scc1 Lwbd')
            self.stamp()
            a('buffer_wbl2 sc1')
            a.force_wait('vmcnt(0)')
        steps = {'f': fl, 'G': g2, 'W': wb, 'e': lambda: ws(WS_EX, 196608), 'o': lambda: ws(WS_O, 262144), 'h': lambda: ws(WS_H, 262144),
                 'g': lambda: ws(WS_H1, 917504), 'V': wv_l2, 'v': wv_chip, '0': lambda: chip(sWO),
                 '1': lambda: chip(sW1), '2': lambda: chip(sW2), 'O': lambda: l2(sWO, 0, 4),
                 'A': lambda: l2(sW1, 0, 4), 'B': lambda: l2(sW1, 4, 8), 'C': lambda: l2(sW1, 8, 12),
                 'D': lambda: l2(sW1, 12, 16), 'P': lambda: l2(sW2, 0, 4), 'Q': lambda: l2(sW2, 4, 8),
                 'R': lambda: l2(sW2, 8, 12), 'S': lambda: l2(sW2, 12, 16), '.': self.stamp}
        for ch in self.o.get('hp', '1vV0f2OCDPQRS'):
            steps[ch]()
        a('s_mov_b64 exec, -1')
        a('s_branch Lfin')
        self.nts = keep

    def late_setup(self):
        a, R = self.a, self.R
        self.srds()
        a('s_lshr_b32 %s, %s, 1' % (S(s_t1), S(s_rl)))
        self.lin(s_p3, [(s_t1, 4096)], FL3)
        a('s_add_u32 %s, %s, %d' % (S(s_t0), S(s_p3), 3072 + 768))
        a('s_buffer_load_dwordx2 %s, %s, %s' % (S(s_tag, 2), S(sWS, 4), S(s_t0)))
        a('s_and_b32 %s, %s, 1' % (S(s_j), S(s_rl)))
        a('s_mul_i32 %s, %s, 7' % (S(s_j), S(s_j)))
        a('s_add_u32 %s, %s, %s' % (S(s_j), S(s_j), S(s_p)))
        self.lin(s_p2, [(s_t1, 16 * FS)], FL2)
        self.lin(s_p0, [(s_t1, 16 * FS)], FL0)
        self.lin(s_p1, [(s_rl, 8 * FS)], FL1)
        self.lin(s_f1, [(s_p, FS), (s_p1, 1)])
        a('s_add_u32 %s, %s, %d' % (S(s_f2), S(s_f1), FL2 - FL1))
        self.lin(s_woO, [(s_w, 7168), (s_p, 128)])
        self.lin(s_woM, [(s_w, 1024)], L_WO4)
        self.lin(s_w1O, [(s_w, 56 * 3584), (s_j, 256)])
        self.lin(s_w1M, [(s_w, 14336)])
        self.lin(s_w2O, [(s_w, 16 * 896), (s_p, 128)])
        self.lin(s_w2M, [(s_w, STG_W)], L_STG)
        self.lin(s_w2R, [(s_w, 7168)])
        self.more()
        self.lin(s_oL, [(s_rl, 4 * 14336), (s_w, 14336)], WS_O)
        self.lin(s_oS, [(s_p, 2048), (s_oL, 1)])
        self.lin(s_ex, [(s_rl, 49152), (s_w, 1024)], WS_EX)
        self.lin(s_hL, [(s_t1, 4 * 28 * 1024), (s_w, 4096)], WS_H)
        self.lin(s_hLb, [(s_t1, 4 * 28 * 1024), (s_w, 3072)], WS_H + 16384)
        self.lin(s_aM, [(s_w, 4096)])
        self.lin(s_aMb, [(s_w, 3072)], 16384)
        self.lin(s_stL, [(s_t1, 4 * 2048)], WS_ST)
        self.lin(s_h1S, [(s_t1, 4 * 112 * 1024), (s_j, 8192), (s_w, 2048)], WS_H1)
        self.lin(s_h1L, [(s_rl, 2 * 112 * 1024), (s_w, 1024)], WS_H1)
        a('s_lshr_b32 %s, %s, 1' % (S(s_t1), S(s_w)))
        a('s_and_b32 %s, %s, 1' % (S(s_t2), S(s_w)))
        self.lin(s_hS, [(s_rl, 2 * 28 * 1024), (s_t1, 28 * 1024), (s_p, 4096), (s_t2, 256)], WS_H)
        self.lin(s_stS, [(s_rl, 4096), (s_t1, 2048), (s_p, 256), (s_t2, 128)], WS_ST)
        a('s_lshl_b32 %s, %s, 11' % (S(s_kv), S(s_w)))
        a('s_add_u32 %s, %s, 1792' % (S(s_bV), S(s_bW)))
        for sm, k in ((s_M1, 1), (s_M2, 2), (s_M3, 3)):
            m = sum(1 << l for l in range(32) if (l & 3) == k)
            a('s_mov_b32 %s, 0x%x' % (S(sm), m))
            a('s_mov_b32 %s, 0x%x' % (S(sm + 1), m))
        a('s_mov_b32 %s, 0' % S(s_Q3))
        a('s_mov_b32 %s, 0xffff0000' % S(s_Q3 + 1))
        a('s_mov_b32 %s, 0' % S(s_hi))
        a('s_mov_b32 %s, -1' % S(s_hi + 1))
        a('s_mov_b32 %s, 0xffff0000' % S(s_G1))
        a('s_mov_b32 %s, -1' % S(s_G1 + 1))
        self.vF1, self.vF2, self.vF3 = R.alloc(), R.alloc(), R.alloc()
        self.vFs = R.alloc()
        self.vPl = R.alloc(2)
        a('v_min_u32 %s, 6, %s' % (V(self.vF1), V(self.vL)))
        a('v_and_b32 %s, 7, %s' % (V(self.vF2), V(self.vL)))
        a('v_min_u32 %s, 6, %s' % (V(self.vF2), V(self.vF2)))
        a('v_and_or_b32 %s, %s, 8, %s' % (V(self.vF2), V(self.vL), V(self.vF2)))
        a('v_min_u32 %s, 13, %s' % (V(self.vF3), V(self.vL)))
        for x in (self.vF1, self.vF2, self.vF3):
            a('v_mul_u32_u24 %s, %d, %s' % (V(x), FS, V(x)))
        a('v_min_u32 %s, 1, v0' % V(self.vFs))
        a('v_lshlrev_b32 %s, 30, %s' % (V(self.vFs), V(self.vFs)))

    def tag_finish(self):
        a = self.a
        Gen.tag_finish(self)
        a('s_getreg_b32 %s, hwreg(HW_REG_XCC_ID, 0, 4)' % S(s_t1))
        a('s_xor_b32 %s, %s, %s' % (S(s_t1), S(s_t1), S(s_tag + 1)))
        a('v_mov_b32 %s, %s' % (V(self.vPl), S(s_tag)))
        a('v_mov_b32 %s, %s' % (V(self.vPl + 1), S(s_t1)))
        self.lin(s_t0, [(s_j, FS), (s_p0, 1)])
        a('buffer_store_dwordx2 %s, %s, %s, %s offen sc1' % (V(self.vPl, 2), V(self.vFs), S(sWS, 4), S(s_t0)))

    def decide(self):
        a, R = self.a, self.R
        Lk, L = a.newlabel('Lok'), a.newlabel('Lpoll')
        t = R.alloc()

        def test():
            a('v_xor_b32 %s, %s, %s' % (V(t), S(s_tag + 1), V(self.vPl + 1)))
            a('v_cmp_ne_u32 vcc, %s, %s' % (S(s_tag), V(self.vPl)))
            a('v_cmp_lt_u32 %s, 15, %s' % (S(s_ts, 2), V(t)))
            a('s_or_b64 vcc, vcc, %s' % S(s_ts, 2))
        test()
        a('s_cbranch_scc0 %s' % Lk)
        keep = list(a.vmq)
        a('s_mov_b32 %s, 0' % S(s_cnt))
        a.label(L)
        a(self.probe_ins(s_p0, self.vF3))
        a('s_add_u32 %s, %s, 1' % (S(s_cnt), S(s_cnt)))
        a('s_cmp_gt_u32 %s, 0x40000' % S(s_cnt))
        a.force_wait('vmcnt(0)')
        a('s_cbranch_scc1 %s' % Lk)
        test()
        a('s_cbranch_scc1 %s' % L)
        a.vmq = keep
        a.label(Lk)
        a('s_getreg_b32 %s, hwreg(HW_REG_XCC_ID, 0, 4)' % S(s_t0))
        a('v_cmp_ne_u32 vcc, %s, %s' % (S(s_t0), V(t)))
        a('s_cmp_eq_u64 vcc, 0')
        if self.o.get('nolocal'):
            a('s_cmp_eq_u32 0, 1')
        a('s_cselect_b32 %s, 0, 0x40000000' % S(s_t0))
        a('s_xor_b32 %s, %s, 0x40000000' % (S(s_t1), S(s_t0)))
        self.vFsL = self.vF3
        a('v_or_b32 %s, %s, %s' % (V(self.vFsL), S(s_t0), V(self.vFs)))
        a('v_or_b32 %s, %s, %s' % (V(self.vFs), S(s_t1), V(self.vFs)))
        self.vR = [R.alloc(), R.alloc()]
        a('v_lshrrev_b32 %s, 2, v0' % V(t))
        a('v_min_u32 %s, 1, %s' % (V(t), V(t)))
        a('v_lshlrev_b32 %s, 20, %s' % (V(t), V(t)))
        a('v_add_lshl_u32 %s, %s, v0, 10' % (V(t), V(t)))
        a('v_or_b32 %s, %s, %s' % (V(self.vR[0]), S(s_t0), V(t)))
        a('v_or_b32 %s, %s, %s' % (V(self.vR[1]), S(s_t1), V(t)))
        R.release(t)

    def flag2(self, soff, off=0):
        return ['buffer_store_dwordx2 %s, %s, %s, %s offen offset:%d' %
                (V(self.vTag, 2), V(self.vFsL), S(sWS, 4), S(soff), off),
                'buffer_store_dwordx2 %s, %s, %s, %s offen offset:%d sc1' %
                (V(self.vTag, 2), V(self.vFs), S(sWS, 4), S(soff), off)]

    def flag_store(self, soff):
        self.a.seq(self.flag2(soff))

    def kc_next(self):
        return ['s_add_u32 %s, %s, 1' % (S(s_kc), S(s_kc)),
                ['s_cmp_eq_u32 %s, 7' % S(s_kc),
                 's_cselect_b32 %s, 0, %s' % (S(s_kc), S(s_kc))]]

    def p1_dma(self, i):
        sl = L_RING + (i % 3) * SL
        tag = 'c%d' % i
        pre = ['s_mul_i32 %s, %s, %d' % (S(s_oW), S(s_kc), 64 * 2688),
               's_add_u32 %s, %s, %s' % (S(s_oW), S(s_oW), S(s_bW)),
               's_lshl_b32 %s, %s, 7' % (S(s_oX), S(s_kc))] + self.kc_next()
        out = [pre]

        def xd(k, sl=sl):
            m = 's_add_u32 m0, %s, %d' % ((S(s_m0X), sl + XO + 4096 * k) if k < 2 else (S(s_oH), sl + XO + 8192))
            return [m, Ins('buffer_load_dwordx4 %s, %s, %s offen lds' % (V(self.vXd[k]), S(sX, 4), S(s_oX)), tag)]
        if i < 6:
            out.append(xd(0))
        for mat in range(2):
            out.append(['s_add_u32 m0, %s, %d' % (S(s_m0W), sl + mat * (2048 - 896)),
                        Ins('buffer_load_dwordx4 %s, %s, %s offen offset:%d lds' %
                            (V(self.vWd[0]), S(sWQ, 4), S(s_oW), mat * 896), tag)])
            out.append(Ins('buffer_load_dwordx4 %s, %s, %s offen offset:%d lds' %
                           (V(self.vWd[1]), S(sWQ, 4), S(s_oW), 1024 + mat * 896), tag))
            if i < 6:
                out.append(xd(1 + mat))
        if i == 5:
            out.append(['s_lshl_b32 %s, %s, 7' % (S(s_oX), S(s_kc))] + xd(0, L_RING + DX6))
            out += [xd(1, L_RING + DX6), xd(2, L_RING + DX6)]
        return out

    def wv_dma(self, i):
        return [['s_mul_i32 %s, %s, %d' % (S(s_oW), S(s_kc), 64 * 2688),
                 's_add_u32 %s, %s, %s' % (S(s_oW), S(s_oW), S(s_bV)),
                 's_add_u32 m0, %s, %d' % (S(s_kv), L_WV + i * 8192),
                 Ins('buffer_load_dwordx4 %s, %s, %s offen lds' % (V(self.vWd[0]), S(sWQ, 4), S(s_oW)), 'wv%d' % i)],
                ['s_add_u32 %s, %s, 1' % (S(s_kc), S(s_kc)),
                 's_cmp_eq_u32 %s, 7' % S(s_kc),
                 's_cselect_b32 %s, 0, %s' % (S(s_kc), S(s_kc)),
                 Ins('buffer_load_dwordx4 %s, %s, %s offen offset:1024 lds' %
                     (V(self.vWd[1]), S(sWQ, 4), S(s_oW)), 'wv%d' % i)]]

    def p1_setup(self):
        a, R = self.a, self.R
        vL, vL16 = self.vL, self.vL16
        t0, t1, t2, t3, t4 = [R.alloc() for _ in range(5)]
        self.more()
        self.vOnes = vOnes = R.alloc(4)
        for i in range(4):
            a('v_mov_b32 %s, 0x3f803f80' % V(vOnes + i))
        a('v_mov_b32 %s, %d' % (V(t4), L_RING + 26624))
        for off in (0, SL, 2 * SL, DX6):
            a('ds_write_b128 %s, %s offset:%d' % (V(t4), V(vOnes, 4), off))
        self.aW, self.aWv = R.alloc(), R.alloc()
        a('v_bfe_u32 %s, %s, 2, 2' % (V(t0), V(vL)))
        a('v_bfe_u32 %s, %s, 4, 1' % (V(t1), V(vL)))
        a('v_lshl_add_u32 %s, %s, 3, %s' % (V(t2), V(t1), V(t0)))
        a('v_lshlrev_b32 %s, 7, %s' % (V(t2), V(t2)))
        a('v_bfe_u32 %s, %s, 3, 1' % (V(t0), V(vL)))
        a('v_lshl_or_b32 %s, %s, 1, %s' % (V(t0), V(t1), V(t0)))
        a('v_xor_b32 %s, %s, %s' % (V(t0), S(s_w), V(t0)))
        a('v_lshl_add_u32 %s, %s, 5, %s' % (V(t2), V(t0), V(t2)))
        a('v_and_b32 %s, 3, %s' % (V(t1), V(vL)))
        a('v_lshl_add_u32 %s, %s, 3, %s' % (V(t2), V(t1), V(t2)))
        a('v_lshrrev_b32 %s, 5, %s' % (V(t3), V(vL)))
        a('v_lshl_add_u32 %s, %s, 11, %s' % (V(self.aWv), V(t3), V(t2)))
        a('v_lshl_add_u32 %s, %s, 12, %s' % (V(self.aW), V(t3), V(t2)))
        a('v_add_u32 %s, %d, %s' % (V(self.aW), L_RING, V(self.aW)))
        self.aX = [R.alloc(), R.alloc()]
        self.aXh = [R.alloc(), R.alloc()]
        self.aXo = [R.alloc(), R.alloc()]
        a('v_and_b32 %s, 15, %s' % (V(t0), V(vL)))
        a('v_lshrrev_b32 %s, 4, %s' % (V(t1), V(vL)))
        a('v_lshrrev_b32 %s, 1, %s' % (V(t2), V(t0)))
        a('v_xor_b32 %s, %s, %s' % (V(t1), V(t1), V(t2)))
        a('v_lshlrev_b32 %s, 4, %s' % (V(t1), V(t1)))
        a('v_lshl_add_u32 %s, %s, 7, %s' % (V(t1), V(t0), V(t1)))
        a('v_add_u32 %s, %d, %s' % (V(self.aX[0]), L_RING + XO, V(t1)))
        a('v_xor_b32 %s, 64, %s' % (V(self.aX[1]), V(self.aX[0])))
        a('v_cmp_eq_u32 vcc, 0, %s' % V(t0))
        a('s_add_u32 %s, %s, 2048' % (S(s_t0), S(s_kv)))
        for s in range(2):
            a('v_cndmask_b32 %s, %s, %s, vcc' % (V(self.aXh[s]), V(self.aX[s]), V(t4)))
            a('v_add_u32 %s, %s, %s' % (V(self.aXo[s]), S(s_t0), V(self.aX[s])))
        self.more()
        self.vBp, self.vBc, self.vMP = R.alloc(4), R.alloc(4), R.alloc(4)
        a('v_lshrrev_b32 %s, 4, %s' % (V(t1), V(vL)))
        a('v_lshlrev_b32 %s, 2, %s' % (V(t1), V(t1)))
        a('v_sub_u32 %s, %s, %s' % (V(t1), V(t0), V(t1)))
        a('v_mov_b32 %s, %s' % (V(t4), f32(-1e30)))
        for k, (base, add) in enumerate(((self.vBp, 16), (self.vBc, 0))):
            for r in range(4):
                mp = self.vMP + 2 * k + (r >> 1)
                a('v_add_u32 %s, %d, %s' % (V(t2), add - r, V(t1)))
                a('v_and_b32 %s, 0xfffffff1, %s' % (V(t2), V(t2)))
                a('v_mov_b32 %s, 0x%x' % (V(t3), 0xffff0000 if r & 1 else 0xffff))
                a('v_cmp_eq_u32 vcc, 0, %s' % V(t2))
                a('v_cndmask_b32 %s, %s, %s, vcc' % (V(base + r), V(t4), V(self.vZero)))
                a('v_cndmask_b32 %s, %s, %s, vcc' % (V(mp), V(mp if r & 1 else self.vZero), V(t3)))
        a('s_or_b32 %s, %s, %s' % (S(s_t0), S(s_w), S(s_r)))
        a('s_cmp_eq_u32 %s, 0' % S(s_t0))
        a('s_cselect_b32 %s, %s, 0' % (S(s_t0), f32(-1e30)))
        for r in range(4):
            a('v_min_f32 %s, %s, %s' % (V(self.vBp + r), S(s_t0), V(self.vBp + r)))
        self.more()
        self.aSt, self.aSo, self.aSv, self.aQw, self.aQr, self.aVw, self.aVr = [R.alloc() for _ in range(7)]
        a('v_lshlrev_b32 %s, 2, %s' % (V(t1), V(t0)))
        a('v_add_u32 %s, %d, %s' % (V(self.aSt), L_STAT, V(t1)))
        self.lin(s_t0, [(s_w, 64)], 64)
        a('v_add_u32 %s, %s, %s' % (V(self.aSo), S(s_t0), V(self.aSt)))
        self.aSw = [R.alloc(), R.alloc()]
        a('s_mov_b32 vcc_lo, 0x00f0000f')
        a('s_mov_b32 vcc_hi, 0xf0000f00')
        a('v_lshlrev_b32 %s, 2, %s' % (V(t1), V(vL)))
        a('v_add_u32 %s, %d, %s' % (V(t1), L_VS, V(t1)))
        a('v_cndmask_b32 %s, %s, %s, vcc' % (V(self.aSw[0]), V(t1), V(self.aSo)))
        a('v_cndmask_b32 %s, %s, %s, vcc' % (V(self.aSw[1]), V(t1), V(self.aSt)))
        a('v_and_b32 %s, 0x30, %s' % (V(t1), V(vL)))
        a('v_add_u32 %s, %d, %s' % (V(self.aSv), L_STAT, V(t1)))
        a('v_lshrrev_b32 %s, 1, %s' % (V(t1), V(t1)))
        a('v_mul_u32_u24 %s, %d, %s' % (V(t2), QP, V(t0)))
        a('v_add3_u32 %s, %s, %s, %s' % (V(t1), V(t1), V(t2), self.sconst(L_Q, s_t0)))
        a('s_lshl_b32 %s, %s, 5' % (S(s_t0), S(s_w)))
        a('v_add_u32 %s, %s, %s' % (V(self.aQw), S(s_t0), V(t1)))
        a('s_mul_i32 %s, %s, %d' % (S(s_t0), S(s_w), 16 * QP))
        a('v_add_u32 %s, %s, %s' % (V(self.aQr), S(s_t0), V(t1)))
        a('v_lshlrev_b32 %s, 3, %s' % (V(t1), V(vL)))
        self.lin(s_t0, [(s_w, 2560)], L_VS)
        a('v_add_u32 %s, %s, %s' % (V(self.aVw), S(s_t0), V(t1)))
        self.lin(s_t0, [(s_w, 512)], L_VS)
        a('v_add_u32 %s, %s, %s' % (V(self.aVr), S(s_t0), V(t1)))
        self.vXr = R.alloc(8)
        self.aXr = R.alloc(4)
        a('v_lshrrev_b32 %s, 5, %s' % (V(t1), V(vL)))
        a('v_lshrrev_b32 %s, 1, %s' % (V(t2), V(t0)))
        a('v_xor_b32 %s, %s, %s' % (V(t1), V(t1), V(t2)))
        a('v_lshlrev_b32 %s, 4, %s' % (V(t1), V(t1)))
        a('v_bfe_u32 %s, %s, 4, 1' % (V(t2), V(vL)))
        a('v_lshl_add_u32 %s, %s, 3, %s' % (V(t1), V(t2), V(t1)))
        a('v_lshl_add_u32 %s, %s, 7, %s' % (V(t1), V(t0), V(t1)))
        a('s_add_u32 %s, %s, %d' % (S(s_t0), S(s_kv), L_RING + XO + 2048))
        for t in range(4):
            a('v_xor_b32 %s, %d, %s' % (V(t2), 32 * t, V(t1)))
            a('v_add_u32 %s, %s, %s' % (V(self.aXr + t), S(s_t0), V(t2)))
        self.more()
        self.vWOd = R.alloc()
        a('v_lshrrev_b32 %s, 4, %s' % (V(t0), V(vL)))
        a('v_lshlrev_b32 %s, 5, %s' % (V(t1), V(t0)))
        a('v_and_b32 %s, 0x70, %s' % (V(t2), V(vL16)))
        a('v_xor_b32 %s, %s, %s' % (V(t1), V(t1), V(t2)))
        a('v_lshrrev_b32 %s, 3, %s' % (V(t3), V(vL)))
        a('v_mul_u32_u24 %s, 896, %s' % (V(t3), V(t3)))
        a('v_add_u32 %s, %s, %s' % (V(self.vWOd), V(t1), V(t3)))
        self.vW2d = [R.alloc(), R.alloc()]
        a('v_and_b32 %s, 1, %s' % (V(t1), V(t0)))
        a('v_lshlrev_b32 %s, 6, %s' % (V(t1), V(t1)))
        a('v_xor_b32 %s, %s, %s' % (V(t1), V(t1), V(t2)))
        a('v_add_u32 %s, %s, %s' % (V(self.vW2d[0]), V(t1), V(t3)))
        a('v_add_u32 %s, %d, %s' % (V(self.vW2d[1]), 8 * 896 - 1024, V(self.vW2d[0])))
        self.vW1d = [R.alloc() for _ in range(4)]
        a('v_lshlrev_b32 %s, 6, %s' % (V(t1), V(t0)))
        a('v_and_b32 %s, 0xf0, %s' % (V(t2), V(vL16)))
        a('v_xor_b32 %s, %s, %s' % (V(t1), V(t1), V(t2)))
        a('v_mul_u32_u24 %s, 3584, %s' % (V(t0), V(t0)))
        a('v_add_u32 %s, %s, %s' % (V(self.vW1d[0]), V(t0), V(t1)))
        for i in range(1, 4):
            a('v_add_u32 %s, %d, %s' % (V(self.vW1d[i]), i * (4 * 3584 - 1024), V(self.vW1d[0])))
        self.aWO = [R.alloc() for _ in range(4)]
        a('v_lshrrev_b32 %s, 2, %s' % (V(t0), V(vL)))
        a('v_bfe_u32 %s, %s, 3, 2' % (V(t1), V(vL)))
        a('v_lshlrev_b32 %s, 5, %s' % (V(t1), V(t1)))
        a('v_and_b32 %s, 3, %s' % (V(t2), V(vL)))
        a('v_lshl_or_b32 %s, %s, 3, %s' % (V(t1), V(t2), V(t1)))
        a('v_lshl_add_u32 %s, %s, 7, %s' % (V(t0), V(t0), V(t1)))
        a('v_add_u32 %s, %d, %s' % (V(t0), L_WO4, V(t0)))
        for t in range(4):
            a('v_xor_b32 %s, %d, %s' % (V(self.aWO[t]), 32 * t, V(t0)))
        for r_ in (t0, t1, t2, t3, t4):
            R.release(r_)

    def XF(self, n, j):
        k = 5 * n + j
        return A(4 * k, 4) if k < 64 else V(self.xv + 4 * (k - 64), 4)

    def p1_reads(self, i, s, W, Xo):
        sl = (i % 3) * SL
        n = 2 * i + s
        out = ['ds_read_b128 %s, %s offset:%d' % (V(Xo, 4), V(self.aXo[s]), sl),
               'ds_read_b128 %s, %s offset:%d' % (self.XF(n, 0), V(self.aXh[s]), sl)]

        def w(mat):
            off = sl + s * 8192 + mat * 2048
            return ['ds_read_b64_tr_b16 %s, %s offset:%d' % (V(W[mat] + 2 * h, 2), V(self.aW), off + 512 * h)
                    for h in range(2)]
        out += w(0)
        for j in range(1, 5):
            out.append('ds_read_b128 %s, %s offset:%d' % (self.XF(n, j), V(self.aX[s]), sl + 2048 * j))
        out += w(1)
        return out

    def p1_mfma(self, n, W, Xo):
        def mm(d, x, y):
            return MF16 % (V(d, 4), x, y, '0' if n == 0 else V(d, 4))
        out = [mm(self.XXo, V(Xo, 4), V(Xo, 4)),
               mm(self.RS, V(self.vOnes, 4), V(Xo, 4)),
               mm(self.XXh, self.XF(n, 0), self.XF(n, 0))]
        for j in range(5):
            out.append(mm(self.Q[j], V(W[0], 4), self.XF(n, j)))
        for j in range(5):
            out.append(mm(self.K[j], V(W[1], 4), self.XF(n, j)))
        return out

    def w2_slot(self, k):
        f = FORD.index(k)
        where = ['S0', 'S1', 'S2', 'S3', 'S4'] * 2 + ['A0', 'A1', 'A2', 'B0', 'B1', 'B2', 'S0', 'S1', 'S2', 'S3', 'S4',
                                                     'C0', 'C1', 'C2', 'A0', 'A1', 'A2', 'B0']
        reg, i = where[f][0], int(where[f][1])
        if reg == 'S':
            return s_w2M, 0, i * 2048
        return s_w2R, 1, 'ABC'.index(reg) * 28672 + i * 2048

    @staticmethod
    def kq(k):
        cls, i = divmod(k, 14)
        return cls, 4 * (i >> 1) + (i & 1)

    def w2_dma(self, k):
        sm, _, off = self.w2_slot(k)
        tag = 'w2_%d' % k
        cls, q = self.kq(k)
        return ['s_add_u32 m0, %s, %d' % (S(sm), off),
                's_add_u32 %s, %s, %d' % (S(s_d), S(s_w2O1 if cls else s_w2O), q * 64 * 896),
                Ins('buffer_load_dwordx4 %s, %s, %s offen lds' % (V(self.vW2d[0]), S(sW2, 4), S(s_d)), tag),
                Ins('buffer_load_dwordx4 %s, %s, %s offen offset:1024 lds' % (V(self.vW2d[1]), S(sW2, 4), S(s_d)), tag)]

    def h1load(self, n, dst):
        mt, k = divmod(n, 28)
        cls, q = self.kq(k)
        return ['s_add_u32 %s, %s, %d' % (S(s_d), S(s_h1L1 if cls else s_h1L), mt * 112 * 1024 + q * 4096),
                'buffer_load_dwordx4 %s, %s, %s, %s offen sc1' % (dst, V(self.vL16), S(sWS, 4), S(s_d))]

    def flag3(self, s):
        out = ['buffer_store_dwordx2 %s, %s, %s, %s offen offset:%d%s' %
               (V(self.vTag, 2), V(v), S(sWS, 4), S(s_f3), s * 256, sc) for v, sc in zip(self.vR, ('', ' sc1'))]
        if str(s) in self.o.get('st', '0'):
            out += ['s_add_u32 %s, %s, %d' % (S(s_t2), S(s_h1S1 if s & 1 else s_h1S), (s >> 1) * 112 * 1024),
                    nodep('buffer_load_dword %s, %s, %s, %s offen sc1' %
                          (V(self.vJunk), V(self.vT16), S(sWS, 4), S(s_t2)))]
        return out

    def probe3(self, s, rep=0):
        return Ins('s_buffer_load_dwordx16 %s, %s, %s offset:%d' %
                   (S(8, 16), S(sWS, 4), S(s_p31 if s & 1 else s_p3), s * 256 + rep * 1024), 'sprobe')

    def fold3(self):
        x = ['s_xor_b64 %s, %s, %s' % (S(8 + 2 * i, 2), S(8 + 2 * i, 2), S(s_tag, 2)) for i in range(7)]
        return x + ['s_or_b64 %s, %s, %s' % (S(8, 2), S(8, 2), S(8 + 2 * i, 2)) for i in range(1, 7)]

    def check3(self, s):
        a = self.a
        a(self.fold3()[-1])
        a('s_cbranch_scc1 Lslow3_%d' % s)
        a.label('Lok3_%d' % s)
        self.stamp(4)

    def slow3(self, s):
        a = self.a
        Lk, L = 'Lok3_%d' % s, a.newlabel('Lpoll')
        a.vmq, a.lgq = [], []
        a.label('Lslow3_%d' % s)
        for rep in (1, 2):
            if self.o.get('ts'):
                a('s_mov_b32 %s, %d' % (S(s_cnt), rep))
                a('v_writelane_b32 %s, %s, %d' % (V(self.vTS), S(s_cnt), 60 + s))
            a.one(self.probe3(s, rep))
            a.force_wait('lgkmcnt(0)')
            a.seq(self.fold3())
            a('s_cbranch_scc0 %s' % Lk)
        a('v_lshrrev_b32 %s, 3, %s' % (V(self.vF2), V(self.vF1)))
        a('s_mov_b32 %s, 2' % S(s_cnt))
        a.label(L)
        a('buffer_load_dwordx2 %s, %s, %s, %s offen offset:%d sc1' % (
            V(self.vPl, 2), V(self.vF2), S(sWS, 4), S(s_p31 if s & 1 else s_p3), s * 256))
        a('s_add_u32 %s, %s, 1' % (S(s_cnt), S(s_cnt)))
        if self.o.get('ts'):
            a('v_writelane_b32 %s, %s, %d' % (V(self.vTS), S(s_cnt), 60 + s))
        a('s_cmp_gt_u32 %s, 0x40000' % S(s_cnt))
        a.force_wait('vmcnt(0)')
        a('s_cbranch_scc1 %s' % Lk)
        a('v_cmp_ne_u64 vcc, %s, %s' % (S(s_tag, 2), V(self.vPl, 2)))
        a('s_nop 1')
        a('s_cbranch_vccnz %s' % L)
        a('s_branch %s' % Lk)

    def w1_pieces(self, half):
        out = []
        for i in range(14):
            d = Ins('buffer_load_dwordx4 %s, %s, %s offen offset:%d lds' %
                    (V(self.vW1d[i & 3]), S(sW1, 4), S(s_d), (i & 3) * 1024), 'w1')
            if i & 3 == 0:
                out.append(['s_add_u32 m0, %s, %d' % (S(s_w1M), L_W1H[half] + i * 1024),
                            's_add_u32 %s, %s, %d' % (S(s_d), S(s_w1O), (224 * half + 4 * i) * 3584), d])
            else:
                out.append(d)
        return out

    def wo_reads(self, lo, hi):
        return ['ds_read_b64_tr_b16 %s, %s offset:%d' %
                (A(16 * ks + 4 * t + 2 * sec, 2), V(self.aWO[t]), ks * 4096 + sec * 2048)
                for ks in range(lo, hi) for t in range(4) for sec in range(2)]

    def resid(self, i):
        a = self.a
        rls = [rl for rl in range(4) if (-2 * rl) % 7 == i]
        if not rls:
            return
        L = a.newlabel('Lres')
        a('s_cmp_lg_u32 %s, %d' % (S(s_rl), rls[0]))
        a('s_cbranch_scc1 %s' % L)
        keep = list(a.lgq)
        for t in range(4):
            a('ds_read_b64 %s, %s offset:%d' % (V(self.vXr + 2 * t, 2), V(self.aXr + t), (i % 3) * SL))
        a.force_wait('lgkmcnt(0)')
        a.lgq = keep
        a.label(L)

    def p1(self):
        a, R = self.a, self.R
        self.stamp(6)
        self.late_setup()
        self.stamp(6)
        self.p1_setup()
        self.more()
        self.addr2()
        self.more()
        self.stamp(6)
        self.Q = [R.alloc(4) for _ in range(5)]
        self.K = [R.alloc(4) for _ in range(5)]
        self.XXo, self.XXh, self.RS = R.alloc(4), R.alloc(4), R.alloc(4)
        self.xv = R.alloc(24)
        W = [[R.alloc(4) for _ in range(2)] for _ in range(2)]
        Xo = [R.alloc(4), R.alloc(4)]
        if self.o.get('iw', 1):
            a('s_mov_b64 exec, 0')
            for k in range(3):
                a('s_cmp_eq_u32 %s, %d' % (S(s_w), k))
                a('s_cbranch_scc1 Lch%d' % k)
            for c in range(1, 7):
                a('s_cmp_eq_u32 %s, %d' % (S(s_p), c))
                a('s_cbranch_scc1 Lvar%d' % c)
            a('s_branch Lvar0')
            a.raw('.p2align 12')
            a.label('Lback')
            a('s_mov_b64 exec, -1')
        self.stamp(6)
        D = self.o.get('defer', 6)
        defer = []
        wv = [x for i in range(7) for x in self.wv_dma(i)]
        nv4, nv5 = self.o.get('nv4', 2), self.o.get('nv5', 9)
        for i in range(6):
            a.wait_vm('c%d' % i)
            a.barrier()
            self.stamp(1 if i == 0 else 2)
            r0 = self.p1_reads(i, 0, W[0], Xo[0])
            r1 = self.p1_reads(i, 1, W[1], Xo[1])
            m1 = self.p1_mfma(2 * i + 1, W[1], Xo[1])
            Dn = D if i < 5 else 10
            mf = defer + self.p1_mfma(2 * i, W[0], Xo[0]) + m1[:13 - Dn]
            nd = len(defer)
            defer = m1[13 - Dn:]
            st = []
            if nd:
                a.seq(r0[:2])
                st.append((r0[2:], 0, nd))
            else:
                a.seq(r0)
                self.tag_finish()
            if i < 5:
                st.append((r1, nd, nd + 10))
                d = self.p1_dma(i + 2)
                st.append((d[0], 0, 3))
                st.append((d[1:] + (wv[:nv4] if i == 4 else []) + self.touch_at(i), 3, len(mf)))
            else:
                Xe = [R.alloc(4), R.alloc(4)]
                st.append((r1, nd, nd + 6))
                st.append((['v_add_u32 %s, %d, %s' % (V(x), DX6, V(x)) for x in self.aX + self.aXh + self.aXo],
                           nd + 6, nd + 9))
                rx = [[x for x in self.p1_reads(6, s, W[s], Xe[s]) if 'b128' in x] for s in range(2)]
                st.append((rx[0][:2] + rx[1][:2] + rx[0][2:] + rx[1][2:], nd + 10, nd + 20))
                mf += self.p1_mfma(12, W[0], Xe[0])[:3] + self.p1_mfma(13, W[1], Xe[1])[:3]
                st.append((wv[nv4:nv5] + self.touch_at(5), 0, len(mf)))
            a.slots(mf, st)
            self.resid(i)
        for x in Xo + Xe:
            R.release(x, 4)
        for r_ in self.vXd + self.aX + self.aXh + self.aXo:
            R.release(r_)
        R.release(self.aXr, 4)
        for c in range(1, 7):
            a('s_cmp_eq_u32 %s, %d' % (S(s_p), c))
            a('s_cbranch_scc1 Lvar%d' % c)
        self.Of = R.alloc(8)
        self.cq = R.alloc()
        st0 = (list(a.vmq), list(a.lgq), self.nts, set(R.free))
        ends = []
        for c in range(7):
            a.label('Lvar%d' % c)
            a.vmq, a.lgq, self.nts, R.free = list(st0[0]), list(st0[1]), st0[2], set(st0[3])
            self.last_chunk(W, defer, wv[nv5:])
            free1 = set(R.free)
            self.attn(c)
            ends.append([o.tag for o in a.vmq])
            if c < 6:
                a('s_branch Ljoin')
        a.label('Ljoin')
        k = ends[0][::-1].index('pub') + 2
        assert all(e[-k:] == ends[0][-k:] for e in ends)
        R.free = free1
        for x in self.Vv + self.wb + [self.vBp, self.vBc, self.vMP]:
            R.release(x, 4)
        R.release(self.xv, 24)
        for r_ in (self.aSv, self.aQr, self.aVw, self.aVr, self.aWv, self.vWOd, self.cq, self.vT1, self.vT2) + tuple(self.vWd):
            R.release(r_)

    def lstamp(self):
        if self.o.get('ts') == 7:
            k = self.lst = getattr(self, 'lst', -1) + 1
            self.a.one(Ins('s_memtime %s' % S(8 + 2 * (k % 8) if k % 8 < 4 else 28 + 2 * (k % 8 - 4), 2), 'sprobe'))

    def lcollect(self):
        if self.o.get('ts') == 7:
            self.a.force_wait('lgkmcnt(0)')
            for k in range(8):
                r = 8 + 2 * k if k < 4 else 28 + 2 * (k - 4)
                self.a('v_writelane_b32 %s, %s, %d' % (V(self.vTS), S(r), 32 + self.nts))
                self.a('v_writelane_b32 %s, %s, %d' % (V(self.vTS), S(s_ts), self.nts))
                self.nts += 1

    def sc(self, x):
        return '' if x in self.o.get('loc', '') else 'sc1'

    def touch_at(self, i):
        return [self.tch[x] for x in self.o.get('t6', '')] if i == self.o.get('ti', 6) else []

    def last_chunk(self, W, defer, wv):
        a, R = self.a, self.R
        Q, K = self.Q, self.K
        sv = []
        e = sv.append
        so, sh = R.alloc(2), R.alloc(2)
        bc = R.alloc(4)

        def sel(dst, src):
            e('v_cndmask_b32 %s, %s, %s, %s' % (V(dst), V(src), V(src + 1), S(s_M1, 2)))
            e('v_cndmask_b32 %s, %s, %s, %s' % (V(dst), V(dst), V(src + 2), S(s_M2, 2)))
            e('v_cndmask_b32 %s, %s, %s, %s' % (V(dst), V(dst), V(src + 3), S(s_M3, 2)))
        sel(so + 1, self.XXo)
        e('v_mul_f32 %s, %s, %s' % (V(so), f32(-1.0 / 448), V(self.RS)))
        for r in range(4):
            e('v_mov_b32_dpp %s, %s row_newbcast:0 row_mask:0xf bank_mask:0xf' % (V(bc + r), V(self.XXh + r)))
        sel(sh + 1, self.XXh)
        sel(sh, bc)
        e('v_mul_f32 %s, %s, %s' % (V(sh), f32(-1.0 / 448), V(sh)))
        for x in (so, sh):
            e('v_mul_f32 %s, %s, %s' % (V(x + 1), f32(1.0 / 448), V(x + 1)))
            e('v_fma_f32 %s, -%s, %s, %s' % (V(x + 1), V(x), V(x), V(x + 1)))
            e('v_max_f32 %s, 0, %s' % (V(x + 1), V(x + 1)))
            e('v_add_f32 %s, %s, %s' % (V(x + 1), f32(1e-5), V(x + 1)))
            e('v_rsq_f32 %s, %s' % (V(x + 1), V(x + 1)))
        sw = ['ds_write2_b32 %s, %s, %s offset0:0 offset1:80' % (V(self.aSw[0]), V(so), V(so + 1)),
              'ds_write2_b32 %s, %s, %s offset0:0 offset1:80' % (V(self.aSw[1]), V(sh), V(sh + 1))]
        k0 = len(defer) - 4
        a.slots(defer[:k0], [(sv[:2 * k0 - 6], 2, k0 - 1), (sv[2 * k0 - 6:], k0 - 1, k0)], at={1: [('one', 's_nop 5')]})
        defer = defer[k0:]
        a.seq(sw)
        a.wait_vm('c6')
        a.barrier()
        self.stamp()
        sT = [R.alloc(2) for _ in range(5)]
        sr = ['ds_read2_b32 %s, %s offset0:%d offset1:%d' % (V(sT[j], 2), V(self.aSt), 16 * j, 80 + 16 * j)
              for j in (1, 2, 3, 4, 0)]
        sr.append('ds_read_b32 %s, %s offset:320' % (V(self.cq), V(self.aSo)))
        rw = [[x for x in self.p1_reads(6, s, W[s], 0) if 'tr' in x] for s in range(2)]
        m = [self.p1_mfma(12 + s, W[s], 0)[3:] for s in range(2)]
        nd = len(defer)
        dp = 'row_newbcast:0 row_mask:0xf bank_mask:0xf'
        qf, kf = [], []
        for j in range(1, 5):
            for r in range(4):
                qf.append('v_fmac_f32_dpp %s, %s, %s %s' % (V(Q[j] + r), V(Q[0] + r), V(sT[j]), dp))
            for h in range(2):
                qf.append('v_cvt_pk_bf16_f32 %s, %s, %s' % (V(Q[j] + h), V(Q[j] + 2 * h), V(Q[j] + 2 * h + 1)))
            qf.append('ds_write_b64 %s, %s offset:%d' % (V(self.aQw), V(Q[j], 2), (j - 1) * 16 * QP))
        for j in (1, 2, 3, 4, 0):
            for r in range(4):
                kf.append('v_fmac_f32_dpp %s, %s, %s %s' % (V(K[j] + r), V(K[0] + r), V(sT[j]), dp))
            for r in range(4):
                kf.append('v_mul_f32 %s, %s, %s' % (V(K[j] + r), V(K[j] + r), V(sT[j] + 1)))
            for h in range(2):
                kf.append('v_cvt_pk_bf16_f32 %s, %s, %s' % (V(K[j] + h), V(K[j] + 2 * h), V(K[j] + 2 * h + 1)))
            kf.append('ds_write_b64 %s, %s offset:%d' % (V(self.aQw), V(K[j], 2), L_K - L_Q + j * 16 * QP))
        a.seq(rw[0])
        o = self.o.get
        self.Vv = [R.alloc(4) for _ in range(5)]
        self.wb = [R.alloc(4) for _ in range(4)]
        NS = self.NS = o('ns', 7)
        v0 = nd + 20
        mf = defer + m[0][:5] + m[1][:5] + m[0][5:] + m[1][5:] + [x for n in range(NS) for x in self.vm(n)]
        self.wa = self.w1_pieces(0)
        na = o('na', 6)
        cs = (28 ** -0.5) * math.log2(math.e)
        st = [(sr, 0, 3), (rw[1], nd - 1, nd + 1),
              (['v_mul_f32 %s, %s, %s' % (V(self.cq), f32(cs), V(self.cq))] + qf + kf, nd + 12, len(mf) - 2),
              (wv + self.touch_at(6), 0, o('wve', nd + 12)),
              (self.wa[:na], o('wa0', v0), len(mf)),
              ([self.wrd(n) for n in range(3)], v0 - 6, v0 - 2)]
        st += [([self.wrd(n + 3)], v0 + 5 * n, v0 + 5 * n + 1) for n in range(NS)]
        self.wa = self.wa[na:]
        at = {v0 - 7: [('wait_vm', 'wv2'), ('barrier',)], v0 + 15: [('wait_vm', 'wv4'), ('rawbar',)]}
        assert NS == 7
        a.slots(mf, st, at=at)
        a.wait_vm('wv6')
        R.release(so, 2); R.release(sh, 2); R.release(bc, 4)
        for x in sT:
            R.release(x, 2)
        for x in W[0] + W[1] + self.Q + self.K + [self.XXo, self.XXh, self.RS]:
            R.release(x, 4)
        for r_ in self.aSw + [self.aW, self.aSt, self.aSo, self.aQw]:
            R.release(r_)

    def vm(self, n):
        Vv = self.Vv
        return [MF16 % (V(Vv[j], 4), self.XF(n, j), V(self.wb[n % 4], 4), '0' if n == 0 else V(Vv[j], 4))
                for j in range(5)]

    def wrd(self, n):
        return ['ds_read_b64_tr_b16 %s, %s offset:%d' % (V(self.wb[n % 4] + 2 * h, 2), V(self.aWv), n * 4096 + 512 * h)
                for h in range(2)]

    def attn(self, c):
        a, R = self.a, self.R
        segs = segments(c)
        vL16, cq = self.vL16, self.cq
        GE = {1: s_G1, 2: s_hi, 3: s_Q3}

        class SG:
            pass
        sg = []
        for (g0, g1, kind) in segs:
            s = SG()
            s.g0, s.g1, s.kind = g0, g1, kind
            s.w0 = min(g0, 8)
            s.q, s.kp, s.kc = R.alloc(4), R.alloc(4), R.alloc(4)
            s.sp, s.sc = R.alloc(4), R.alloc(4)
            s.v = R.alloc(4)
            s.P = s.q
            sg.append(s)

        def valid(s, h):
            b = s.w0 + 4 * h
            return max(s.g0 - b, 0), min(s.g1 - b, 4)

        def reads(s):
            out = []
            for reg, off in ((s.q, 0), (s.kp, L_K - L_Q), (s.kc, L_K - L_Q + 16 * QP)):
                for h in range(2):
                    lo, hi = valid(s, h)
                    if lo < hi:
                        out.append('ds_read_b64 %s, %s offset:%d' %
                                   (V(reg + 2 * h, 2), V(self.aQr), off + 8 * s.w0 + 32 * h))
            return out

        def zeros(s):
            return ['v_mov_b32 %s, 0' % V(reg + 2 * h + k) for h in range(2) if valid(s, h)[0] >= valid(s, h)[1]
                    for reg in (s.q, s.kp, s.kc) for k in range(2)]

        def qmask(s):
            out = []
            for h in range(2):
                lo, hi = valid(s, h)
                for k in range(2):
                    r = V(s.q + 2 * h + k)
                    if lo < hi:
                        assert lo == 0 or hi == 4
                        if lo > 0:
                            out.append('v_cndmask_b32 %s, %s, %s, %s' % (r, V(self.vZero), r, S(GE[lo], 2)))
                        elif hi < 4:
                            out.append('v_cndmask_b32 %s, %s, %s, %s' % (r, r, V(self.vZero), S(GE[hi], 2)))
            return out

        def logits(s):
            return [MF16 % (V(s.sp, 4), V(s.kp, 4), V(s.q, 4), V(self.vBp, 4)),
                    MF16 % (V(s.sc, 4), V(s.kc, 4), V(s.q, 4), V(self.vBc, 4))]

        def compact(s):
            return ['v_max3_f32 %s, %s, %s, %s' % (V(s.v), V(s.sp), V(s.sp + 1), V(s.sc)),
                    'v_max3_f32 %s, %s, %s, %s' % (V(s.v + 2), V(s.sp + 2), V(s.sp + 3), V(s.sc + 2)),
                    'v_max_f32 %s, %s, %s' % (V(s.v), V(s.v), V(s.sc + 1)),
                    'v_max_f32 %s, %s, %s' % (V(s.v + 2), V(s.v + 2), V(s.sc + 3))]

        def allred(op, x, y):
            if len(x) == 2:
                p, q_ = x
                return ['v_permlane16_swap_b32 %s, %s' % (V(p), V(q_)),
                        '%s %s, %s, %s' % (op, V(p), V(p), V(q_)),
                        'v_mov_b32 %s, %s' % (V(q_), V(p)),
                        'v_permlane32_swap_b32 %s, %s' % (V(p), V(q_)),
                        '%s %s, %s, %s' % (op, V(p), V(p), V(q_)),
                        'v_mov_b32 %s, %s' % (V(q_), V(p)),
                        'v_permlane16_swap_b32 %s, %s' % (V(p), V(q_))]
            p = x[0]
            return ['v_mov_b32 %s, %s' % (V(y), V(p)),
                    'v_permlane16_swap_b32 %s, %s' % (V(p), V(y)),
                    '%s %s, %s, %s' % (op, V(p), V(p), V(y)),
                    'v_mov_b32 %s, %s' % (V(y), V(p)),
                    'v_permlane32_swap_b32 %s, %s' % (V(p), V(y)),
                    '%s %s, %s, %s' % (op, V(p), V(p), V(y))]

        def softmax(ss):
            out = []
            m = [s.sp for s in ss]
            for s in ss:
                out.append('v_max_f32 %s, %s, %s' % (V(s.sp), V(s.v), V(s.v + 2)))
            out += allred('v_max_f32', m, ss[0].sp + 1)
            for s in ss:
                out.append('v_mul_f32 %s, %s, %s' % (V(s.sp), V(s.sp), V(cq)))
                for k in (0, 2):
                    out.append('v_fma_f32 %s, %s, %s, -%s' % (V(s.v + k), V(s.v + k), V(cq), V(s.sp)))
            for s in ss:
                for k in (0, 2):
                    out.append('v_exp_f32 %s, %s' % (V(s.v + k), V(s.v + k)))
            for s in ss:
                out.append('v_add_f32 %s, %s, %s' % (V(s.sp), V(s.v), V(s.v + 2)))
            out += allred('v_add_f32', m, ss[0].sp + 1)
            for s in ss:
                out.append('v_rcp_f32 %s, %s' % (V(s.sp), V(s.sp)))
            for s in ss:
                for k in (0, 2):
                    out.append('v_mul_f32 %s, %s, %s' % (V(s.v + k), V(s.v + k), V(s.sp)))
                for k in (0, 2):
                    out.append('v_cvt_pk_bf16_f32 %s, %s, %s' % (V(s.v + k), V(s.v + k), V(s.v + k)))
                for k in range(4):
                    out.append('v_and_b32 %s, %s, %s' % (V(s.P + k), V(s.v + 2 * (k & 1)), V(self.vMP + k)))
            return out
        edge = [s for s in sg if s.kind != 'M']
        mid = [s for s in sg if s.kind == 'M']
        a.barrier()
        self.stamp(2)
        for s in edge:
            a.seq(reads(s))
        Vv, wb, vm, wrd = self.Vv, self.wb, self.vm, self.wrd

        def exoff(s, mine):
            b = c - 1 if s.kind == 'L' else c
            side = (s.kind == 'L') == mine
            return (2 * b + side) * 4096
        ne = 2 * len(edge)
        LT = 3
        LE = [x for s in edge for x in logits(s)]
        LM = [x for s in mid for x in logits(s)]
        mf = vm(7) + LE + vm(8) + LM + vm(9) + vm(10)
        for j in range(5):
            mf += [vm(n)[j] for n in range(14 - LT, 14)]
        pub = []
        for s in edge:
            pub += compact(s)
        for k, s in enumerate(edge):
            pub.append(['s_add_u32 %s, %s, %d' % (S(s_t0 + 3 * k), S(s_ex), exoff(s, True)),
                        Ins('buffer_store_dwordx4 %s, %s, %s, %s offen %s' %
                            (V(s.v, 4), V(vL16), S(sWS, 4), S(s_t0 + 3 * k), self.sc('e')), 'ex')])
        pool = [s.kc for s in sg] + [s.sc for s in sg] + [s.kp for s in mid]
        while len(pool) < 10:
            pool.append(R.alloc(4))
        mV, rV = pool[:5], pool[5:10]
        srd_ = []
        for j in range(5):
            srd_.append('ds_read_b128 %s, %s offset:%d' % (V(mV[j], 4), V(self.aSv), 64 * j))
            srd_.append('ds_read_b128 %s, %s offset:%d' % (V(rV[j], 4), V(self.aSv), 320 + 64 * j))

        def probe(s, k):
            return ['s_add_u32 %s, %s, %d' % (S(s_t1 + k), S(s_ex), exoff(s, False)),
                    'buffer_load_dwordx4 %s, %s, %s, %s offen sc1' % (V(s.kp, 4), V(vL16), S(sWS, 4), S(s_t1 + k))]
        n_ = len(mf)
        cv = R.alloc(2)
        tm = cv + 1
        cvc = ['v_mov_b32 %s, %s' % (V(cv), V(Vv[0])),
               'v_mov_b32 %s, %s' % (V(tm), V(Vv[0])),
               'v_permlane16_swap_b32 %s, %s' % (V(cv), V(tm)),
               'v_mov_b32 %s, %s' % (V(tm), V(cv)),
               'v_permlane32_swap_b32 %s, %s' % (V(cv), V(tm))]

        def vfold(j, pk):
            out = []
            if pk:
                for h in range(2):
                    out.append('v_pk_fma_f32 %s, %s, %s, %s op_sel_hi:[1,0,1]' %
                               (V(Vv[j] + 2 * h, 2), V(mV[j] + 2 * h, 2), V(cv, 2), V(Vv[j] + 2 * h, 2)))
                for h in range(2):
                    out.append('v_pk_mul_f32 %s, %s, %s' %
                               (V(Vv[j] + 2 * h, 2), V(Vv[j] + 2 * h, 2), V(rV[j] + 2 * h, 2)))
            else:
                for r in range(4):
                    out.append('v_fmac_f32 %s, %s, %s' % (V(Vv[j] + r), V(mV[j] + r), V(cv)))
                for r in range(4):
                    out.append('v_mul_f32 %s, %s, %s' % (V(Vv[j] + r), V(Vv[j] + r), V(rV[j] + r)))
            for h in range(2):
                out.append('v_cvt_pk_bf16_f32 %s, %s, %s' % (V(Vv[j] + h), V(Vv[j] + 2 * h), V(Vv[j] + 2 * h + 1)))
            out.append('ds_write_b64 %s, %s offset:%d' % (V(self.aVw), V(Vv[j], 2), 512 * j))
            return out
        o = self.o.get
        nl = len(LM)
        p8, p9 = 5 + ne, 10 + ne + nl
        pre = [x for s in edge for x in zeros(s)]
        for s in edge:
            pre += ['v_mov_b32 %s, %s' % (V(s.v + 1), S(s_tag)), 'v_mov_b32 %s, %s' % (V(s.v + 3), S(s_tag + 1))]
        smid = softmax(mid)
        ksm = o('ksm', 18)
        prb = [self.probe_ins(s_p0, self.vF3)] + [probe(s, k) for k, s in enumerate(edge)]
        nb_ = o('nab', 5)
        st = [(pre + [x for s in edge for x in qmask(s)], 0, 4),
              ([x for s in mid for x in reads(s)], 3, p8 + 1),
              ([x for s in mid for x in qmask(s)], p8 + 3, p8 + 4),
              (pub, p8 + 1, p8 + 6),
              ([wrd(10)], 0, 1), ([wrd(11)], p8, p8 + 1), ([wrd(12)], p9, p9 + 1), ([wrd(13)], p9 + 5, p9 + 6),
              ([x for s in mid for x in compact(s)] + smid[:ksm], p9 + 2, n_ - 9),
              (self.wa[:nb_], p9, n_),
              (srd_, p9 + 8, p9 + 15),
              (cvc + vfold(0, False), n_ - 9, n_)]
        a.slots(mf, st, at={p9: [('call', self.stamp, 2)]})
        self.stamp(2)
        pp = o('pp', 2)
        for j in range(1, 5):
            a.seq(vfold(j, j > 1))
            if j == pp:
                a.seq(prb)
        a.seq(self.wa[nb_:])
        a.barrier()
        if pp > 4:
            a.seq(prb)
        Vf = mV[:4]
        for t in range(4):
            for h in range(2):
                a('ds_read_b64 %s, %s offset:%d' % (V(Vf[t] + 2 * h, 2), V(self.aVr), (5 * t + h) * 512))
        wo = [['s_add_u32 m0, %s, %d' % (S(s_woM), i * 4096),
               's_add_u32 %s, %s, %d' % (S(s_d), S(s_woO), ((2 * c + i) % 14) * 4 * 7168),
               Ins('buffer_load_dwordx4 %s, %s, %s offen lds' % (V(self.vWOd), S(sWO, 4), S(s_d)), 'wo')]
              for i in range(14)]
        ng = self.o.get('woe', 14)
        a.seq(wo[:min(ng, 5)])
        a.seq(smid[ksm:])
        self.stamp(2)
        Lk, Lp, Ld = a.newlabel('Lxk'), a.newlabel('Lxp'), a.newlabel('Lxd')

        def test():
            for k, s in enumerate(edge):
                a('v_cmp_ne_u32 %s, %s, %s' % ('vcc' if k == 0 else S(s_ts, 2), S(s_tag), V(s.kp + 1)))
                a('v_cmp_ne_u32 %s, %s, %s' % (S(s_ts + 2, 2), S(s_tag + 1), V(s.kp + 3)))
                if k:
                    a('s_or_b64 vcc, vcc, %s' % S(s_ts, 2))
                a('s_or_b64 vcc, vcc, %s' % S(s_ts + 2, 2))
        test()
        a('s_cbranch_scc0 %s' % Lk)
        keep = list(a.vmq)
        a('s_mov_b32 %s, 0' % S(s_cnt))
        a.label(Lp)
        for k, s in enumerate(edge):
            a(probe(s, k)[1])
        a('s_add_u32 %s, %s, 1' % (S(s_cnt), S(s_cnt)))
        a('s_cmp_gt_u32 %s, 0x40000' % S(s_cnt))
        a.force_wait('vmcnt(0)')
        a('s_cbranch_scc1 %s' % Lk)
        test()
        a('s_cbranch_scc1 %s' % Lp)
        if self.o.get('ts'):
            a('v_writelane_b32 %s, %s, 59' % (V(self.vTS), S(s_cnt)))
        a.vmq = keep
        a.label(Lk)
        self.stamp(2)
        a.seq([self.tch[x] for x in self.o.get('tf', '')])
        a.seq(wo[5:min(ng, 9)])
        for s in edge:
            a('v_add_f32 %s, %s, %s' % (V(s.v), V(s.v), V(s.kp)))
            a('v_add_f32 %s, %s, %s' % (V(s.v + 2), V(s.v + 2), V(s.kp + 2)))
        prods = []
        free = [rV[j] for j in range(5)] + [mV[4]] + wb
        for t in range(4):
            for s in sg:
                if s.g0 < 4 * t + 4 and s.g1 > 4 * t:
                    prods.append((t, s, free.pop()))
        pm = lambda p: MF16 % (V(p[2], 4), V(Vf[p[0]], 4), V(p[1].P, 4), '0')
        early = [p for p in prods if p[1].kind == 'M']
        late = [p for p in prods if p[1].kind != 'M']
        sm = softmax(edge)
        k2 = 2 * (len(early) - 1)
        a.slots([pm(p) for p in early], [(sm[:k2], 0, len(early) - 1), (sm[k2:], len(early) - 1, len(early))])
        a.seq(wo[9:ng])

        def pack(p):
            t, s, r = p
            first = s.g0 <= 4 * t
            d = self.Of + 2 * t if first else r
            return ['v_cvt_pk_bf16_f32 %s, %s, %s' % (V(d + h), V(r + 2 * h), V(r + 2 * h + 1)) for h in range(2)]
        a.slots([pm(p) for p in late], [([x for p in early for x in pack(p)], 0, len(late))])
        for p in late:
            a.seq(pack(p))
        for f in range(2):
            for (t, s, r) in prods:
                if t >> 1 == f and s.g0 > 4 * t:
                    for h in range(2):
                        d = V(self.Of + 2 * t + h)
                        a('v_cndmask_b32 %s, %s, %s, %s' % (d, d, V(r + h), S(GE[s.g0 - 4 * t], 2)))
        for f in range(2):
            a('buffer_store_dwordx4 %s, %s, %s, %s offen offset:%d %s' %
              (V(self.Of + 4 * f, 4), V(vL16), S(sWS, 4), S(s_oS), f * 1024, self.sc('o')), 'pub')
        self.stamp()
        a.seq(wo[ng:])
        a.wait_lg()

    def scalar2(self):
        real, out = self.a, []
        a = self.a = out.append
        a('s_and_b32 %s, %s, 1' % (S(s_t0), S(s_j)))
        a('s_xor_b32 %s, %s, 1' % (S(s_t1), S(s_t0)))
        for b0, b1, stride in ((s_hL, s_hL1, 57344), (s_hLb, s_hLb1, 57344), (s_h1S, s_h1S1, 224 * 1024)):
            self.lin(b1, [(s_t1, stride), (b0, 1)])
            a('s_mul_i32 %s, %s, %d' % (S(s_t2), S(s_t0), stride))
            a('s_add_u32 %s, %s, %s' % (S(b0), S(b0), S(s_t2)))
        a('s_lshr_b32 %s, %s, 1' % (S(s_t2), S(s_j)))
        self.lin(s_f3, [(s_t0, 128), (s_t2, 8), (s_p3, 1)])
        a('s_xor_b32 %s, %s, %s' % (S(s_t0), S(s_t0), S(s_w)))
        a('s_and_b32 %s, %s, 1' % (S(s_t0), S(s_t0)))
        a('s_lshr_b32 %s, %s, 1' % (S(s_t2), S(s_w)))
        self.lin(s_t1, [(s_t0, 4096), (s_t2, 2048)])
        a('s_add_u32 %s, %s, %s' % (S(s_stL), S(s_stL), S(s_t1)))
        a('s_and_b32 %s, %s, 1' % (S(s_t0), S(s_rl)))
        for b0, b1, stride in ((s_w2O, s_w2O1, 128 * 896), (s_h1L, s_h1L1, 8192), (s_p3, s_p31, 128)):
            a('s_mul_i32 %s, %s, %d' % (S(s_t2), S(s_t0), stride))
            a('s_sub_u32 %s, %s, %s' % (S(b1), S(b0), S(s_t2)))
            a('s_add_u32 %s, %s, %d' % (S(b1), S(b1), stride))
            a('s_add_u32 %s, %s, %s' % (S(b0), S(b0), S(s_t2)))
        self.a = real
        return out

    def addr2(self):
        a, R = self.a, self.R
        vL, vL16 = self.vL, self.vL16
        t0, t1 = R.alloc(), R.alloc()
        self.aW2 = [[R.alloc(), R.alloc()] for _ in range(2)]
        aW1 = [R.alloc(), R.alloc()]
        t2 = R.alloc()
        a('v_bfe_u32 %s, %s, 4, 1' % (V(t1), V(vL)))
        a('v_lshlrev_b32 %s, 5, %s' % (V(t2), V(t1)))
        a('v_and_b32 %s, 3, %s' % (V(t1), V(vL)))
        a('v_lshl_add_u32 %s, %s, 3, %s' % (V(t2), V(t1), V(t2)))
        a('v_bfe_u32 %s, %s, 2, 2' % (V(t0), V(vL)))
        a('v_lshrrev_b32 %s, 5, %s' % (V(t1), V(vL)))
        a('v_lshl_add_u32 %s, %s, 2, %s' % (V(t1), V(t1), V(t0)))
        a('v_xor_b32 %s, %s, %s' % (V(t0), S(s_w), V(t0)))
        a('v_lshl_add_u32 %s, %s, 6, %s' % (V(t0), V(t0), V(t2)))
        a('v_lshl_add_u32 %s, %s, 8, %s' % (V(aW1[0]), V(t1), V(t0)))
        a('v_add_u32 %s, %d, %s' % (V(aW1[1]), L_W1H[1], V(aW1[0])))
        a('v_add_u32 %s, %d, %s' % (V(aW1[0]), L_W1H[0], V(aW1[0])))
        a('v_lshl_add_u32 %s, %s, 7, %s' % (V(t0), V(t1), V(t2)))
        a('v_bfe_u32 %s, %s, 3, 1' % (V(t1), V(vL)))
        a('v_lshl_add_u32 %s, %s, 6, %s' % (V(t0), V(t1), V(t0)))
        a('v_xor_b32 %s, 64, %s' % (V(t1), V(t0)))
        for k, sm in enumerate((s_w2M, s_w2R)):
            a('v_add_u32 %s, %s, %s' % (V(self.aW2[k][0]), S(sm), V(t0)))
            a('v_add_u32 %s, %s, %s' % (V(self.aW2[k][1]), S(sm), V(t1)))
        self.aW1 = aW1
        self.vB1 = R.alloc()
        self.vB2 = R.alloc(4)
        self.lin(s_t0, [(s_j, 256), (s_w, 64)])
        a('v_and_b32 %s, 31, %s' % (V(t0), V(vL)))
        a('v_lshl_add_u32 %s, %s, 1, %s' % (V(self.vB1), V(t0), S(s_t0)))
        a('s_lshl_b32 %s, %s, 7' % (S(s_t1), S(s_p)))
        a('v_and_b32 %s, 0x70, %s' % (V(t1), V(vL16)))
        a('v_add_u32 %s, %s, %s' % (V(self.vB2), S(s_t1), V(t1)))
        self.vT1, self.vT2 = R.alloc(), R.alloc()
        tr = self.o.get('tr', 28)
        a('v_min_u32 %s, %d, %s' % (V(t0), 2 * tr - 1, V(vL)))
        a('s_lshr_b32 %s, %s, 1' % (S(s_t1), S(s_rl)))
        self.lin(s_t0, [(s_t1, 4 * tr * 3584), (s_w, tr * 3584), (s_j, 256)], (224 - 8 * tr) * 3584)
        a('v_lshrrev_b32 %s, 1, %s' % (V(t1), V(t0)))
        a('v_mul_u32_u24 %s, 3584, %s' % (V(t1), V(t1)))
        a('v_and_b32 %s, 1, %s' % (V(t2), V(t0)))
        a('v_lshlrev_b32 %s, 7, %s' % (V(t2), V(t2)))
        a('v_add3_u32 %s, %s, %s, %s' % (V(self.vT1), V(t1), V(t2), S(s_t0)))
        a('v_min_u32 %s, 55, %s' % (V(t0), V(vL)))
        self.lin(s_t0, [(s_rl, 224 * 896), (s_w, 56 * 896), (s_p, 128)])
        a('v_mul_u32_u24 %s, 896, %s' % (V(t1), V(t0)))
        a('v_add_u32 %s, %s, %s' % (V(self.vT2), S(s_t0), V(t1)))
        self.vT16 = R.alloc()
        a('v_min_u32 %s, 15, %s' % (V(t0), V(vL)))
        a('v_lshlrev_b32 %s, 7, %s' % (V(self.vT16), V(t0)))
        jk = V(self.vJunk)
        self.tch = {
            'a': [nodep('buffer_load_dword %s, %s, %s, 0 offen' % (jk, V(self.vT1), S(sW1, 4)))],
            'b': ['s_mov_b32 %s, %d' % (S(s_cnt), 224 * 3584),
                  nodep('buffer_load_dword %s, %s, %s, %s offen' % (jk, V(self.vT1), S(sW1, 4), S(s_cnt)))],
            'c': [nodep('buffer_load_dword %s, %s, %s, 0 offen' % (jk, V(self.vT2), S(sW2, 4)))]}
        self.bias = ['buffer_load_ushort %s, %s, %s, 0 offen' % (V(self.vB1), V(self.vB1), S(sB1, 4)),
                     'buffer_load_dwordx4 %s, %s, %s, 0 offen' % (V(self.vB2, 4), V(self.vB2), S(sB2, 4))]
        for r_ in (t0, t1, t2):
            R.release(r_)

    def h1_window(self):
        a, R = self.a, self.R
        aW1 = self.aW1
        if 'o' in self.o.get('st', '0'):
            a.one(nodep('buffer_load_dword %s, %s, %s, %s offen sc1' %
                        (V(self.vJunk), V(self.vT16), S(sWS, 4), S(s_oS))))
        self.W1 = [R.alloc(4) for _ in range(28)]
        self.w1rd = []
        for ks in range(28):
            row = 32 * (ks >> 1) + 8 * (ks & 1)
            hi = row >= 224
            off = (row - 224 * hi) * 256
            self.w1rd.append('ds_read_b64_tr_b16 %s, %s offset:%d' % (V(self.W1[ks], 2), V(aW1[hi]), off))
            self.w1rd.append('ds_read_b64_tr_b16 %s, %s offset:%d' % (V(self.W1[ks] + 2, 2), V(aW1[hi]), off + 4096))
        self.aW1 = aW1
        a.wait_vm('w1')
        a.rawbar()
        wb = self.w1_pieces(1)
        nb0 = self.o.get('w1x', 4)
        a.seq(weave(self.w1rd[:28], wb[:min(4, nb0)] + (self.bias if self.o.get('ts') != 7 else [])))
        self.decide()
        a.seq(self.p2_init())
        a.seq(self.scalar2())
        a.wait_vm('wo')
        a.wait_vm('pub')
        a.barrier()
        self.flag_store(s_f1)
        self.stamp()
        wr = self.wo_reads(0, 14)
        n2 = self.o.get('wor2', 32)
        acc = self.p2acc
        a.seq(wr[:16])
        a.slots([MF16 % (V(acc[t], 4), A(16 * h + 4 * t, 4), V(self.Of + 4 * h, 4), V(acc[t], 4))
                 for h in range(2) for t in range(4)], [(wr[16:n2], 0, 8), (wb[4:nb0], 0, 8)])
        R.release(self.Of, 8)
        self.wo_late = wr[n2:]
        self.wb_late = wb[nb0:]
        assert nb0 in (0, 4, 8, 12, 14)

    def colsum(self, half, streams):
        a, R = self.a, self.R
        if half == 0:
            self.cs = R.alloc(16)
        cs = self.cs
        mf = [MF32 % (V(cs, 16), V(self.vOnes, 4), V(self.W1[ks], 4), '0' if ks == 0 else V(cs, 16))
              for ks in range(14 * half, 14 * half + 14)]
        a.slots(mf, streams, prewait=half)

    def ex_code(self):
        R = self.R
        cs, out = self.cs, []
        a = out.append
        t0 = cs + 1
        ex = R.alloc(4)
        a('v_lshlrev_b32 %s, 16, %s' % (V(self.vB1), V(self.vB1)))
        a('v_cvt_pk_bf16_f32 %s, %s, %s' % (V(t0), V(cs), V(cs)))
        a('v_lshlrev_b32 %s, 16, %s' % (V(t0), V(t0)))
        a('v_sub_f32 %s, %s, %s' % (V(t0), V(cs), V(t0)))
        a('v_cvt_pk_bf16_f32 %s, %s, %s' % (V(ex), V(cs), V(t0)))
        a('v_cvt_pk_bf16_f32 %s, %s, %s' % (V(ex + 1), V(cs), V(self.vB1)))
        a('v_cvt_pk_bf16_f32 %s, %s, %s' % (V(ex + 2), V(self.vB1), V(self.vZero)))
        a('v_mov_b32 %s, 0' % V(ex + 3))
        for i in range(3):
            a('v_cndmask_b32 %s, %s, %s, %s' % (V(ex + i), V(ex + i), V(self.vZero), S(s_hi, 2)))
        self.vEx = ex
        return out

    def split(self, lo, hi):
        it = []
        for k in FORD[lo:hi]:
            d = self.w2_dma(k)
            it += [d[:3], d[3]]
        return it

    def p2(self):
        a, R = self.a, self.R
        vL16 = self.vL16
        acc, vHs, vSs = self.p2acc, self.vHs, self.vSs
        NP = NSTG + NPARK
        nxt = ['s_add_u32 %s, %s, 2048' % (S(s_oS), S(s_oS)),
               's_cmp_eq_u32 %s, %s' % (S(s_oS), S(s_t0)),
               's_cselect_b32 %s, %s, %s' % (S(s_oS), S(s_oL), S(s_oS))]
        a('s_add_u32 %s, %s, 14336' % (S(s_t0), S(s_oL)))
        a.seq(nxt)
        self.stamp()
        self.poll(s_p1, self.vF1)
        self.stamp()
        of = [None, None] + [R.alloc(4) for _ in range(12)]
        late = self.wo_late
        nlate = self.o.get('nlate', 48)
        for h in range(2, 14):
            if h % 2 == 0 and h > 2:
                a.seq(nxt)
            a('buffer_load_dwordx4 %s, %s, %s, %s offen offset:%d sc1' %
              (V(of[h], 4), V(vL16), S(sWS, 4), S(s_oS), (h % 2) * 1024))
            if h > 5:
                k = nlate // 8
                a.seq(late[(h - 6) * k:(h - 5) * k])
        of = of[2:]
        mf = [MF16 % (V(acc[t], 4), A(16 * h + 4 * t, 4), V(of[h - 2], 4), V(acc[t], 4))
              for h in range(2, 14) for t in range(4)]
        nb = self.o.get('w2b', 2)
        self.stamp(5)
        a.slots(mf, [(self.wb_late + self.split(0, nb), 0, 47), (late[nlate:], 0, 20)], prewait=False,
                at={0: [('call', self.stamp, 5)]})
        for r_ in self.aWO:
            R.release(r_)
        self.stamp(5)
        Hf = self.vXr
        for t in range(4):
            for h in range(2):
                a('v_cvt_pk_bf16_f32 %s, %s, %s' % (V(Hf + 2 * t + h), V(acc[t] + 2 * h), V(acc[t] + 2 * h + 1)))
        ss, su = of[0], of[1]
        st = [Ins('buffer_store_dwordx4 %s, %s, %s, %s offen offset:%d %s' %
                  (V(Hf + 4 * f, 4), V(vHs), S(sWS, 4), S(s_hS), f * 2048, self.sc('h')), 'pub') for f in range(2)]
        a.slots([MF16 % (V(ss, 4), V(Hf, 4), V(Hf, 4), '0'),
                 MF16 % (V(ss, 4), V(Hf + 4, 4), V(Hf + 4, 4), V(ss, 4)),
                 MF16 % (V(su, 4), V(self.vOnes, 4), V(Hf, 4), '0'),
                 MF16 % (V(su, 4), V(self.vOnes, 4), V(Hf + 4, 4), V(su, 4))], [(st, 3, 4)])
        a('v_cndmask_b32 %s, %s, %s, %s' % (V(ss), V(ss), V(ss + 1), S(s_M1, 2)))
        a('v_cndmask_b32 %s, %s, %s, %s' % (V(ss), V(ss), V(ss + 2), S(s_M2, 2)))
        a('v_cndmask_b32 %s, %s, %s, %s' % (V(su + 1), V(ss), V(ss + 3), S(s_M3, 2)))
        a('s_mov_b32 exec_lo, 0x00f0000f')
        a('s_mov_b32 exec_hi, 0xf0000f00')
        a('buffer_store_dwordx2 %s, %s, %s, %s offen %s' % (V(su, 2), V(vSs), S(sWS, 4), S(s_stS), self.sc('h')), 'pub')
        a('s_mov_b64 exec, -1')
        if 'h' in self.o.get('st', '0'):
            for f in range(2):
                a.one(nodep('buffer_load_dword %s, %s, %s, %s offen offset:%d sc1' %
                            (V(self.vJunk), V(vHs), S(sWS, 4), S(s_hS), f * 2048)))
        self.stamp()
        for x in of + acc:
            R.release(x, 4)
        for r_ in [vHs, vSs] + self.vW1d:
            R.release(r_)
        self.colsum(0, [(self.split(nb, NSTG), 0, 13)])
        a.wait_vm('pub')
        a.rawbar()
        self.flag_store(s_f2)
        R.release(self.vFs); R.release(self.vFsL)
        self.stamp()

    def h2_window(self):
        pass

    def p3(self):
        a, R = self.a, self.R
        vL, vL16 = self.vL, self.vL16
        vS0, vS3, aE, aA = R.alloc(), R.alloc(), R.alloc(), R.alloc()
        t0 = R.alloc()
        a('v_lshlrev_b32 %s, 3, %s' % (V(vS0), V(vL)))
        a('v_mov_b32 %s, 0x40000000' % V(t0))
        a('v_cndmask_b32 %s, %s, %s, %s' % (V(vS3), V(vS0), V(t0), S(s_hi, 2)))
        a('v_and_b32 %s, 0x1f0, %s' % (V(aE), V(vL16)))
        a('v_add_u32 %s, %d, %s' % (V(aE), L_EX, V(aE)))
        a('s_lshl_b32 %s, %s, 10' % (S(s_t0), S(s_w)))
        a('v_add_u32 %s, %s, %s' % (V(t0), S(s_t0), V(aE)))
        a('v_add_u32 %s, %d, %s' % (V(aA), 57344, V(vL16)))

        def dma(n, part):
            so, sm, cnt = ((s_hL, s_hL1), s_aM, 4) if part == 0 else ((s_hLb, s_hLb1), s_aMb, 3)
            pre = ['s_add_u32 m0, %s, %d' % (S(sm), n * 28672),
                   's_add_u32 %s, %s, %d' % (S(s_d), S(so[n & 1]), (n >> 1) * 28672)]
            ld = [Ins('buffer_load_dwordx4 %s, %s, %s offen offset:%d sc1 lds' %
                      (V(vL16), S(sWS, 4), S(s_d), k * 1024), 'h%d%d' % (n, part)) for k in range(cnt)]
            return [pre + ld[:1]] + ld[1:]
        self.stamp()
        self.poll(s_p2, self.vF2)
        self.stamp()
        st = R.alloc(8)
        a.seq(dma(0, 0))
        for i in range(4):
            a('buffer_load_dwordx2 %s, %s, %s, %s offen offset:%d sc1' %
              (V(st + 2 * i, 2), V(vS3 if i == 3 else vS0), S(sWS, 4), S(s_stL), 512 * i))
        a.rawbar()
        a.seq(weave(self.w1rd[28:], dma(0, 1)))
        self.colsum(1, [(dma(1, 0) + dma(1, 1), 0, 14)])
        for r_ in self.aW1:
            R.release(r_)
        bx = R.alloc(4)
        cc = R.alloc(4)
        C1, C3, sd = cc, cc + 1, cc + 2
        sc = []
        e = sc.append
        e('v_add_f32 %s, %s, %s' % (V(st), V(st), V(st + 2)))
        e('v_add_f32 %s, %s, %s' % (V(st + 1), V(st + 1), V(st + 3)))
        e('v_add_f32 %s, %s, %s' % (V(st + 4), V(st + 4), V(st + 6)))
        e('v_add_f32 %s, %s, %s' % (V(st + 5), V(st + 5), V(st + 7)))
        e('v_add_f32 %s, %s, %s' % (V(st), V(st), V(st + 4)))
        e('v_add_f32 %s, %s, %s' % (V(st + 1), V(st + 1), V(st + 5)))
        e('v_mov_b32 %s, %s' % (V(st + 2), V(st)))
        e('v_mov_b32 %s, %s' % (V(st + 3), V(st + 1)))
        e('v_mov_b32 %s, 0' % V(bx + 3))
        e('v_permlane32_swap_b32 %s, %s' % (V(st), V(st + 2)))
        e('v_permlane32_swap_b32 %s, %s' % (V(st + 1), V(st + 3)))
        e('v_add_f32 %s, %s, %s' % (V(st), V(st), V(st + 2)))
        e('v_add_f32 %s, %s, %s' % (V(st + 1), V(st + 1), V(st + 3)))
        e('v_mul_f32 %s, %s, %s' % (V(st), f32(-1.0 / 448), V(st)))
        e('v_mul_f32 %s, %s, %s' % (V(st + 1), f32(1.0 / 448), V(st + 1)))
        e('v_fma_f32 %s, -%s, %s, %s' % (V(st + 1), V(st), V(st), V(st + 1)))
        e('v_max_f32 %s, 0, %s' % (V(st + 1), V(st + 1)))
        e('v_add_f32 %s, %s, %s' % (V(st + 1), f32(1e-5), V(st + 1)))
        e('v_rsq_f32 %s, %s' % (V(st + 2), V(st + 1)))
        e('v_cvt_pk_bf16_f32 %s, %s, %s' % (V(bx), V(st), V(st)))
        e('v_mul_f32 %s, %s, %s' % (V(sd), V(st + 1), V(st + 2)))
        e('v_lshlrev_b32 %s, 16, %s' % (V(st + 3), V(bx)))
        e('v_sub_f32 %s, %s, %s' % (V(st + 3), V(st), V(st + 3)))
        e('v_cvt_pk_bf16_f32 %s, %s, %s' % (V(bx + 1), V(st + 3), V(sd)))
        e('v_and_b32 %s, 0xffff0000, %s' % (V(st + 3), V(bx + 1)))
        e('v_sub_f32 %s, %s, %s' % (V(st + 3), V(sd), V(st + 3)))
        e('v_cvt_pk_bf16_f32 %s, %s, %s' % (V(bx + 2), V(st + 3), V(self.vZero)))
        kk = 2 * math.sqrt(2 / math.pi) * math.log2(math.e)
        e('v_mul_f32 %s, %s, %s' % (V(C1), f32(-kk), V(st + 2)))
        e('v_mul_f32 %s, %s, %s' % (V(C3), V(st + 2), V(st + 2)))
        e('v_mul_f32 %s, %s, %s' % (V(C3), V(C3), V(C1)))
        e('v_mul_f32 %s, %s, %s' % (V(C3), f32(0.044715), V(C3)))
        xw = [Ins('ds_write_b128 %s, %s' % (V(t0), V(bx, 4)), 'xw'),
              Ins('ds_write_b128 %s, %s offset:512' % (V(t0), V(cc, 4)), 'xw')]
        NB = 4
        fr = [R.alloc(4) for _ in range(NB)]
        acc = [R.alloc(16), self.cs]
        exc = self.ex_code()
        bx2 = R.alloc(4)
        cc2 = [R.alloc(4), R.alloc(4)]
        tmp = R.alloc(8)

        def rd(q):
            n, ks = divmod(q, 28)
            off = n * 28672 + ks * 1024
            hi = off >= 57344
            return 'ds_read_b128 %s, %s offset:%d' % (V(buf[q], 4), V(aA if hi else vL16), off - 57344 * hi)
        gs = lambda q: 29 * (q // 28) + q % 28
        iss = [gs(q) - (3 if q < 22 else 4 if q < 24 else 5) for q in range(112)]
        busy = {x: -9 for x in fr}
        busy.update({bx: 15, cc: 15})
        buf = []
        for q in range(112):
            x = min(busy, key=lambda r: busy[r])
            assert busy[x] <= iss[q]
            busy[x] = gs(q) + 1
            buf.append(x)

        def gelu(n, pk=False):
            c = self.gelu_code(acc[n & 1], cc2[n & 1], tmp, pk)
            h = len(c) // 2
            sts = [Ins('buffer_store_dwordx4 %s, %s, %s, %s offen offset:%d %s' %
                       (V(acc[n & 1] + 4 * s, 4), V(vL16), S(sWS, 4), S(s_t0), s * 1024,
                        '' if n >= self.o.get('h1l', 9) else 'sc1'), 'pub%d' % n) for s in range(2)]
            return ['s_add_u32 %s, %s, %d' % (S(s_t0), S(s_h1S1 if n & 1 else s_h1S), (n >> 1) * 112 * 1024)] + c[:h] + [sts[0]] + c[h:] + [sts[1]]
        rds = lambda lo, hi: [x for k in FORD[lo:hi] for x in self.w2_reads(k)]
        self.stamp(5)
        a.wait_vm('h00')
        a.rawbar()
        self.stamp(3)
        self.stamp(5)
        PF = NB - 1
        for q in range(PF):
            a(rd(q))
        for n in range(4):
            mf = [MF32 % (V(acc[n & 1], 16), V(self.W1[ks], 4), V(buf[28 * n + ks], 4),
                          '0' if ks == 0 else V(acc[n & 1], 16)) for ks in range(28)]
            mf.append(MF32 % (V(acc[n & 1], 16), V(self.vEx, 4), V(bx2, 4), V(acc[n & 1], 16)))
            st_ = [([rd(q)], iss[q] - 29 * n, iss[q] - 29 * n + 1) for q in range(112)
                   if 29 * n <= iss[q] < 29 * n + 29]
            at = {}
            xr = ['ds_read_b128 %s, %s offset:%d' % (V(bx2, 4), V(aE), n * 1024),
                  'ds_read_b128 %s, %s offset:%d' % (V(cc2[n & 1], 4), V(aE), n * 1024 + 512)]
            if n == 0:
                st_.append((sc, 0, 8))
                st_.append((xw, 9, 10))
                at[16 - PF] = [('wait_vm', 'h01'), ('wait_lg', 'xw'), ('rawbar',)]
                st_.append((dma(2, 0) + dma(2, 1) + dma(3, 0) + dma(3, 1), 1, 29))
                st_.append((exc, 10, 20))
                st_.append((rds(0, 5), 10, 24))
            else:
                st_.append((gelu(n - 1), 2, self.o.get('ge3', 28) if n == 3 else self.o.get('ge', 28)))
                at[1] = [('rawbar',)]
            if n == 1:
                st_.append((self.split(5, 13), 0, 29))
            if n == 2:
                st_.append((rds(5, 10), 0, 8))
                st_.append((self.split(13, 21), 2, 29))
                at.setdefault(11, []).append(('wait_lg', 'w2r_%d' % FORD[9]))
            if n == 3:
                st_.append((rds(10, 14), 0, 6))
                at.setdefault(8, []).append(('wait_lg', 'w2r_%d' % FORD[13]))
                ck = self.o.get('ck0', 24)
                st_.append((self.split(21, 28), 2, ck - 2))
                pb = self.o.get('pb0', 13)
                st_.append(([self.probe3(0)], pb, pb + 1))
                at.setdefault(ck - 3, []).append(('force_wait', 'lgkmcnt(0)'))
                st_.append((self.fold3()[:-1], ck - 3, ck))
                at.setdefault(ck, []).append(('call', self.check3, 0))
                st_.append(([self.h1load(q, A(224 + 4 * q, 4) if q < 8 else V(self.W1[q - 8], 4))
                             for q in range(self.o.get('ne', 4))], ck, 28))
            st_.append((xr, 21, 23))
            if n < 3:
                at.setdefault(24, []).extend([('wait_vm', 'h%d1' % (n + 1)), ('rawbar',)])
            if n >= 2:
                fs = self.o.get('fs', 24)
                if ('rawbar',) not in at.setdefault(fs, []):
                    at[fs].insert(0, ('rawbar',))
                at[fs].insert(0, ('wait_vm', 'pub%d' % (n - 2)))
                st_.append(([self.flag3(n - 2)], fs, fs + 1))
            if n == 0:
                for k in at:
                    at[k] = [('call', self.stamp, 5)] + at[k] + [('call', self.stamp, 5)]
            a.slots(mf, st_, at=at, prewait=2 if n in (1, 2) and self.o.get('pw2', 1) else 1)
            self.stamp(3)
            if n == 0:
                self.stamp(5)
        self.stamp()
        self.g3 = gelu(3, not self.o.get('g3w'))
        for x in fr + self.W1[22:] + [bx, cc, bx2, self.vEx, cc2[0]]:
            R.release(x, 4)
        R.release(st, 8)
        for r_ in (vS0, vS3, t0, aE, aA, self.vB1):
            R.release(r_)
        self.p3_live = [(acc[0], 16), (acc[1], 16), (cc2[1], 4), (tmp, 8)]

    def p4(self):
        a, R = self.a, self.R
        vL, vL16 = self.vL, self.vL16
        NF = 30
        fr = [A(224 + 4 * i, 4) for i in range(8)] + [V(x, 4) for x in self.W1[:22]]
        a0 = [self.p3_live.pop(0)[0], R.alloc(16)]

        def load(n):
            return self.h1load(n, fr[n % NF])

        def mm(lo, hi):
            out = []
            for n in range(lo, hi):
                mt, k = divmod(n, 28)
                out += [MF32 % (V(acc[mt][u], 16), A(8 * k + 4 * u, 4), fr[n % NF],
                                '0' if k == 0 else V(acc[mt][u], 16)) for u in range(2)]
            return out
        g3 = self.g3
        ne = self.o.get('ne', 4)
        q = self.o.get('pq1', 80)
        g3w = self.o.get('g3w', 0)
        if not g3w:
            a.seq([load(n) for n in range(ne, 14)])
            a.seq(g3[:q]); a.one(self.probe3(1)); a.seq(g3[q:])
        self.stamp()
        for b, n in self.p3_live:
            R.release(b, n)
        acc = [a0, [R.alloc(16), R.alloc(16)]]
        real, setup = a, []
        a = setup.append
        t0, t1 = R.alloc(), R.alloc()
        a('v_and_b32 %s, 15, %s' % (V(t0), V(vL)))
        a('v_mul_u32_u24 %s, 144, %s' % (V(t0), V(t0)))
        a('v_lshrrev_b32 %s, 4, %s' % (V(t1), V(vL)))
        a('v_lshl_add_u32 %s, %s, 3, %s' % (V(t0), V(t1), V(t0)))
        self.a = a
        self.lin(s_t0, [(s_w, 16 * 144)], L_HT)
        self.lin(s_t1, [(s_w, 64 * PITCH)])
        a('v_add_u32 %s, %s, %s' % (V(t0), S(s_t0), V(t0)))
        hw = ['ds_write_b64 %s, %s offset:%d' % (V(t0), V(self.vXr + 2 * t, 2), 32 * t) for t in range(4)]
        aP, aR, aH, vO = R.alloc(), R.alloc(), R.alloc(), R.alloc()
        a('v_and_b32 %s, 31, %s' % (V(aP), V(vL)))
        a('v_mul_u32_u24 %s, %d, %s' % (V(aP), PITCH, V(aP)))
        a('v_lshrrev_b32 %s, 5, %s' % (V(t1), V(vL)))
        a('v_lshl_add_u32 %s, %s, 4, %s' % (V(aP), V(t1), V(aP)))
        a('v_add_u32 %s, %s, %s' % (V(aP), S(s_t1), V(aP)))
        a('v_lshrrev_b32 %s, 3, v0' % V(vO))
        a('v_and_b32 %s, 7, v0' % V(t1))
        a('v_mul_u32_u24 %s, %d, %s' % (V(aR), PITCH, V(vO)))
        a('v_lshl_add_u32 %s, %s, 5, %s' % (V(aR), V(t1), V(aR)))
        a('v_mul_u32_u24 %s, 144, %s' % (V(aH), V(vO)))
        a('v_lshl_add_u32 %s, %s, 4, %s' % (V(aH), V(t1), V(aH)))
        a('v_add_u32 %s, %d, %s' % (V(aH), L_HT, V(aH)))
        a('v_mul_u32_u24 %s, 896, %s' % (V(vO), V(vO)))
        a('v_lshl_add_u32 %s, %s, 4, %s' % (V(vO), V(t1), V(vO)))
        self.lin(s_bX, [(s_r, 64 * 896), (s_p, 128)])
        a('s_add_u32 %s, %s, %d' % (S(s_bH), S(s_bX), 32 * 896))
        bfl = R.alloc(8)
        for i in range(4):
            a('v_lshlrev_b32 %s, 16, %s' % (V(bfl + 2 * i), V(self.vB2 + i)))
            a('v_and_b32 %s, 0xffff0000, %s' % (V(bfl + 2 * i + 1), V(self.vB2 + i)))
        a = self.a = real

        def pw(mt):
            return [Ins('ds_write_b128 %s, %s offset:%d' %
                        (V(aP), V(acc[mt][u] + 4 * gq, 4), mt * 32 * PITCH + u * 128 + gq * 32), 'pw')
                    for u in range(2) for gq in range(4)]

        def red(mt, regs, pk):
            pr = [[acc[0][w >> 1] + 8 * (w & 1) + 4 * k for k in range(2)] for w in range(4)]
            hr, hx = self.vXr, self.vXr + 4
            hx = [bflx, bflx + 4]
            rdl = ['ds_read_b128 %s, %s offset:%d' % (V(hr, 4), V(aH), mt * 32 * 144)]
            for w in range(4):
                for k in range(2):
                    rdl.append('ds_read_b128 %s, %s offset:%d' %
                               (V(pr[w][k], 4), V(aR), w * 64 * PITCH + mt * 32 * PITCH + k * 16))
            c = []

            def add(d, s):
                if pk:
                    for h in range(2):
                        c.append('v_pk_add_f32 %s, %s, %s' % (V(d + 2 * h, 2), V(d + 2 * h, 2), V(s + 2 * h, 2)))
                else:
                    for h in range(4):
                        c.append('v_add_f32 %s, %s, %s' % (V(d + h), V(d + h), V(s + h)))
            for k in range(2):
                for h in range(2):
                    c.append('v_lshlrev_b32 %s, 16, %s' % (V(hx[k] + 2 * h), V(hr + 2 * k + h)))
                    c.append('v_and_b32 %s, 0xffff0000, %s' % (V(hx[k] + 2 * h + 1), V(hr + 2 * k + h)))
                add(hx[k], bfl + 4 * k)
            npre = len(c)
            for w in range(4):
                for k in range(2):
                    add(hx[k], pr[w][k])
            for k in range(2):
                for h in range(2):
                    c.append('v_cvt_pk_bf16_f32 %s, %s, %s' %
                             (V(self.vXr + 4 + 2 * k + h), V(hx[k] + 2 * h), V(hx[k] + 2 * h + 1)))
            c.append('buffer_store_dwordx4 %s, %s, %s, %s offen sc1' %
                     (V(self.vXr + 4, 4), V(vO), S(sOUT, 4), S(s_bH if mt else s_bX)))
            return rdl, c[:npre], c[npre:]
        bflx = R.alloc(8)
        r0, c0a, c0b = red(0, acc[0][0], False)
        r1, c1a, c1b = red(1, acc[0][0], True)
        o = self.o.get
        f2, f3 = o('f2', 10), o('f3', 24)
        c = [None, o('c1', 8), o('c2', 38), o('c3', 62)]
        pd = o('pd', 12)
        at = {f2: [('wait_vm', 'pub2'), ('rawbar',)], f3: [('wait_vm', 'pub3'), ('rawbar',)],
              57: [('rawbar',)], 77: [('wait_lg', 'pw'), ('rawbar',)]}
        st = [([self.flag3(2)], f2, f2 + 1), ([self.flag3(3)], f3, f3 + 1),
              ([x for k in range(7, 14) for x in self.w2_reads(k)], 0, 13),
              ([x for k in range(21, 28) for x in self.w2_reads(k)], 13, 30), (setup, 0, 28), (hw, 30, 34),
              (pw(0), 58, 74), (r0, 79, 85), (c0a + c0b, 87, 101),
              (r1[:1], 102, 103), ([x for x in red(1, acc[0][0], False)[1]], 105, 110)]
        if g3w:
            st.append((g3, 2, g3w))
            st.append(([load(n) for n in range(ne, 14)], 0, 2 * (14 - ne)))
        for s in (1, 2, 3):
            if c[s] >= 3:
                at.setdefault(c[s] - 3, []).append(('force_wait', 'lgkmcnt(0)'))
                st.append((self.fold3()[:-1], c[s] - 3, c[s]))
            else:
                a.force_wait('lgkmcnt(0)')
                a.seq(self.fold3()[:-1])
            at.setdefault(c[s], []).append(('call', self.check3, s))
            it = [load(n) for n in range(14 * s, 14 * s + 14)]
            if s > 1 or g3w:
                st.append(([self.probe3(s)], c[s] - pd, c[s] - pd + 1))
            st.append((it[:4], c[s], c[s] + 4))
            st.append((it[4:], c[s] + 4, c[s] + 4 + o('lsp', 22)))
            assert 2 * (14 * s + 13 - NF) + 1 < c[s] + 4 + o('lsp', 22) - 1 and 2 * (14 * s + 3 - NF) + 1 < c[s]
        a.slots(mm(0, 56), st, prewait=False, at=at)
        self.stamp()
        a.seq(pw(1))
        a.barrier()
        a.seq(r1[1:])
        a.seq(c1b)
        self.stamp()

    def build(self):
        a = self.a
        self.prologue()
        self.p1()
        self.h1_window()
        self.p2()
        self.h2_window()
        self.p3()
        self.p4()
        a.label('Lfin')
        if self.o.get('ts'):
            a.fence()
        self.dump_stamps()
        a.label('Lend')
        a('s_endpgm')
        for s in range(4):
            self.slow3(s)
        self.helper()
        if self.o.get('iw', 1):
            self.add_stubs()
        return self.wrap().replace('.fill 4096, 4', '.fill 8192, 4')

    def add_stubs(self):
        import subprocess
        a = self.a
        tmp = '.amdgcn_target "amdgcn-amd-amdhsa--gfx950"\n.text\n' + \
            a.text().replace('.p2align 12', '') + 'Lch0:\nLch1:\nLch2:\n'
        open('_t.s', 'w').write(tmp)
        subprocess.check_call(['clang', '-x', 'assembler', '-target', 'amdgcn-amd-amdhsa',
                               '-mcpu=gfx950', '-c', '_t.s', '-o', '_t.o'])
        dis = subprocess.check_output(['llvm-objdump', '-d', '--mcpu=gfx950', '_t.o'], text=True)
        sizes = [4 * len(l.split('//')[1].split(':')[1].split('<')[0].split()) for l in dis.split('\n')
                 if l.startswith('\t') and '//' in l]
        assert len(sizes) == a.count(), (len(sizes), a.count())
        out, k, addr, region = [], 0, None, 'main'
        stubs = {}
        page = 1

        def stub():
            ins = Ins('s_cbranch_execz Lback')
            lab = 'Lst%d' % sum(len(v) for v in stubs.values())
            stubs.setdefault(region, []).append((lab, ins))
            out.append(lab + ':')
            out.append(ins)
        for o in a.out:
            if isinstance(o, str):
                out.append(o)
                if o == 'Lback:':
                    addr = 0
                elif o.startswith('Lvar') or o == 'Ljoin:':
                    region = o[:-1] if o.startswith('Lvar') else 'main'
                    stub()
                    addr += 4
                elif o == 'Lfin:':
                    addr = None
                continue
            if addr is not None:
                if addr >= page * 4096:
                    page += 1
                    stub()
                    addr += 4
                addr += sizes[k]
            out.append(o)
            k += 1
        chains = [v for r, v in stubs.items() if r != 'main']
        m = stubs['main']
        for i in range(3):
            ch = m[i::3]
            out[out.index(ch[0][0] + ':')] = ch[0][0] + ':\nLch%d:' % i
            chains.append(ch)
        for ch in chains:
            for (l0, i0), (l1, i1) in zip(ch, ch[1:]):
                i0.text = 's_cbranch_execz ' + l1
        a.out = out


if __name__ == '__main__':
    opt = {}
    out = 'k.s'
    for arg in sys.argv[1:]:
        if '=' in arg:
            k, v = arg.split('=')
            opt[k] = v if k in ('hp', 't6', 'tp', 'tf', 'plan', 'st', 'loc') else int(v)
        else:
            out = arg
    if opt.get('local'):
        Ins.SC = ''
    g = Gen4(opt)
    s = g.build()
    if not opt.get('final'):
        s += '; opts: nts=%d %s\n' % (g.nts, ' '.join(x for x in sys.argv[1:] if '=' in x))
    open(out, 'w').write(s)
    print('instructions', g.a.count(), 'nops', g.a.nnop, 'vgpr hi', g.R.hi, 'stamps', g.nts)
```
